```python
import torch

def _softmax(x, axis=-1):
    return torch.softmax(x, dim=axis)
def _gelu(x):
    return torch.nn.functional.gelu(x, approximate="tanh")
def _silu(x):
    return torch.nn.functional.silu(x)
def _sigmoid(x):
    return torch.sigmoid(x)
def _layernorm(x, axis=-1, eps=1e-5):
    m = x.mean(dim=axis, keepdim=True)
    v = x.var(dim=axis, keepdim=True, unbiased=False)
    return (x - m) / torch.sqrt(v + eps)
def _scatter_add(tgt, idx, src, axis=0):
    return tgt.clone().index_add_(axis, idx, src)
def _segment_sum(src, seg, n):
    out = torch.zeros((n,) + src.shape[1:], dtype=src.dtype)
    return out.index_add_(0, seg, src)
def _pad(x, pw):
    flat = tuple(v for pair in reversed(pw) for v in pair)
    return torch.nn.functional.pad(x, flat)

kernel_name = 'recurrent_scan__ssm_conv_s4__mixer_channel_mlp__prompt'

def setup_inputs():

    _w = (lambda a: (lambda t: t.to(torch.bfloat16) if t.is_floating_point() else t)(torch.as_tensor(a)))
    def _A_setup():
        B, L, D, N = 1, 2048, 512, 128
        A_re = -(lambda _x: torch.exp(torch.as_tensor(_x)))((lambda *s: torch.randn(*s, dtype=torch.bfloat16) * 3.2)(D, N))
        A_im = torch.pi * (lambda *s: torch.randn(*s, dtype=torch.bfloat16) * 0.05)(D, N)
        B_re = (lambda *s: torch.randn(*s, dtype=torch.bfloat16) * 0.1)(D, N)
        B_im = (lambda *s: torch.randn(*s, dtype=torch.bfloat16) * 0.1)(D, N)
        C_re = (lambda *s: torch.randn(*s, dtype=torch.bfloat16) * 0.1)(D, N)
        C_im = (lambda *s: torch.randn(*s, dtype=torch.bfloat16) * 0.2)(D, N)
        log_dt = (lambda *s: torch.randn(*s, dtype=torch.bfloat16) * 0.05)(D) * 0.5 - 4.0
        Dskip = (lambda *s: torch.randn(*s, dtype=torch.bfloat16) * 0.05)(D)
        return {
            "u": _w((lambda *s: torch.randn(*s, dtype=torch.bfloat16) * 0.05)(B, L, D)),
            "A_re": _w(A_re),
            "A_im": _w(A_im),
            "B_re": _w(B_re),
            "B_im": _w(B_im),
            "C_re": _w(C_re),
            "C_im": _w(C_im),
            "log_dt": _w(log_dt),
            "Dskip": _w(Dskip),
        }
    _A_in = _A_setup()

    def _B_setup():
        B, S, D, F = 1, 2048, 512, 1792
        return {
            "x": _w((lambda *s: torch.randn(*s, dtype=torch.bfloat16) * 0.05)(B, S, D)),
            "w1": _w((lambda *s: torch.randn(*s, dtype=torch.bfloat16) * 1.6)(D, F) * (D ** -0.5)),
            "b1": _w((lambda *s: torch.randn(*s, dtype=torch.bfloat16) * 0.8)(F)),
            "w2": _w((lambda *s: torch.randn(*s, dtype=torch.bfloat16) * 0.05)(F, D) * (F ** -0.5)),
            "b2": _w((lambda *s: torch.randn(*s, dtype=torch.bfloat16) * 0.05)(D)),
        }
    _B_in = _B_setup()

    return {
        "A_u": _A_in["u"],
        "A_A_re": _A_in["A_re"],
        "A_A_im": _A_in["A_im"],
        "A_B_re": _A_in["B_re"],
        "A_B_im": _A_in["B_im"],
        "A_C_re": _A_in["C_re"],
        "A_C_im": _A_in["C_im"],
        "A_log_dt": _A_in["log_dt"],
        "A_Dskip": _A_in["Dskip"],
        "B_x": _B_in["x"],
        "B_w1": _B_in["w1"],
        "B_b1": _B_in["b1"],
        "B_w2": _B_in["w2"],
        "B_b2": _B_in["b2"],
    }

def reference(A_u, A_A_re, A_A_im, A_B_re, A_B_im, A_C_re, A_C_im, A_log_dt, A_Dskip, B_x, B_w1, B_b1, B_w2, B_b2):
    def _A_ref(u, A_re, A_im, B_re, B_im, C_re, C_im, log_dt, Dskip):
        Bsz, L, D = u.shape
        dt = torch.exp(log_dt)[:, None]
        A = A_re + 1j * A_im
        Bc = B_re + 1j * B_im
        Cc = C_re + 1j * C_im
        logdA = dt * A
        dB = dt * Bc
        l = (lambda x, dt: x.to(dt))(torch.arange(L), A_re.dtype)
        P = torch.exp(logdA[:, :, None] * l[None, None, :])
        K = torch.einsum("dn,dnl,dn->dl", Cc, P, dB).real
        L2 = 2 * L
        Kp = _pad(K, ((0, 0), (0, L)))
        up = (lambda x, *d: x.permute(*d))(u, 0, 2, 1)
        up = _pad(up, ((0, 0), (0, 0), (0, L)))
        Kf = (lambda x, axes=(-2,-1): torch.fft.rfft2(x.float(), dim=axes))(Kp[:, None, :], axes=(-2, -1))
        Uf = (lambda x, axes=(-2,-1): torch.fft.rfft2(x.float(), dim=axes))(up[:, :, None, :], axes=(-2, -1))
        Yf = Uf * Kf[None, :, :, :]
        y = (lambda x, s, axes=(-2,-1): torch.fft.irfft2(x, s=s, dim=axes).to(torch.bfloat16))(Yf, (1, L2), axes=(-2, -1))[:, :, 0, :L]
        y = (lambda x, *d: x.permute(*d))(y, 0, 2, 1) + u * Dskip[None, None, :]
        return y

    def _B_ref(x, w1, b1, w2, b2):
        y = _layernorm(x, axis=-1)
        h = _gelu(torch.einsum("bsd,df->bsf", y, w1) + b1)
        return torch.einsum("bsf,fd->bsd", h, w2) + b2

    x = A_u
    xn = _layernorm(x, axis=-1)
    s = _A_ref(xn, A_A_re, A_A_im, A_B_re, A_B_im, A_C_re, A_C_im, A_log_dt, A_Dskip)
    g = _silu(_B_ref(xn, B_w1, B_b1, B_w2, B_b2))
    return x + s * g
```

```python
import re

REG_RE = re.compile(r'(?<![\w.])([vas])(\d+)(?![\w\[])|(?<![\w.])([vas])\[(\d+):(\d+)\]|(?<![\w.])(vcc|exec|m0)(?:_lo|_hi)?(?![\w])')

def regs_of(text):
    out = set()
    for m in REG_RE.finditer(text):
        if m.group(1): out.add((m.group(1), int(m.group(2))))
        elif m.group(3):
            for i in range(int(m.group(4)), int(m.group(5)) + 1): out.add((m.group(3), i))
        else: out.add((m.group(6), 0))
    return out

def split_ops(s):
    ops, depth, cur = [], 0, ''
    for ch in s:
        if ch in '[(': depth += 1
        if ch in '])': depth -= 1
        if ch == ',' and depth == 0: ops.append(cur.strip()); cur = ''
        else: cur += ch
    if cur.strip(): ops.append(cur.strip())
    return ops

TRANS = ('v_exp_f32', 'v_log_f32', 'v_rcp_f32', 'v_rsq_f32', 'v_sqrt_f32', 'v_sin_f32', 'v_cos_f32', 'v_rcp_iflag_f32')

def mfma_info(mn):
    if mn.endswith('_f32') and mn.startswith('v_mfma_f32_'):
        shape = mn.split('_')[3]
        return ('sgemm', {'32x32x2': 16, '16x16x4': 8, '4x4x1': 2, '32x32x1': 16, '16x16x1': 8}[shape])
    shape = mn.split('_')[3]
    return ('xdl', {'32x32x16': 8, '16x16x32': 4, '32x32x8': 8, '16x16x16': 4}[shape])

class Ins:
    __slots__ = ('text', 'mn', 'rd', 'wr', 'kind', 'ws', 'label', 'target', 'extra')
    def __init__(self, text):
        self.text = text; self.label = None; self.target = None; self.extra = {}
        t = text.split(';')[0].strip()
        self.rd = set(); self.wr = set(); self.kind = 'other'; self.ws = 1
        if t.endswith(':'):
            self.label = t[:-1]; self.kind = 'label'; self.ws = 0; self.mn = ''; return
        if not t or t.startswith('.'):
            self.kind = 'directive'; self.ws = 0; self.mn = ''; return
        parts = t.split(None, 1)
        mn = parts[0]; self.mn = mn
        rest = parts[1] if len(parts) > 1 else ''
        base = mn.replace('_e32', '').replace('_e64', '').replace('_dpp', '').replace('_sdwa', '')
        ops = split_ops(rest)
        R = regs_of
        if mn == 's_nop':
            self.ws = int(ops[0], 0) + 1; self.kind = 'nop'; return
        if mn.startswith('s_cbranch') or mn == 's_branch':
            self.kind = 'branch'; self.target = ops[0]
            if 'vcc' in mn: self.rd.add(('vcc', 0))
            if 'exec' in mn: self.rd.add(('exec', 0))
            return
        if mn in ('s_endpgm',): self.kind = 'end'; return
        if mn in ('s_waitcnt', 's_barrier', 's_setprio', 's_sleep', 's_sethalt') : self.kind = 'salu'; return
        if mn.startswith('s_'):
            self.kind = 'smem' if (mn.startswith('s_load') or mn.startswith('s_buffer') or mn.startswith('s_mem') or mn.startswith('s_atomic')) else 'salu'
            if mn.startswith('s_cmp') or mn.startswith('s_bitcmp'):
                for o in ops: self.rd |= R(o)
            else:
                self.wr |= R(ops[0])
                for o in ops[1:]: self.rd |= R(o)
                if 'saveexec' in mn: self.wr.add(('exec', 0)); self.rd.add(('exec', 0))
                if mn in ('s_addk_i32', 's_mulk_i32'): self.rd |= R(ops[0])
            return
        if mn.startswith('v_mfma'):
            self.kind = 'mfma'
            self.extra['cls'], self.extra['passes'] = mfma_info(mn)
            self.wr |= R(ops[0]); self.extra['A'] = R(ops[1]); self.extra['B'] = R(ops[2]); self.extra['C'] = R(ops[3].split()[0])
            self.extra['Ctext'] = ops[3].split()[0]; self.extra['Dtext'] = ops[0]
            self.rd |= self.extra['A'] | self.extra['B'] | self.extra['C']
            return
        if mn.startswith('v_'):
            self.kind = 'valu'
            if base in TRANS: self.extra['trans'] = True
            if 'dpp' in mn or re.search(r'\b(row_|quad_perm|wave_|row_bcast|row_mirror|row_half_mirror)', rest): self.extra['dpp'] = True
            if 'sdwa' in mn or 'op_sel' in rest or 'dst_sel' in rest: self.extra['opsel'] = True
            if base.startswith('v_cmpx'):
                self.wr |= R(ops[0]); self.wr.add(('exec', 0))
                for o in ops[1:]: self.rd |= R(o)
            elif base.startswith('v_cmp'):
                self.wr |= R(ops[0])
                for o in ops[1:]: self.rd |= R(o)
            elif base.startswith('v_permlane') or base == 'v_swap_b32':
                self.extra['permlane'] = base.startswith('v_permlane')
                for o in ops[:2]: self.wr |= R(o); self.rd |= R(o)
            elif base in ('v_add_co_u32', 'v_sub_co_u32', 'v_subrev_co_u32', 'v_addc_co_u32', 'v_subb_co_u32', 'v_mad_u64_u32', 'v_div_scale_f32'):
                self.wr |= R(ops[0]) | R(ops[1])
                for o in ops[2:]: self.rd |= R(o)
            else:
                self.wr |= R(ops[0])
                for o in ops[1:]: self.rd |= R(o)
                if base in ('v_fmac_f32', 'v_pk_fmac_f16', 'v_dot2c_f32_bf16', 'v_dot2c_f32_f16', 'v_writelane_b32', 'v_fmac_f16') or self.extra.get('dpp') or 'UNUSED_PRESERVE' in rest:
                    self.rd |= R(ops[0])
                if base in ('v_readlane_b32', 'v_readfirstlane_b32'):
                    self.extra['readlane'] = True
                    if base == 'v_readlane_b32': self.extra['lanesel'] = R(ops[2])
                if base == 'v_writelane_b32': self.extra['lanesel'] = R(ops[2])
                if base == 'v_cndmask_b32' and len(ops) == 3: self.rd.add(('vcc', 0))
                if base.startswith('v_dot'): self.extra['dot'] = base
            return
        if mn.startswith('ds_'):
            self.kind = 'ds'
            mo = re.search(r'offset:(-?\d+)', rest)
            if mo: assert 0 <= int(mo.group(1)) <= 65535, 'bad ds offset: ' + text
            for mo in re.finditer(r'offset[01]:(\d+)', rest): assert int(mo.group(1)) <= 255, 'bad ds offset: ' + text
            if 'd16' in mn and mn.startswith('ds_read'): self.rd |= R(ops[0])
            if mn.startswith('ds_write') or mn.startswith('ds_add') and 'rtn' not in mn:
                for o in ops: self.rd |= R(o)
            else:
                self.wr |= R(ops[0])
                for o in ops[1:]: self.rd |= R(o)
            return
        if mn.startswith('buffer_') or mn.startswith('global_') or mn.startswith('flat_'):
            self.kind = 'vmem'
            mo = re.search(r'offset:(-?\d+)', rest)
            if mo:
                ov = int(mo.group(1))
                assert (0 <= ov <= 4095) if mn.startswith('buffer_') else (-4096 <= ov <= 4095), 'bad offset: ' + text
            lds = bool(re.search(r'\blds\b', rest)) or '_lds_' in mn
            if lds: self.extra['ldsdma'] = True; self.rd.add(('m0', 0))
            if mn in ('buffer_inv', 'buffer_wbl2'): return
            if 'store' in mn or lds or ('atomic' in mn and 'sc0' not in rest):
                for o in ops: self.rd |= R(o)
                if 'store' in mn and ('x3' in mn or 'x4' in mn):
                    di = 0 if mn.startswith('buffer_') else 1
                    self.extra['wide_store'] = R(ops[di])
            elif 'atomic' in mn:
                for o in ops: self.rd |= R(o)
                self.wr |= R(ops[0])
            else:
                self.wr |= R(ops[0])
                for o in ops[1:]: self.rd |= R(o)
            return
        raise ValueError('unknown instruction: ' + text)

def is_vgpr(r): return r[0] in ('v', 'a')
def is_sgpr(r): return r[0] in ('s', 'vcc')

def need(p, c):
    n = 0
    pv = {r for r in p.wr if is_vgpr(r)}
    ps = {r for r in p.wr if is_sgpr(r)}
    if p.kind == 'valu':
        if c.kind == 'mfma' and pv & c.rd: n = max(n, 3 if p.extra.get('dot') else 2)
        if c.kind == 'valu':
            if p.extra.get('trans') and not c.extra.get('trans') and pv & c.rd: n = max(n, 1)
            if p.extra.get('trans') and pv & c.rd: n = max(n, 1)
            if p.extra.get('opsel') and pv & (c.rd | c.wr): n = max(n, 1)
            if c.extra.get('dpp') and pv & c.rd: n = max(n, 2)
            if c.extra.get('permlane') and pv & c.rd: n = max(n, 2)
            if c.extra.get('readlane') and pv & c.rd: n = max(n, 1)
            if ps & c.rd: n = max(n, 2)
            if c.extra.get('lanesel') and ps & c.extra['lanesel']: n = max(n, 4)
            if ('exec', 0) in p.wr:
                if c.extra.get('dpp'): n = max(n, 5)
                if c.extra.get('readlane') or c.extra.get('permlane') or c.extra.get('lanesel'): n = max(n, 4)
                if ('exec', 0) in c.rd: n = max(n, 2)
            if p.extra.get('dot') and pv & (c.rd | c.wr):
                if not (c.extra.get('dot') == p.extra['dot'] and not (pv & (c.rd - c.wr))): n = max(n, 3)
        if c.kind in ('vmem', 'ds') and p.extra.get('dot') and pv & c.rd: n = max(n, 3)
        if c.kind == 'vmem' and ps & c.rd: n = max(n, 5)
        if c.kind == 'mfma' and ('exec', 0) in p.wr: n = max(n, 4)
        if c.kind == 'branch' and (ps | (p.wr & {('exec', 0)})) & c.rd: n = max(n, 5)
        if c.kind in ('salu', 'smem') and ps & c.rd: n = max(n, 1)
    if p.kind == 'salu' and ('m0', 0) in p.wr and c.extra.get('ldsdma'): n = max(n, 1)
    if p.kind == 'vmem' and p.extra.get('wide_store') and (p.extra['wide_store'] & c.wr):
        n = max(n, 2 if c.kind in ('valu', 'mfma') else 1)
    if p.kind == 'mfma':
        cls, ps_ = p.extra['cls'], p.extra['passes']
        idx = {2: 0, 4: 1, 8: 2, 16: 3}[ps_]
        D = p.wr
        if c.kind == 'mfma':
            if D & (c.extra['A'] | c.extra['B']):
                n = max(n, [5, 8, 12, 20][idx] if cls == 'xdl' else [4, 6, 10, 18][idx])
            if D & c.extra['C']:
                exact = (c.extra['Ctext'] == p.extra['Dtext'] and c.extra['passes'] == ps_ and c.extra['cls'] == cls)
                if exact: n = max(n, [2, 0, 0, 0][idx])
                elif cls == 'xdl': n = max(n, [4, 6, 10, 18][idx])
                else: n = max(n, [2, 4, 8, 16][idx])
            elif D & c.wr:
                n = max(n, [5, 8, 12, 20][idx])
        elif c.kind in ('valu', 'vmem', 'ds'):
            if D & (c.rd | c.wr):
                n = max(n, [5, 8, 12, 20][idx] if cls == 'xdl' else [4, 6, 10, 18][idx])
        if cls == 'xdl' and c.kind == 'valu' and (p.extra['C'] & c.wr):
            n = max(n, [1, 3, 7, 15][idx])
    return n

MAXWS = 20

class Prog:
    def __init__(self):
        self.ins = []
    def __call__(self, text):
        for line in text.split('\n'):
            line = line.strip()
            if not line or line.startswith(';'): continue
            self.ins.append(Ins(line))
    def label(self, name): self(name + ':')
    def fix_hazards(self):
        changed = True; total = 0
        while changed:
            changed = False
            ins = self.ins
            labels = {x.label: i for i, x in enumerate(ins) if x.label}
            srcs = {}
            for i, x in enumerate(ins):
                if x.kind == 'branch' and x.target in labels: srcs.setdefault(labels[x.target], []).append(i)
            out = []
            inserts = {}
            for i, c in enumerate(ins):
                if c.kind in ('label', 'directive', 'nop', 'end'): continue
                worst = 0
                stack = [(i - 1, 0)]
                seen = set()
                while stack:
                    j, dist = stack.pop()
                    while j >= 0 and dist < MAXWS:
                        if (j, dist) in seen: break
                        seen.add((j, dist))
                        p = ins[j]
                        if p.kind == 'label':
                            for s in srcs.get(j, []): stack.append((s, dist))
                            k = j - 1
                            while k >= 0 and ins[k].kind in ('directive',): k -= 1
                            if k >= 0 and (ins[k].mn == 's_branch' or ins[k].kind == 'end'): break
                            j -= 1; continue
                        if p.kind == 'end': break
                        n = need(p, c) if p.kind in ('valu', 'mfma', 'salu', 'vmem') else 0
                        if n > dist: worst = max(worst, n - dist)
                        dist += p.ws + inserts.get(j, 0)
                        j -= 1
                if worst:
                    inserts[i] = worst
            if inserts:
                new = []
                for i, x in enumerate(ins):
                    w = inserts.get(i, 0)
                    while w > 0:
                        k = min(w, 16)
                        new.append(Ins('s_nop %d' % (k - 1))); w -= k; total += 1
                    new.append(x)
                self.ins = new
                changed = True
        return total
    def text(self):
        return '\n'.join((x.text if x.kind in ('label', 'directive') else '    ' + x.text) for x in self.ins) + '\n'

class Regs:
    def __init__(self, pfx, lo, hi):
        self.pfx = pfx; self.free_ = set(range(lo, hi)); self.hi_used = lo
    def alloc(self, n=1, align=1):
        for b in sorted(self.free_):
            if b % align == 0 and all((b + i) in self.free_ for i in range(n)):
                for i in range(n): self.free_.discard(b + i)
                self.hi_used = max(self.hi_used, b + n)
                return b
        raise RuntimeError('out of %s regs (n=%d)' % (self.pfx, n))
    def free(self, b, n=1):
        for i in range(n): self.free_.add(b + i)

def vr(b, n=1, p='v'):
    return '%s%d' % (p, b) if n == 1 else '%s[%d:%d]' % (p, b, b + n - 1)
def sr(b, n=1): return vr(b, n, 's')

def kernel_desc(name, vgpr, sgpr=102, accum=None):
    if accum is None: accum = (vgpr + 3) // 4 * 4
    return f""".amdhsa_kernel {name}
  .amdhsa_next_free_vgpr {vgpr}
  .amdhsa_next_free_sgpr {sgpr}
  .amdhsa_accum_offset {accum}
  .amdhsa_group_segment_fixed_size 0
  .amdhsa_kernarg_size 136
  .amdhsa_user_sgpr_count 2
  .amdhsa_user_sgpr_kernarg_segment_ptr 1
  .amdhsa_system_sgpr_workgroup_id_x 1
  .amdhsa_float_denorm_mode_32 3
  .amdhsa_float_denorm_mode_16_64 3
.end_amdhsa_kernel
"""
```

```python
from asmlib import *
import math

class Cnt:
    def __init__(self, p, name, cap):
        self.p = p; self.name = name; self.cap = cap; self.ops = []; self.done = 0
    def issue(self, tag): self.ops.append(tag)
    def wait(self, tag):
        idx = max((i for i, t in enumerate(self.ops) if t == tag), default=-1)
        if idx < self.done: return
        n = len(self.ops) - 1 - idx
        assert n <= self.cap or True
        n = min(n, self.cap)
        self.p(f"s_waitcnt {self.name}({n})")
        self.done = len(self.ops) - n
    def wait_all(self):
        self.p(f"s_waitcnt {self.name}(0)"); self.done = len(self.ops)

RING = 0; SLOT = 16384; NSLOT = 4
WSUM = 65536 - 0
def role_A(p, vgen, G):
    S_WAVE, S_TAGA, S_TAGB = G.S_WAVE, G.S_TAGA, G.S_TAGB
    f32 = G.f32; cfg = G.cfg; stamp = G.stamp; srd = G.srd; PTR = G.PTR
    MISC = 0
    WS = MISC; B1L = MISC + 512
    RING = 1024
    V = Regs('v', 4, 256); a = V.alloc
    lane = 1
    vm = Cnt(p, 'vmcnt', 63); lg = Cnt(p, 'lgkmcnt', 15)
    vm.issue('gen')
    t0 = a(); t1 = a(); t2 = a(); t3 = a()
    S2 = a(12, 4)
    vT = S2; TG = S2 + 2; FL = S2 + 4; vW2o = S2 + 6; vHo = S2 + 7; vOo = S2 + 8; vSo = S2 + 9; vFo = S2 + 10
    vj16 = a(); vg4 = a()
    X = a(128, 4)
    p(f"""s_sub_u32 s60, s2, 256
    s_and_b32 s61, s60, 7
    s_lshr_b32 s62, s60, 3""")
    srd(p, 8, 0, 2048 * 1024)
    srd(p, 12, 10, 512 * 3584)
    srd(p, 52, 12, 1792 * 1024)
    srd(p, 56, 14, 2048 * 1024)
    p(f"""v_and_b32 v{vj16}, 15, v{lane}
    v_lshrrev_b32 v{vg4}, 4, v{lane}
    s_cmp_ge_u32 s62, 28
    s_cbranch_scc1 L_a_nog1""")
    p(f"""s_mul_i32 s63, s62, 37
    s_lshr_b32 s63, s63, 8
    s_mul_i32 s64, s63, 7
    s_sub_u32 s64, s62, s64
    s_lshr_b32 s65, s61, 1
    s_lshl_b32 s65, s65, 2
    s_add_u32 s63, s63, s65
    s_and_b32 s65, s61, 1
    s_mul_i32 s65, s65, 7
    s_add_u32 s64, s64, s65
    s_lshr_b32 s66, s{S_WAVE}, 1
    s_and_b32 s67, s{S_WAVE}, 1""")
    vXo = a(); vWo = a()
    p(f"""v_xor_b32 v{t0}, s66, v{vg4}
    v_lshlrev_b32 v{t0}, 4, v{t0}
    v_lshl_add_u32 v{vXo}, v{vj16}, 10, v{t0}
    s_lshl_b32 s68, s63, 17
    s_lshl_b32 s65, s{S_WAVE}, 15
    s_add_u32 s68, s68, s65
    s_add_u32 s69, s68, 16384
    v_lshrrev_b32 v{t0}, 3, v{lane}
    v_mul_u32_u24 v{vWo}, 3584, v{t0}
    v_and_b32 v{t0}, 7, v{lane}
    v_bfe_u32 v{t1}, v{lane}, 4, 1
    v_lshlrev_b32 v{t1}, 2, v{t1}
    v_xor_b32 v{t0}, v{t0}, v{t1}
    v_lshl_add_u32 v{vWo}, v{t0}, 4, v{vWo}
    s_mul_i32 s70, s{S_WAVE}, {8*3584}
    s_lshl_b32 s65, s64, 8
    s_add_u32 s70, s70, s65
    s_lshl_b32 s71, s{S_WAVE}, 10""")
    def xr(s32, n): return X + (s32 * 2 + n) * 4
    def dma_w1(ci):
        phi, c = ci >> 2, ci & 3
        for i in range(4):
            if cfg.now1 and i: continue
            p(f"""s_add_u32 m0, s71, {RING + (ci % NSLOT)*SLOT + i*4096}
            s_add_u32 s65, s70, {(128*c + 32*i)*3584 + phi*128}
            buffer_load_dwordx4 v{vWo}, s[12:15], s65 offen lds""")
            vm.issue(('w1', ci))
    for c in range(4):
        dma_w1(c)
        for s32 in range(4 * c, 4 * c + 4):
            for n in range(2):
                if cfg.nox and (s32 or n): continue
                p(f"buffer_load_dwordx4 {vr(xr(s32,n),4)}, v{vXo}, s[8:11], s{68+n} offen offset:{64*s32}")
                vm.issue(('x', c))
    vB1 = a(2, 2); AB_ = a(4, 2); vABo = a()
    p(f"""s_lshl_b32 s65, s64, 8
    v_lshl_add_u32 v{t0}, v{lane}, 2, s65
    global_load_dword v{vB1}, v{t0}, {sr(PTR(11),2)}
    v_and_b32 v{vABo}, 31, v{lane}
    v_lshlrev_b32 v{vABo}, 4, v{vABo}
    s_lshr_b32 s72, s68, 6
    s_add_u32 s72, s72, {G.AB}""")
    vm.issue('b1')
    SEL = S2; ONE = S2 + 4; vA = S2 + 8
    p(f"""v_lshrrev_b32 v{t0}, 5, v{lane}
    v_lshlrev_b32 v{t0}, 11, v{t0}
    v_bfe_u32 v{t1}, v{lane}, 2, 2
    v_lshl_add_u32 v{t0}, v{t1}, 7, v{t0}
    v_bfe_u32 v{t1}, v{lane}, 4, 1
    v_lshl_add_u32 v{t0}, v{t1}, 5, v{t0}
    v_and_b32 v{t1}, 3, v{lane}
    v_lshl_add_u32 v{t0}, v{t1}, 3, v{t0}
    v_bfe_u32 v{t1}, v{lane}, 3, 1
    v_xor_b32 v{t1}, s67, v{t1}
    v_lshl_add_u32 v{t0}, v{t1}, 6, v{t0}
    s_lshl_b32 s65, s66, 10
    v_add_u32 v{vA}, s65, v{t0}
    v_xor_b32 v{vA+1}, 64, v{vA}
    v_xor_b32 v{vA+2}, 0x400, v{vA}
    v_xor_b32 v{vA+3}, 64, v{vA+2}
    v_xor_b32 v{t0}, v{vg4}, v{vj16}
    v_and_b32 v{t0}, 1, v{t0}
    v_cmp_eq_u32 vcc, 0, v{t0}
    v_mov_b32 v{t1}, 0x3f803f80
    v_cndmask_b32 v{SEL}, 0, v{t1}, vcc
    v_mov_b32 v{SEL+1}, v{SEL}
    v_mov_b32 v{SEL+2}, v{SEL}
    v_mov_b32 v{SEL+3}, v{SEL}
    v_mov_b32 v{t0}, 0
    v_lshlrev_b32 v{t1}, 2, v0
    v_cmp_gt_u32 vcc, 128, v0
    s_and_saveexec_b64 s[74:75], vcc
    ds_write_b32 v{t1}, v{t0} offset:{WS}
    s_mov_b64 exec, s[74:75]""")
    lg.issue('z')
    ACC = a(64, 4)
    FR = a(24, 4)
    def acc(phi, mu): return ACC + (phi * 2 + mu) * 16
    steps = [(ci, sp, eta) for ci in range(8) for sp in range(4) for eta in range(2)]
    def rd_frag(idx):
        ci, sp, eta = steps[idx]
        b = FR + (idx % 3) * 8
        for mu in range(2):
            for rho in range(2):
                p(f"ds_read_b64_tr_b16 {vr(b + mu*4 + rho*2, 2)}, v{vA + eta*2 + mu} offset:{RING + (ci % NSLOT)*SLOT + (32*sp + 4*rho)*128}")
                lg.issue(('fr', idx))
    PF = cfg.pf
    for ci in range(8):
        phi, c = ci >> 2, ci & 3
        vm.wait(('w1', ci))
        if ci < 4: vm.wait(('x', ci))
        if ci == 0:
            stamp(p, 1)
            lg.wait('z')
        p("s_barrier")
        if cfg.fine and ci >= 1: stamp(p, ci + 1)
        if 1 <= ci <= 4: dma_w1(ci + 3)
        if ci == 1:
            vm.wait('b1')
            G.make_tags(p, vgen)
            p(f"""v_and_b32 v{vB1+1}, 0xffff0000, v{vB1}
            v_lshlrev_b32 v{vB1}, 16, v{vB1}
            v_lshlrev_b32 v{t0}, 3, v{lane}
            ds_write_b64 v{t0}, {vr(vB1,2)} offset:{B1L}""")
            lg.issue('b1w')
        if ci == 5:
            p(f"buffer_load_dwordx4 {vr(AB_,4)}, v{vABo}, s[4:7], s72 offen sc1")
            vm.issue('ab')
        if ci < 4:
            for s32 in range(4 * ci, 4 * ci + 4):
                for d in range(4): p(f"v_permlane16_swap_b32 v{xr(s32,0)+d}, v{xr(s32,1)+d}")
        base = ci * 8
        for k in range(PF): rd_frag(base + k)
        for k in range(8):
            idx = base + k
            _, sp, eta = steps[idx]
            if k + PF < 8: rd_frag(idx + PF)
            lg.wait(('fr', idx))
            b = FR + (idx % 3) * 8
            first = (c == 0 and k == 0)
            for mu in range(2):
                cc = '0' if first else vr(acc(phi, mu), 16)
                p(f"v_mfma_f32_32x32x16_bf16 {vr(acc(phi,mu),16)}, {vr(b+mu*4,4)}, {vr(xr(4*c+sp, eta),4)}, {cc}")
            if eta == 0 and not cfg.noones:
                cc = '0' if first else vr(ONE, 4)
                p(f"v_mfma_f32_16x16x32_bf16 {vr(ONE,4)}, {vr(b,4)}, {vr(SEL,4)}, {cc}")
        if c == 3:
            p(f"""s_lshl_b32 s65, s67, 7
            v_lshlrev_b32 v{t0}, 6, v{vj16}
            v_lshl_add_u32 v{t0}, v{vg4}, 4, v{t0}
            v_add_u32 v{t0}, s65, v{t0}
            s_mov_b32 s74, 0x00030003
            s_mov_b32 s75, 0x00030003
            s_mov_b64 exec, s[74:75]""")
            for r in range(4):
                p(f"ds_add_f32 v{t0}, v{ONE+r} offset:{WS + phi*256 + r*4}")
                lg.issue('wsum')
            p("s_mov_b64 exec, -1")
    lg.wait_all()
    p("s_barrier")
    if cfg.fine:
        stamp(p, 9)
        G.stamps_out(p, 10, ACC)
        p("s_endpgm")
    stamp(p, 2)
    V.free(FR, 24); V.free(X, 128); V.free(vXo); V.free(vWo); V.free(vB1, 2)

    W2L = 1024; W2P = 19 * 1024 + 512 - 512
    W2P = 20224 - 20224 % 2048
    NK_L = W2P // 2048
    def g2_setup():
        p(f"""s_lshl_b32 s63, s61, 2
        s_lshr_b32 s65, s62, 3
        s_add_u32 s63, s63, s65
        s_and_b32 s64, s62, 7
        v_lshrrev_b32 v{t0}, 3, v{lane}
        v_lshlrev_b32 v{vW2o}, 10, v{t0}
        v_and_b32 v{t0}, 7, v{lane}
        v_bfe_u32 v{t1}, v{lane}, 4, 1
        v_lshlrev_b32 v{t1}, 1, v{t1}
        v_xor_b32 v{t0}, v{t0}, v{t1}
        v_lshl_add_u32 v{vW2o}, v{t0}, 4, v{vW2o}
        s_mul_i32 s70, s{S_WAVE}, {448*1024}
        s_lshl_b32 s65, s64, 7
        s_add_u32 s70, s70, s65
        s_mul_i32 s71, s{S_WAVE}, {W2P}
        s_add_u32 s71, s71, {W2L}""")
    def dma_w2(kap, cnt):
        for i in range(2):
            p(f"""s_add_u32 m0, s71, {(kap % NK_L)*2048 + i*1024}
            s_add_u32 s65, s70, {(16*kap + 8*i)*1024}
            buffer_load_dwordx4 v{vW2o}, s[52:55], s65 offen lds""")
            cnt.issue(('w2', kap))
    p("s_mov_b32 s76, s63\n s_mov_b32 s77, s64")
    g2_setup()
    for kap in range(NK_L): dma_w2(kap, vm)
    p(f"""s_mov_b32 s73, 0
L_a_abpoll:""")
    vm.wait('ab')
    p(f"""v_xor_b32 v{t0}, s{S_TAGA}, v{AB_+2}
    v_xor_b32 v{t1}, s{S_TAGB}, v{AB_+3}
    v_or_b32 v{t0}, v{t0}, v{t1}
    v_cmp_ne_u32 vcc, 0, v{t0}
    s_add_u32 s73, s73, 1
    s_cmp_eq_u64 vcc, 0
    s_cbranch_scc1 L_a_abok
    s_cmp_ge_u32 s73, {G.SPIN_MAX}
    s_cbranch_scc1 L_a_abok
    s_sleep 1
    buffer_load_dwordx4 {vr(AB_,4)}, v{vABo}, s[4:7], s72 offen sc1
    s_waitcnt vmcnt(0)
    s_branch L_a_abpoll
L_a_abok:""")
    stamp(p, 3)
    C1 = -2 * 0.7978845608028654 * G.LOG2E; C2 = C1 * 0.044715
    KC_ = a(4, 2)
    vE = a()
    p(f"""v_mov_b32 v{KC_}, {f32(C1)}
    v_mov_b32 v{KC_+2}, {f32(C2)}
    v_lshrrev_b32 v{vE}, 5, v{lane}
    v_lshlrev_b32 v{vE}, 4, v{vE}
    s_lshl_b32 s65, s67, 7
    v_add_u32 v{vE}, s65, v{vE}
    v_lshlrev_b32 v{vHo}, 4, v{lane}
    s_lshl_b32 s72, s76, 2
    s_add_u32 s72, s72, s{S_WAVE}
    s_mul_i32 s72, s72, {112*1024}
    s_lshl_b32 s65, s77, 13
    s_add_u32 s72, s72, s65
    s_lshl_b32 s65, s67, 11
    s_add_u32 s72, s72, s65
    s_add_u32 s72, s72, {G.HB}""")
    WB = [a(32, 4), a(32, 4)]
    HO = [a(8, 4), a(8, 4)]
    TM = a(16, 2)
    vE2 = a()
    p(f"v_xor_b32 v{vE2}, 128, v{vE}")
    tiles = [(phi, mu) for phi in range(2) for mu in range(2)]
    def rd_wb(ti):
        phi, mu = tiles[ti]
        for q in range(4):
            p(f"ds_read_b128 {vr(WB[ti&1] + 4*q, 4)}, v{vE2 if mu else vE} offset:{WS + phi*256 + q*32}")
            p(f"ds_read_b128 {vr(WB[ti&1] + 16 + 4*q, 4)}, v{vE2 if mu else vE} offset:{B1L + phi*256 + q*32}")
            lg.issue(('wb', ti)); lg.issue(('wb', ti))
    rd_wb(0)
    for ti, (phi, mu) in enumerate(tiles):
        if ti < 3: rd_wb(ti + 1)
        lg.wait(('wb', ti))
        wb = WB[ti & 1]; ac = acc(phi, mu); ho = HO[ti & 1]
        for half in range(2):
            prs = [4 * half + k for k in range(4)]
            for k in prs: p(f"v_pk_fma_f32 {vr(wb+2*k,2)}, {vr(wb+2*k,2)}, {vr(AB_,2)}, {vr(wb+16+2*k,2)} op_sel:[0,1,0] op_sel_hi:[1,1,1]")
            for k in prs: p(f"v_pk_fma_f32 {vr(ac+2*k,2)}, {vr(ac+2*k,2)}, {vr(AB_,2)}, {vr(wb+2*k,2)} op_sel_hi:[1,0,1]")
            for k in prs: p(f"v_pk_mul_f32 {vr(TM+2*(k&3),2)}, {vr(ac+2*k,2)}, {vr(ac+2*k,2)}")
            for k in prs: p(f"v_pk_fma_f32 {vr(TM+2*(k&3),2)}, {vr(TM+2*(k&3),2)}, {vr(KC_+2,2)}, {vr(KC_,2)} op_sel_hi:[1,0,0]")
            for k in prs: p(f"v_pk_mul_f32 {vr(TM+2*(k&3),2)}, {vr(TM+2*(k&3),2)}, {vr(ac+2*k,2)}")
            for k in range(8): p(f"v_exp_f32 v{TM+k}, v{TM+k}")
            for k in prs: p(f"v_pk_add_f32 {vr(TM+2*(k&3),2)}, {vr(TM+2*(k&3),2)}, 1.0 op_sel_hi:[1,0]")
            for k in range(8): p(f"v_rcp_f32 v{TM+k}, v{TM+k}")
            for k in prs: p(f"v_pk_mul_f32 {vr(TM+2*(k&3),2)}, {vr(TM+2*(k&3),2)}, {vr(ac+2*k,2)}")
            for k in prs: p(f"v_cvt_pk_bf16_f32 v{ho+k}, v{TM+2*(k&3)}, v{TM+2*(k&3)+1}")
            if mu == 0: p(f"s_add_u32 s65, s72, {phi*4096}")
            else: p(f"s_xor_b32 s65, s72, 2048\n s_add_u32 s65, s65, {phi*4096}")
            p(f"buffer_store_dwordx4 {vr(ho+4*half,4)}, v{vHo}, s[4:7], s65 offen offset:{half*1024} sc1")
            vm.issue('hst')
    vm.wait_all()
    stamp(p, 4)
    p("s_branch L_a_flag")
    p("L_a_nog1:")
    vm2 = Cnt(p, 'vmcnt', 63)
    g2_setup()
    for kap in range(NK_L): dma_w2(kap, vm2)
    p("s_waitcnt vmcnt(0)")
    G.make_tags(p, vgen)
    if cfg.ts:
        for k in range(1, 5): stamp(p, k)
    p("L_a_flag:")
    for r, n in ((WB[0], 32), (WB[1], 32), (HO[0], 8), (HO[1], 8), (TM, 16), (KC_, 4), (vE, 1), (vE2, 1), (AB_, 4), (vABo, 1), (ACC, 64)): V.free(r, n)
    vm = Cnt(p, 'vmcnt', 63)
    p(f"""v_mov_b32 v{vT}, s{S_TAGA}""") if False else None
    p(f"""v_mov_b32 v{TG}, s{S_TAGA}
    v_mov_b32 v{TG+1}, s{S_TAGB}
    s_lshl_b32 s65, s60, 2
    s_add_u32 s65, s65, s{S_WAVE}
    s_lshl_b32 s65, s65, 6
    s_add_u32 s65, s65, {G.HFLAG}
    v_mov_b32 v{t0}, 0
    s_mov_b64 exec, 1
    buffer_store_dwordx2 {vr(TG,2)}, v{t0}, s[4:7], s65 offen sc1
    s_mov_b64 exec, -1""")
    vm.issue('flag')
    p(f"""v_lshrrev_b32 v{t0}, 5, v{lane}
    v_lshlrev_b32 v{t0}, 9, v{t0}
    v_bfe_u32 v{t1}, v{lane}, 2, 2
    v_lshl_add_u32 v{t0}, v{t1}, 7, v{t0}
    v_and_b32 v{t1}, 1, v{lane}
    v_lshl_add_u32 v{t0}, v{t1}, 6, v{t0}
    v_bfe_u32 v{t1}, v{lane}, 4, 1
    v_lshl_add_u32 v{t0}, v{t1}, 4, v{t0}
    v_bfe_u32 v{t1}, v{lane}, 1, 1
    v_lshl_add_u32 v{t0}, v{t1}, 3, v{t0}
    v_bfe_u32 v{t1}, v{lane}, 3, 1
    v_lshl_add_u32 v{t0}, v{t1}, 5, v{t0}
    v_add_u32 v{vT}, s71, v{t0}
    v_xor_b32 v{vT+1}, 32, v{vT}""")
    NK_R = 11
    WR = a(NK_R * 8, 4); ACC2 = a(64, 4); HBUF = a(64, 4); WF = a(16, 4)
    def rd_w2(kap, dst):
        for md in range(2):
            for rho in range(2):
                p(f"ds_read_b64_tr_b16 {vr(dst + md*4 + rho*2, 2)}, v{vT+md} offset:{(kap % NK_L)*2048 + rho*1024}")
                lg.issue(('w2r', kap))
    for kap in range(NK_L): rd_w2(kap, WR + kap * 8)
    lg.wait_all()
    nxt = NK_L
    for kap in range(NK_L, 2 * NK_L): dma_w2(kap, vm)
    nxt = 2 * NK_L
    XE = WR + 32; B2E = WR + 40; vB2o = TG
    p(f"""v_and_b32 v{t0}, 31, v{lane}
    v_lshlrev_b32 v{vOo}, 10, v{t0}
    v_lshrrev_b32 v{t0}, 5, v{lane}
    v_lshl_add_u32 v{vOo}, v{t0}, 6, v{vOo}
    s_lshl_b32 s72, s63, 16
    s_lshr_b32 s65, s{S_WAVE}, 1
    s_lshl_b32 s65, s65, 15
    s_add_u32 s72, s72, s65
    s_lshl_b32 s73, s64, 7
    s_and_b32 s65, s{S_WAVE}, 1
    s_lshl_b32 s65, s65, 5
    s_add_u32 s73, s73, s65
    s_add_u32 s72, s72, s73
    v_lshl_add_u32 v{vB2o}, v{t0}, 6, s73""")
    vm.wait(('w2', NK_R - 1))
    for kap in range(NK_L, NK_R): rd_w2(kap, WR + kap * 8)
    lg.wait_all()
    for kap in range(nxt, nxt + NK_R - NK_L): dma_w2(kap, vm)
    nxt += NK_R - NK_L
    p(f"""s_mul_i32 s65, s{S_WAVE}, 7
    s_lshr_b32 s65, s65, 1
    v_bfe_u32 v{t0}, v{lane}, 1, 2
    v_add_u32 v{t0}, s65, v{t0}
    v_cmp_le_u32 vcc, 7, v{t0}
    v_cndmask_b32 v{t1}, 0, 1, vcc
    v_mul_u32_u24 v{t2}, 7, v{t1}
    v_sub_u32 v{t0}, v{t0}, v{t2}
    s_lshr_b32 s65, s63, 1
    s_and_b32 s73, s65, 3
    s_mul_i32 s73, s73, 7
    v_add_u32 v{t0}, s73, v{t0}
    s_lshr_b32 s65, s65, 2
    s_lshl_b32 s65, s65, 1
    v_add_u32 v{t1}, s65, v{t1}
    v_lshl_add_u32 v{t0}, v{t0}, 3, v{t1}
    s_and_b32 s65, s63, 1
    s_lshl_b32 s65, s65, 1
    v_and_b32 v{t1}, 1, v{lane}
    v_add_u32 v{t1}, s65, v{t1}
    v_lshl_add_u32 v{t0}, v{t0}, 2, v{t1}
    v_lshlrev_b32 v{vFo}, 6, v{t0}
    s_mov_b32 s73, 0
    s_mov_b32 s65, {G.HFLAG}
L_a_hpoll:
    buffer_load_dwordx2 {vr(FL,2)}, v{vFo}, s[4:7], s65 offen sc1
    s_waitcnt vmcnt(0)
    v_xor_b32 v{t0}, s{S_TAGA}, v{FL}
    v_xor_b32 v{t1}, s{S_TAGB}, v{FL+1}
    v_or_b32 v{t0}, v{t0}, v{t1}
    v_cmp_ne_u32 vcc, 0, v{t0}
    s_add_u32 s73, s73, 1
    s_cmp_eq_u64 vcc, 0
    s_cbranch_scc1 L_a_hok
    s_cmp_ge_u32 s73, {G.SPIN_MAX}
    s_cbranch_scc1 L_a_hok
    s_sleep 1
    s_branch L_a_hpoll
L_a_hok:""")
    vm.done = len(vm.ops)
    stamp(p, 5)
    p(f"""v_lshlrev_b32 v{vHo}, 4, v{lane}
    s_mul_i32 s74, s63, {2*112*1024}
    s_mul_i32 s65, s{S_WAVE}, {28*1024}
    s_add_u32 s74, s74, s65
    s_add_u32 s74, s74, {G.HB}
    s_add_u32 s75, s74, {112*1024}""")
    HD = 8
    def ld_h(kap):
        for nt in range(2):
            if kap % 4 == 0 and kap: p(f"s_add_u32 s{74+nt}, s{74+nt}, 4096")
            p(f"buffer_load_dwordx4 {vr(HBUF + (kap % HD)*8 + nt*4, 4)}, v{vHo}, s[4:7], s{74+nt} offen offset:{(kap%4)*1024} sc1")
            vm.issue(('h', kap))
    for kap in range(HD): ld_h(kap)
    p(f"""v_lshrrev_b32 v{t0}, 3, v{lane}
    v_lshlrev_b32 v{vSo}, 13, v{t0}
    v_and_b32 v{t0}, 7, v{lane}
    v_lshl_add_u32 v{vSo}, v{t0}, 4, v{vSo}
    s_lshl_b32 s76, s64, 19
    s_and_b32 s65, s{S_WAVE}, 1
    s_lshl_b32 s65, s65, 17
    s_add_u32 s76, s76, s65
    s_lshl_b32 s65, s63, 8
    s_add_u32 s76, s76, s65
    s_lshr_b32 s65, s{S_WAVE}, 1
    s_lshl_b32 s65, s65, 7
    s_add_u32 s76, s76, s65
    s_add_u32 s76, s76, {G.ST}""")
    def ld_s(dst):
        for i in range(4):
            off = (i >> 1) * 32 * 8192 + (i & 1) * 8 * 8192
            p(f"s_add_u32 s65, s76, {off}\n buffer_load_dwordx4 {vr(dst+4*i,4)}, v{vSo}, s[4:7], s65 offen sc1")
    def a2(md, nt): return ACC2 + (nt * 2 + md) * 16
    def wsrc(kap): return WR + kap * 8 if kap < NK_R else WF + (kap & 1) * 8
    for kap in range(28):
        if kap + 1 >= NK_R and kap + 1 < 28:
            vm.wait(('w2', kap + 1))
            rd_w2(kap + 1, wsrc(kap + 1))
        vm.wait(('h', kap))
        if kap >= NK_R:
            lg.wait(('w2r', kap))
            if nxt < 28:
                assert nxt % NK_L == kap % NK_L, (nxt, kap)
                dma_w2(nxt, vm); nxt += 1
        for nt in range(2):
            for md in range(2):
                cc = '0' if kap == 0 else vr(a2(md, nt), 16)
                p(f"v_mfma_f32_32x32x16_bf16 {vr(a2(md,nt),16)}, {vr(wsrc(kap)+md*4,4)}, {vr(HBUF + (kap % HD)*8 + nt*4, 4)}, {cc}")
        if kap + HD < 28: ld_h(kap + HD)
        if kap == 20:
            SG = WR
            ld_s(SG)
            for _ in range(4): vm.issue('s')
            p(f"""buffer_load_dwordx4 {vr(XE,4)}, v{vOo}, s[8:11], s72 offen
            buffer_load_dwordx4 {vr(XE+4,4)}, v{vOo}, s[8:11], s72 offen offset:16
            global_load_dwordx4 {vr(B2E,4)}, v{vB2o}, {sr(PTR(13),2)}
            global_load_dwordx4 {vr(B2E+4,4)}, v{vB2o}, {sr(PTR(13),2)} offset:16""")
            for _ in range(4): vm.issue('xe')
    stamp(p, 6)
    p(f"""v_lshlrev_b32 v{t0}, 4, v{lane}
    v_add_u32 v{t1}, s71, v{t0}""")
    for T in range(4):
        p(f"s_cmp_eq_u32 s{S_WAVE}, {T}\n s_cbranch_scc1 L_a_skipw{T}")
        for q in range(4): p(f"ds_write_b128 v{t1}, {vr(ACC2 + T*16 + 4*q, 4)} offset:{T*4096 + q*1024}")
        p(f"s_branch L_a_endw{T}\nL_a_skipw{T}:")
        OWN = HBUF
        for q in range(16): p(f"v_mov_b32 v{OWN+q}, v{ACC2 + T*16 + q}")
        p(f"L_a_endw{T}:")
    p(f"""s_mov_b32 s73, 0
L_a_spoll:
    s_waitcnt vmcnt(0)
    v_mov_b32 v{t2}, 0""")
    for i in range(4):
        p(f"""v_xor_b32 v{t0}, s{S_TAGA}, v{SG+4*i+2}
        v_xor_b32 v{t3}, s{S_TAGB}, v{SG+4*i+3}
        v_or3_b32 v{t2}, v{t2}, v{t0}, v{t3}""")
    p(f"""v_cmp_ne_u32 vcc, 0, v{t2}
    s_add_u32 s73, s73, 1
    s_cmp_eq_u64 vcc, 0
    s_cbranch_scc1 L_a_sok
    s_cmp_ge_u32 s73, {G.SPIN_MAX}
    s_cbranch_scc1 L_a_sok
    s_sleep 1""")
    ld_s(SG)
    p("s_branch L_a_spoll\nL_a_sok:")
    p(f"""s_lshl_b32 s65, s{S_WAVE}, 12
    s_add_u32 s65, s65, s71
    v_lshlrev_b32 v{t0}, 3, v{lane}
    v_add_u32 v{t0}, s65, v{t0}""")
    for i in range(4): p(f"ds_write_b64 v{t0}, {vr(SG+4*i,2)} offset:{i*512}")
    p(f"""v_lshrrev_b32 v{t2}, 5, v{lane}
    v_lshlrev_b32 v{t2}, 10, v{t2}
    v_bfe_u32 v{t3}, v{lane}, 2, 2
    v_lshl_add_u32 v{t2}, v{t3}, 6, v{t2}
    v_bfe_u32 v{t3}, v{lane}, 4, 1
    v_lshl_add_u32 v{t2}, v{t3}, 5, v{t2}
    v_and_b32 v{t3}, 3, v{lane}
    v_lshl_add_u32 v{t2}, v{t3}, 3, v{t2}
    v_add_u32 v{t2}, s65, v{t2}
    s_waitcnt lgkmcnt(0)
    s_barrier""")
    SV = WR + 16; PP = ACC2
    for q in range(4): p(f"ds_read_b64_tr_b16 {vr(SV+2*q,2)}, v{t2} offset:{q*256}")
    p(f"v_lshlrev_b32 v{t0}, 4, v{lane}\n s_lshl_b32 s73, s{S_WAVE}, 12")
    for k in range(1, 4):
        p(f"""s_xor_b32 s65, s{S_WAVE}, {k}
        s_mul_i32 s65, s65, {W2P}
        s_add_u32 s65, s65, s73
        v_add_u32 v{t1}, s65, v{t0}""")
        for q in range(4): p(f"ds_read_b128 {vr(PP + (k-1)*16 + 4*q, 4)}, v{t1} offset:{W2L + q*1024}")
    OWN = HBUF; TM = HBUF + 16; T2 = HBUF + 32; OUT = HBUF + 48
    for k in range(3):
        p(f"s_waitcnt lgkmcnt({8 - 4*k})")
        for q in range(8): p(f"v_pk_add_f32 {vr(OWN+2*q,2)}, {vr(OWN+2*q,2)}, {vr(PP+k*16+2*q,2)}")
    def unpack(dst, src, n):
        for q in range(n):
            p(f"v_lshlrev_b32 v{dst+2*q}, 16, v{src+q}\n v_and_b32 v{dst+2*q+1}, 0xffff0000, v{src+q}")
    def rnd(reg):
        for q in range(8): p(f"v_cvt_pk_bf16_f32 v{OUT+q}, v{reg+2*q}, v{reg+2*q+1}")
        unpack(reg, OUT, 8)
    rnd(OWN)
    unpack(TM, B2E, 8)
    for q in range(8): p(f"v_pk_add_f32 {vr(OWN+2*q,2)}, {vr(OWN+2*q,2)}, {vr(TM+2*q,2)}")
    rnd(OWN)
    for q in range(16): p(f"v_mul_f32 v{TM+q}, {f32(-G.LOG2E)}, v{OWN+q}")
    for q in range(16): p(f"v_exp_f32 v{TM+q}, v{TM+q}")
    for q in range(8): p(f"v_pk_add_f32 {vr(TM+2*q,2)}, {vr(TM+2*q,2)}, 1.0 op_sel_hi:[1,0]")
    for q in range(16): p(f"v_rcp_f32 v{TM+q}, v{TM+q}")
    for q in range(8): p(f"v_pk_mul_f32 {vr(OWN+2*q,2)}, {vr(OWN+2*q,2)}, {vr(TM+2*q,2)}")
    rnd(OWN)
    unpack(TM, SV, 8)
    for q in range(8): p(f"v_pk_mul_f32 {vr(OWN+2*q,2)}, {vr(OWN+2*q,2)}, {vr(TM+2*q,2)}")
    rnd(OWN)
    unpack(TM, XE, 8)
    for q in range(8): p(f"v_pk_add_f32 {vr(OWN+2*q,2)}, {vr(OWN+2*q,2)}, {vr(TM+2*q,2)}")
    for q in range(8): p(f"v_cvt_pk_bf16_f32 v{OUT+q}, v{OWN+2*q}, v{OWN+2*q+1}")
    p(f"""buffer_store_dwordx4 {vr(OUT,4)}, v{vOo}, s[56:59], s72 offen
    buffer_store_dwordx4 {vr(OUT+4,4)}, v{vOo}, s[56:59], s72 offen offset:16""")
    stamp(p, 7)
    G.stamps_out(p, 8, ACC2)
    p("s_endpgm")
    return V.hi_used
```

```python
import sys, math, struct
from asmlib import *

NAME = "recurrent_scan__ssm_conv_s4__mixer_channel_mlp__prompt"
GEN = 0; HFLAG = 0x1000; HFLAG1 = 0x10000; AB = 0x30000; XNT = 0x100000; ST = 0x600000; HB = 0xA00000
DBG = 0x2000000; TSB = 0x3000000
LDS_BYTES = 81920
SPIN_MAX = 200000

def f32(x): return '0x%08x' % struct.unpack('<I', struct.pack('<f', x))[0]
LOG2E = 1.4426950408889634

class Cfg:
    ts = False
    dumpK = False
    only = None
    fine = 0; gstart = 40; glo = 7; kpoll = 3; exact = 0; rot = 1; nkr = 8; nodma = 0; nobounce = 0; nogelu = 0; nobar = 0; cyc = 0
cfg = Cfg()

S_WAVE = 3
S_WS = 4
PTR = lambda i: 16 + 2 * i
S_TAGA, S_TAGB = 50, 51

def srd(p, s, ptr_idx, nbytes):
    p(f"""s_mov_b32 s{s}, s{PTR(ptr_idx)}
    s_mov_b32 s{s+1}, s{PTR(ptr_idx)+1}
    s_mov_b32 s{s+2}, {nbytes}
    s_mov_b32 s{s+3}, 0x20000""")

ts_count = [0]
def stamp(p, k):
    if cfg.ts: p(f"{'s_memtime' if cfg.cyc else 's_memrealtime'} s[{80+2*k}:{81+2*k}]")
def stamps_out(p, n, vt):
    if not cfg.ts: return
    p(f"""s_waitcnt lgkmcnt(0)
    v_cmp_eq_u32 vcc, 0, v0
    s_and_saveexec_b64 s[76:77], vcc
    s_lshl_b32 s78, s2, 4
    v_mov_b32 v{vt+4}, s78""")
    for k in range(n - 1):
        p(f"""v_mov_b32 v{vt}, s{80+2*k}
        v_mov_b32 v{vt+1}, s{81+2*k}
        v_mov_b32 v{vt+2}, s{82+2*k}
        v_mov_b32 v{vt+3}, s{83+2*k}
        s_mov_b32 s78, {TSB + k*0x10000}
        buffer_store_dwordx4 {vr(vt,4)}, v{vt+4}, s[4:7], s78 offen
        s_nop 2""")
    p("s_mov_b64 exec, s[76:77]")

def make_tags(p, vgen):
    p(f"""v_readfirstlane_b32 s{S_TAGA}, v{vgen}
    s_mul_i32 s{S_TAGA}, s{S_TAGA}, 0x9E3779B1
    s_add_u32 s{S_TAGA}, s{S_TAGA}, 0x7F4A7C15
    s_xor_b32 s{S_TAGB}, s{S_TAGA}, 0x5bd1e995""")

def reduce4(p, A1, A2, Z2):
    p(f"""v_permlane16_swap_b32 v{A1}, v{A1+1}
    v_permlane16_swap_b32 v{A2}, v{A2+1}
    v_add_f32 v{A1}, v{A1}, v{A1+1}
    v_add_f32 v{A2}, v{A2}, v{A2+1}
    v_permlane32_swap_b32 v{A1}, v{A2}
    v_add_f32 v{A1}, v{A1}, v{A2}
    v_add_f32_dpp v{A1}, v{A1}, v{A1} quad_perm:[1,0,3,2] row_mask:0xf bank_mask:0xf
    v_add_f32_dpp v{A1}, v{A1}, v{A1} quad_perm:[2,3,0,1] row_mask:0xf bank_mask:0xf
    v_add_f32_dpp v{A1}, v{A1}, v{A1} row_half_mirror row_mask:0xf bank_mask:0xf
    v_add_f32_dpp v{A1}, v{A1}, v{A1} row_mirror row_mask:0xf bank_mask:0xf
    v_mov_b32 v{Z2}, v{A1}
    v_permlane32_swap_b32 v{A1}, v{Z2}""")

XBL = 0; XCH = 4608
TT = 9216 + 16; TCH = 1344
KC = 12288; KCS = 4160; KCH = 8 * KCS
LNB = KC
PT = KC + 8192
PX = KC + 16384

def role_B(p, vgen):
    V = Regs('v', 4, 256)
    lane = 1
    a = V.alloc
    vL16 = a(); XA = a(4, 2); XB = a(4, 2); PR = a(6); vLd = a(); vDk = a(); t0 = a(); t1 = a(); t2 = a(); t3 = a()
    srd(p, 8, 0, 2048 * 1024)
    p(f"""s_lshl_b32 s61, s2, 3
    s_lshl_b32 s62, s{S_WAVE}, 1
    s_add_u32 s61, s61, s62
    s_lshl_b32 s62, s61, 10
    v_lshlrev_b32 v{vL16}, 4, v{lane}
    buffer_load_dwordx4 {vr(XA,4)}, v{vL16}, s[8:11], s62 offen
    buffer_load_dwordx4 {vr(XB,4)}, v{vL16}, s[8:11], s62 offen offset:1024
    s_lshr_b32 s63, s{S_WAVE}, 1
    s_lshl_b32 s60, s2, 1
    s_add_u32 s63, s63, s60
    s_lshl_b32 s60, s63, 8
    v_lshl_add_u32 v{t0}, v{lane}, 2, s60
    s_lshl_b32 s60, s63, 1
    v_mov_b32 v{t1}, s60""")
    for k in range(6):
        p(f"global_load_dword v{PR+k}, v{t0}, {sr(PTR(1+k),2)}")
    p(f"global_load_ushort v{vLd}, v{t1}, {sr(PTR(7),2)}")
    p(f"global_load_ushort v{vDk}, v{t1}, {sr(PTR(8),2)}")
    vi = a(); vg = a(); tB = a(2, 2); tA = a(6, 2)
    p(f"""v_and_b32 v{vi}, 15, v{lane}
    v_lshrrev_b32 v{vg}, 4, v{lane}
    v_lshlrev_b32 v{t0}, 4, v{vi}
    v_cvt_f32_u32 v{tB}, v{t0}
    v_cvt_f32_u32 v{tA}, v{vi}
    v_lshlrev_b32 v{t0}, 1, v{vi}
    v_add_u32 v{t0}, 256, v{t0}
    v_bfe_u32 v{t1}, v{vi}, 2, 1
    v_lshlrev_b32 v{t1}, 8, v{t1}
    v_and_b32 v{t2}, 3, v{vi}
    v_lshl_add_u32 v{t1}, v{t2}, 2, v{t1}
    v_add_u32 v{t1}, 512, v{t1}
    v_cmp_gt_u32 vcc, 8, v{vi}
    v_cndmask_b32 v{t0}, v{t1}, v{t0}, vcc
    v_cvt_f32_u32 v{tA+2}, v{t0}
    v_lshrrev_b32 v{t0}, 1, v{vi}
    v_lshlrev_b32 v{t0}, 8, v{t0}
    v_and_b32 v{t1}, 1, v{vi}
    v_lshl_add_u32 v{t0}, v{t1}, 3, v{t0}
    v_add_u32 v{t0}, 1024, v{t0}
    v_min_u32 v{t0}, 2048, v{t0}
    v_cvt_f32_u32 v{tA+4}, v{t0}""")
    GA = a(16)
    p(f"v_lshlrev_b32 v{t3}, 3, v0")
    for e in range(0, 16, 2):
        for h in range(2):
            d = 7 - (e + h)
            p(f"v_add_u32 v{GA+e+h}, {d}, v{t3}")
            p(f"v_max_i32 v{t0+h}, 128, v{GA+e+h}")
            p(f"v_cvt_f32_i32 v{t0+h}, v{t0+h}")
        p(f"""v_cvt_pk_bf16_f32 v{t0}, v{t0}, v{t1}
        v_lshrrev_b32 v{t1}, 16, v{t0}
        v_and_b32 v{t0}, 0xffff, v{t0}""")
        for h in range(2):
            p(f"v_subrev_u32 v{t0+h}, 0x4280, v{t0+h}")
            p(f"v_min_i32 v{GA+e+h}, v{t0+h}, v{GA+e+h}")
            p(f"v_lshlrev_b32 v{GA+e+h}, 1, v{GA+e+h}")
            p(f"v_add_u32 v{GA+e+h}, {TT}, v{GA+e+h}")
    P = a(16, 2); D = a(16, 2); A1 = a(2, 2); A2 = a(2, 2); B1 = a(2, 2); B2 = a(2, 2); Z2 = a(); vC0 = a(); vM = a(); vR = a()
    p("s_waitcnt vmcnt(8)")
    stamp(p, 1)
    for q in range(4):
        p(f"""v_lshlrev_b32 v{P+4*q}, 16, v{XA+q}
        v_lshlrev_b32 v{P+4*q+1}, 16, v{XB+q}
        v_and_b32 v{P+4*q+2}, 0xffff0000, v{XA+q}
        v_and_b32 v{P+4*q+3}, 0xffff0000, v{XB+q}""")
    p(f"""v_readfirstlane_b32 s64, v{P}
    v_readfirstlane_b32 s65, v{P+1}
    s_mov_b32 s70, 0xffff0000
    s_mov_b32 s71, 0xffff0000""")
    make_tags(p, vgen)
    for c in range(8):
        p(f"v_pk_add_f32 {vr(D+2*c,2)}, {vr(P+2*c,2)}, s[64:65] neg_lo:[0,1] neg_hi:[0,1]")
    def sums(X):
        p(f"""v_pk_add_f32 {vr(A1,2)}, {vr(X,2)}, {vr(X+2,2)}
        v_pk_add_f32 {vr(B1,2)}, {vr(X+4,2)}, {vr(X+6,2)}
        v_pk_mul_f32 {vr(A2,2)}, {vr(X,2)}, {vr(X,2)}
        v_pk_mul_f32 {vr(B2,2)}, {vr(X+2,2)}, {vr(X+2,2)}""")
        for c in range(4, 8):
            acc = A1 if c % 2 == 0 else B1
            p(f"v_pk_add_f32 {vr(acc,2)}, {vr(acc,2)}, {vr(X+2*c,2)}")
        for c in range(2, 8):
            acc = A2 if c % 2 == 0 else B2
            p(f"v_pk_fma_f32 {vr(acc,2)}, {vr(X+2*c,2)}, {vr(X+2*c,2)}, {vr(acc,2)}")
        p(f"""v_pk_add_f32 {vr(A1,2)}, {vr(A1,2)}, {vr(B1,2)}
        v_pk_add_f32 {vr(A2,2)}, {vr(A2,2)}, {vr(B2,2)}""")
    sums(D)
    p(f"""v_mov_b32 v{vC0}, s64
    s_mov_b64 exec, s[70:71]
    v_mov_b32 v{vC0}, s65
    s_mov_b64 exec, -1""")
    reduce4(p, A1, A2, Z2)
    def stats(mean_add, vm, vsd_r):
        p(f"""v_mul_f32 v{A1}, {f32(1/512)}, v{A1}
        v_mul_f32 v{Z2}, {f32(1/512)}, v{Z2}
        v_fma_f32 v{Z2}, -v{A1}, v{A1}, v{Z2}
        v_max_f32 v{Z2}, 0, v{Z2}""")
        if mean_add is not None: p(f"v_add_f32 v{A1}, v{mean_add}, v{A1}")
        p(f"""v_cvt_pk_bf16_f32 v{t0}, v{A1}, v{Z2}
        v_lshlrev_b32 v{vm}, 16, v{t0}
        v_and_b32 v{t0}, 0xffff0000, v{t0}
        v_add_f32 v{t0}, {f32(1e-5)}, v{t0}
        v_cvt_pk_bf16_f32 v{t0}, v{t0}, v{t0}
        v_lshlrev_b32 v{t0}, 16, v{t0}
        v_sqrt_f32 v{t0}, v{t0}
        v_cvt_pk_bf16_f32 v{t0}, v{t0}, v{t0}
        v_lshlrev_b32 v{t0}, 16, v{t0}
        v_rcp_f32 v{vsd_r}, v{t0}""")
    stats(vC0, vM, vR)
    p(f"""v_readlane_b32 s66, v{vM}, 0
    v_readlane_b32 s67, v{vM}, 16
    v_readlane_b32 s68, v{vR}, 0
    v_readlane_b32 s69, v{vR}, 16""")
    F = a(8, 2); K_ = a(8)
    for c in range(8): p(f"v_pk_add_f32 {vr(D+2*c,2)}, {vr(P+2*c,2)}, s[66:67] neg_lo:[0,1] neg_hi:[0,1]")
    for c in range(8): p(f"v_cvt_pk_bf16_f32 v{K_+c}, v{D+2*c}, v{D+2*c+1}")
    for c in range(8):
        p(f"v_lshlrev_b32 v{D+2*c}, 16, v{K_+c}\n v_and_b32 v{D+2*c+1}, 0xffff0000, v{K_+c}")
    for c in range(8): p(f"v_pk_mul_f32 {vr(D+2*c,2)}, {vr(D+2*c,2)}, s[68:69]")
    for c in range(8): p(f"v_cvt_pk_bf16_f32 v{K_+c}, v{D+2*c}, v{D+2*c+1}")
    for c in range(8):
        p(f"v_lshlrev_b32 v{D+2*c}, 16, v{K_+c}\n v_and_b32 v{D+2*c+1}, 0xffff0000, v{K_+c}")
    for c in range(8): p(f"v_cvt_pkrtz_f16_f32 v{F+c}, v{D+2*c}, v{D+2*c+1}")
    p(f"""s_lshl_b32 s60, s{S_WAVE}, 11
    v_lshl_add_u32 v{t1}, v{lane}, 5, s60
    ds_write_b128 v{t1}, {vr(F,4)} offset:{LNB}
    ds_write_b128 v{t1}, {vr(F+4,4)} offset:{LNB+16}""")
    sums(D)
    reduce4(p, A1, A2, Z2)
    G = a(16, 2)
    vM2 = a(); vR2 = a()
    stats(None, vM2, vR2)
    p(f"""v_mul_f32 v{G}, v{vR}, v{vR2}
    v_fma_f32 v{t0}, v{vM}, v{vR}, v{vM2}
    v_mul_f32 v{G+1}, v{t0}, -v{vR2}
    v_mov_b32 v{G+2}, s{S_TAGA}
    v_mov_b32 v{G+3}, s{S_TAGB}
    v_lshlrev_b32 v{t0}, 4, v{vg}
    s_lshl_b32 s60, s61, 4
    s_add_u32 s60, s60, {AB}
    s_mov_b64 exec, 0x10001
    buffer_store_dwordx4 {vr(G,4)}, v{t0}, s[4:7], s60 offen sc1
    s_mov_b64 exec, -1
    s_waitcnt lgkmcnt(0)
    s_barrier""")
    p(f"""v_lshrrev_b32 v{t0}, 1, v0
    v_lshlrev_b32 v{t0}, 2, v{t0}
    v_and_b32 v{t1}, 1, v0
    v_lshl_add_u32 v{t0}, v{t1}, 12, v{t0}""")
    for i in range(4):
        p(f"ds_read2st64_b32 {vr(G+4*i,2)}, v{t0} offset0:{(LNB + i*512)//256} offset1:{(LNB + i*512)//256 + 8}")
        if i: p(f"v_mov_b32 v{G+4*i+2}, s{S_TAGA}\n v_mov_b32 v{G+4*i+3}, s{S_TAGB}")
    p(f"""v_lshlrev_b32 v{t0}, 4, v0
    s_lshl_b32 s60, s2, 14
    s_add_u32 s60, s60, {XNT}""")
    for i in range(4):
        p(f"s_waitcnt lgkmcnt({3-i})")
        p(f"buffer_store_dwordx4 {vr(G+4*i,4)}, v{t0}, s[4:7], s60 offen sc1")
        if i < 3: p("s_add_u32 s60, s60, 4096")
    stamp(p, 2)
    for r, n in ((P, 16), (D, 16), (A1, 2), (A2, 2), (B1, 2), (B2, 2), (Z2, 1), (vC0, 1), (vM, 1), (vR, 1), (F, 8), (K_, 8), (vM2, 1), (vR2, 1), (XA, 4), (XB, 4)): V.free(r, n)
    p("s_waitcnt vmcnt(5)")
    U = a(12, 2); E = a(8, 2); vdt = a()
    p(f"""v_lshlrev_b32 v{vdt}, 16, v{vLd}
    v_mul_f32 v{vdt}, {f32(LOG2E)}, v{vdt}
    v_exp_f32 v{vdt}, v{vdt}
    v_lshlrev_b32 v{vDk}, 16, v{vDk}
    v_cvt_pk_bf16_f32 v{vdt}, v{vdt}, v{vdt}
    v_lshlrev_b32 v{vdt}, 16, v{vdt}""")
    for k in range(6):
        p(f"v_lshlrev_b32 v{U+2*k}, 16, v{PR+k}\n v_and_b32 v{U+2*k+1}, 0xffff0000, v{PR+k}")
    for k in range(4):
        for h in range(2): p(f"v_mul_f32 v{U+2*k+h}, v{vdt}, v{U+2*k+h}")
    for h in range(2):
        p(f"""v_mul_f32 v{E+4*h}, {f32(LOG2E)}, v{U+h}
        v_mul_f32 v{E+4*h+1}, {f32(1/(2*math.pi))}, v{U+2+h}
        v_mul_f32 v{E+4*h+2}, v{U+8+h}, v{U+4+h}
        v_fma_f32 v{E+4*h+2}, -v{U+10+h}, v{U+6+h}, v{E+4*h+2}
        v_mul_f32 v{E+4*h+3}, v{U+8+h}, v{U+6+h}
        v_fma_f32 v{E+4*h+3}, v{U+10+h}, v{U+4+h}, v{E+4*h+3}""")
    p(f"""v_max_f32 v{t0}, |v{E+2}|, |v{E+3}|
    v_max3_f32 v{t0}, |v{E+6}|, |v{E+7}|, v{t0}
    v_max_f32_dpp v{t0}, v{t0}, v{t0} quad_perm:[1,0,3,2] row_mask:0xf bank_mask:0xf
    v_max_f32_dpp v{t0}, v{t0}, v{t0} quad_perm:[2,3,0,1] row_mask:0xf bank_mask:0xf
    v_max_f32_dpp v{t0}, v{t0}, v{t0} row_half_mirror row_mask:0xf bank_mask:0xf
    v_max_f32_dpp v{t0}, v{t0}, v{t0} row_mirror row_mask:0xf bank_mask:0xf
    v_max_f32_dpp v{t0}, v{t0}, v{t0} row_bcast:15 row_mask:0xa bank_mask:0xf
    v_max_f32_dpp v{t0}, v{t0}, v{t0} row_bcast:31 row_mask:0xc bank_mask:0xf
    v_frexp_exp_i32_f32 v{t0}, v{t0}
    v_readlane_b32 s72, v{t0}, 63
    s_sub_u32 s73, 0, s72
    s_and_b32 s60, s{S_WAVE}, 1
    s_cmp_eq_u32 s60, 1
    s_cselect_b64 vcc, -1, 0""")
    for k in range(4): p(f"v_cndmask_b32 v{E+k}, v{E+k}, v{E+4+k}, vcc")
    p(f"""v_ldexp_f32 v{E+2}, v{E+2}, s73
    v_ldexp_f32 v{E+3}, v{E+3}, s73
    s_lshl_b32 s60, s{S_WAVE}, 10
    v_add_u32 v{t1}, s60, v{vL16}
    ds_write_b128 v{t1}, {vr(E,4)} offset:{PT}
    v_lshl_add_u32 v{t1}, v{vg}, 6, s60
    s_waitcnt lgkmcnt(0)""")
    V.free(U, 12); V.free(E, 8); V.free(PR, 6)
    ACC = a(12, 4); Q = a(32, 4); FR = a(32, 4)
    W_ = a(24, 2)
    def rdq(kap):
        for q in range(4): p(f"ds_read_b128 {vr(Q + (kap&1)*16 + 4*q, 4)}, v{t1} offset:{PT + kap*256 + q*16}")
    rdq(0)
    for kap in range(4):
        if kap < 3: rdq(kap + 1); p("s_waitcnt lgkmcnt(4)")
        else: p("s_waitcnt lgkmcnt(0)")
        fr = FR + (kap & 1) * 16
        for q in range(4):
            pq = Q + (kap & 1) * 16 + 4 * q
            ts_ = [tA, tA + 2, tA + 4, tB]
            for k in range(4):
                w = W_ + 6 * k
                p(f"v_pk_mul_f32 {vr(w,2)}, {vr(pq,2)}, {vr(ts_[k],2)} op_sel_hi:[1,0]")
            for k in range(4): p(f"v_fract_f32 v{W_+6*k+1}, v{W_+6*k+1}")
            for k in range(4):
                w = W_ + 6 * k
                p(f"v_exp_f32 v{w}, v{w}\n v_cos_f32 v{w+2}, v{w+1}\n v_sin_f32 v{w+3}, v{w+1}")
            for k in range(4):
                w = W_ + 6 * k
                p(f"v_pk_mul_f32 {vr(w+2,2)}, {vr(w+2,2)}, {vr(w,2)} op_sel_hi:[1,0]")
            for k in range(3):
                w = W_ + 6 * k
                p(f"v_cvt_pk_f16_f32 v{fr+4*k+q}, v{w+2}, v{w+3}")
            w = W_ + 18
            p(f"""v_mul_f32 v{w+4}, v{pq+2}, v{w+2}
            v_mul_f32 v{w+5}, v{pq+2}, v{w+3}
            v_fma_f32 v{w+4}, -v{pq+3}, v{w+3}, v{w+4}
            v_fma_f32 v{w+5}, v{pq+3}, v{w+2}, v{w+5}
            v_cvt_pk_f16_f32 v{fr+12+q}, v{w+4}, -v{w+5}""")
        for k in range(3):
            c = vr(ACC + 4 * k, 4) if kap else '0'
            p(f"v_mfma_f32_16x16x32_f16 {vr(ACC+4*k,4)}, {vr(fr+4*k,4)}, {vr(fr+12,4)}, {c}")
    V.free(Q, 32); V.free(FR, 32); V.free(W_, 24)
    stamp(p, 3)
    XG = a(16, 4); vXo = a()
    p(f"""v_lshrrev_b32 v{vXo}, 2, v{lane}
    v_lshlrev_b32 v{vXo}, 14, v{vXo}
    v_and_b32 v{t0}, 3, v{lane}
    v_lshl_add_u32 v{vXo}, v{t0}, 4, v{vXo}
    s_lshl_b32 s74, s{S_WAVE}, 20
    s_lshl_b32 s60, s2, 6
    s_add_u32 s74, s74, s60
    s_add_u32 s74, s74, {XNT}""")
    def gather():
        for i in range(4):
            p(f"s_add_u32 s60, s74, {i << 18}")
            p(f"buffer_load_dwordx4 {vr(XG+4*i,4)}, v{vXo}, s[4:7], s60 offen sc1")
    gather()
    p(f"""s_lshr_b32 s60, s{S_WAVE}, 1
    s_mul_i32 s75, s60, 3072
    v_add_u32 v{t1}, s75, v{vL16}
    s_and_b32 s62, s{S_WAVE}, 1
    s_cmp_eq_u32 s62, 0
    s_cbranch_scc1 L_b_even1""")
    for k in range(3): p(f"ds_write_b128 v{t1}, {vr(ACC+4*k,4)} offset:{PX + k*1024}")
    ZR = a(4, 2)
    p(f"""v_mov_b32 v{ZR}, 0
    v_mov_b32 v{ZR+1}, 0
    s_mul_i32 s75, s60, {XCH}
    v_lshl_add_u32 v{t0}, v{lane}, 3, s75
    ds_write_b64 v{t0}, {vr(ZR,2)} offset:{XBL}
    s_mul_i32 s75, s60, {TCH}
    v_and_b32 v{t0}, 3, v{lane}
    v_lshl_add_u32 v{t0}, v{t0}, 2, s75
    ds_write_b32 v{t0}, v{ZR} offset:{TT-16}
    s_waitcnt lgkmcnt(0)
L_b_even1:
    s_barrier
    s_cbranch_scc0 L_b_odd2""")
    O = a(12, 4)
    for k in range(3): p(f"ds_read_b128 {vr(O+4*k,4)}, v{t1} offset:{PX + k*1024}")
    a0 = a(); a1 = a(); a2 = a()
    p(f"""s_mul_i32 s75, s60, {TCH}
    v_lshlrev_b32 v{a0}, 5, v{vi}
    v_lshl_add_u32 v{a0}, v{vg}, 3, v{a0}
    v_add_u32 v{a0}, s75, v{a0}
    v_lshlrev_b32 v{a1}, 4, v{vi}
    v_lshl_add_u32 v{a1}, v{vg}, 3, v{a1}
    v_add_u32 v{a1}, 512, v{a1}
    v_lshlrev_b32 v{t0}, 3, v{vi}
    v_lshl_add_u32 v{t0}, v{vg}, 7, v{t0}
    v_add_u32 v{t0}, {768-256}, v{t0}
    v_cmp_gt_u32 vcc, 2, v{vg}
    v_cndmask_b32 v{a1}, v{t0}, v{a1}, vcc
    v_add_u32 v{a1}, s75, v{a1}
    v_lshlrev_b32 v{a2}, 2, v{vi}
    v_lshl_add_u32 v{a2}, v{vg}, 7, v{a2}
    v_add_u32 v{a2}, s75, v{a2}
    s_waitcnt lgkmcnt(0)""")
    for k in range(12): p(f"v_add_f32 v{ACC+k}, v{ACC+k}, v{O+k}")
    for k in range(6): p(f"v_cvt_pk_f16_f32 v{O+k}, v{ACC+2*k}, v{ACC+2*k+1}")
    p(f"""ds_write_b64 v{a0}, {vr(O,2)} offset:{TT}
    ds_write_b64 v{a1}, {vr(O+2,2)} offset:{TT}
    s_mov_b32 s76, -1
    s_mov_b32 s77, 1
    s_mov_b64 exec, s[76:77]
    ds_write_b32 v{a2}, v{O+4} offset:{TT+1024}
    s_mov_b32 s77, 0
    s_mov_b64 exec, s[76:77]
    ds_write_b32 v{a2}, v{O+5} offset:{TT+1024+64}
    s_mov_b64 exec, -1
    s_waitcnt lgkmcnt(0)
L_b_odd2:
    s_barrier""")
    for r in (a0, a1, a2): V.free(r)
    V.free(O, 12); V.free(ACC, 12)
    vKW = a(2)
    p(f"v_lshlrev_b32 v{vKW}, 4, v0\n v_add_u32 v{vKW+1}, {KCH}, v{vKW}")
    W0 = a(8, 2); W1 = a(9, 2); S0 = a(8, 2); S1 = a(9, 2); EL = [a(15), a(15)]
    for ch in range(2):
        for e in range(15):
            p(f"ds_read_u16 v{EL[ch] + e}, v{GA+e} offset:{ch*TCH}")
    for ch in range(2):
        el = EL[ch]
        p(f"s_waitcnt lgkmcnt({15 if ch == 0 else 8})")
        for q in range(7):
            p(f"v_lshl_or_b32 v{W0+q}, v{el+2*q+1}, 16, v{el+2*q}")
            p(f"v_lshl_or_b32 v{S0+q}, v{el+2*q+2}, 16, v{el+2*q+1}")
        for q in range(1, 7):
            p(f"v_lshl_or_b32 v{W1+1+q}, v{el+2*q+1}, 16, v{el+2*q}")
            p(f"v_lshl_or_b32 v{S1+1+q}, v{el+2*q+2}, 16, v{el+2*q+1}")
        for s_ in range(8):
            if s_ & 1: o = (7 - s_) // 2; e_, o_ = W0, W1
            else: o = (6 - s_) // 2; e_, o_ = S0, S1
            src = e_ + o if o % 2 == 0 else o_ + 1 + o
            p(f"ds_write_b128 v{vKW+ch}, {vr(src,4)} offset:{KC + s_*KCS + 16}")
    p(f"""v_mov_b32 v{ZR}, 0
    v_mov_b32 v{ZR+1}, 0
    v_mov_b32 v{ZR+2}, 0
    v_mov_b32 v{ZR+3}, 0
    v_mul_u32_u24 v{t0}, {KCS}, v{vi}
    ds_write_b128 v{t0}, {vr(ZR,4)} offset:{KC}""")
    for r, n in ((W0, 8), (W1, 9), (S0, 8), (S1, 9), (GA, 16), (EL[0], 15), (EL[1], 15)): V.free(r, n)
    stamp(p, 4)
    p(f"""s_mov_b32 s62, 0
L_b_poll:
    s_waitcnt vmcnt(0)
    v_xor_b32 v{t0}, s{S_TAGA}, v{XG+2}
    v_xor_b32 v{t1}, s{S_TAGB}, v{XG+3}
    v_or_b32 v{t0}, v{t0}, v{t1}""")
    for i in range(1, 4):
        p(f"""v_xor_b32 v{t1}, s{S_TAGA}, v{XG+4*i+2}
        v_xor_b32 v{t2}, s{S_TAGB}, v{XG+4*i+3}
        v_or3_b32 v{t0}, v{t0}, v{t1}, v{t2}""")
    p(f"""v_cmp_ne_u32 vcc, 0, v{t0}
    s_add_u32 s62, s62, 1
    s_cmp_eq_u64 vcc, 0
    s_cbranch_scc1 L_b_got
    s_cmp_ge_u32 s62, {SPIN_MAX}
    s_cbranch_scc1 L_b_got
    s_sleep 1""")
    gather()
    p("s_branch L_b_poll\nL_b_got:")
    p(f"""v_lshrrev_b32 v{t0}, 2, v{lane}
    v_lshlrev_b32 v{t0}, 4, v{t0}
    v_and_b32 v{t1}, 1, v{lane}
    v_lshl_add_u32 v{t0}, v{t1}, 3, v{t0}
    v_bfe_u32 v{t1}, v{lane}, 1, 1
    v_mul_u32_u24 v{t1}, {XCH}, v{t1}
    s_lshl_b32 s60, s{S_WAVE}, 10
    v_add3_u32 v{t0}, v{t0}, v{t1}, s60""")
    for i in range(4): p(f"ds_write_b64 v{t0}, {vr(XG+4*i,2)} offset:{XBL + 512 + i*256}")
    V.free(XG, 16)
    vA = a(); vB = a()
    p(f"""s_lshr_b32 s60, s{S_WAVE}, 1
    s_and_b32 s62, s{S_WAVE}, 1
    s_lshl_b32 s62, s62, 8
    v_and_b32 v{vA}, 7, v{vi}
    v_mul_u32_u24 v{vA}, {KCS}, v{vA}
    v_lshrrev_b32 v{t0}, 3, v{vi}
    v_sub_u32 v{t0}, v{t0}, v{vg}
    v_add_u32 v{t0}, 3, v{t0}
    v_lshl_add_u32 v{vA}, v{t0}, 4, v{vA}
    s_mul_i32 s75, s60, {KCH}
    s_add_u32 s75, s75, s62
    v_add_u32 v{vA}, s75, v{vA}
    v_lshlrev_b32 v{vB}, 5, v{vi}
    v_lshl_add_u32 v{vB}, v{vg}, 4, v{vB}
    s_mul_i32 s75, s60, {XCH}
    s_sub_u32 s75, s75, s62
    s_add_u32 s75, s75, {XBL + 480 - 192}
    v_add_u32 v{vB}, s75, v{vB}
    s_waitcnt lgkmcnt(0)
    s_barrier""")
    stamp(p, 5)
    if cfg.dumpK:
        Dm = a(4, 4)
        for ch in range(2):
            p(f"""ds_read_b128 {vr(Dm,4)}, v{vKW+ch} offset:{KC + 7*KCS + 16}
            s_lshl_b32 s60, s2, 13
            s_add_u32 s60, s60, {DBG + ch*4096}
            s_waitcnt lgkmcnt(0)
            buffer_store_dwordx4 {vr(Dm,4)}, v{vKW}, s[4:7], s60 offen
            s_waitcnt vmcnt(0)""")
        p(f"""v_mov_b32 v{Dm}, s72
        s_lshl_b32 s60, s63, 2
        s_add_u32 s60, s60, {DBG + 0x400000}
        v_mov_b32 v{Dm+1}, 0
        buffer_store_dword v{Dm}, v{Dm+1}, s[4:7], s60 offen
        s_waitcnt vmcnt(0)""")
        V.free(Dm, 4)
    CA = a(32, 4); FA = [a(32, 4), a(32, 4)]; FB = [a(32, 4), a(32, 4)]
    def rd_res(rr):
        bsel = rr & 1
        for k in range(8):
            p(f"ds_read_b128 {vr(FA[bsel]+4*k,4)}, v{vA} offset:{KC + rr*64 + k*512}")
            p(f"ds_read_b128 {vr(FB[bsel]+4*k,4)}, v{vB} offset:{192 - rr*64 + k*512}")
    rd_res(0)
    for rr in range(4):
        bsel = rr & 1
        pairs = sorted([(aa, bb) for aa in range(8) for bb in range(8 - aa)], key=lambda t: (max(t), t[0] + t[1]))
        nxt = []
        if rr < 3:
            nb = (rr + 1) & 1
            for k in range(8):
                nxt.append(f"ds_read_b128 {vr(FA[nb]+4*k,4)}, v{vA} offset:{KC + (rr+1)*64 + k*512}")
                nxt.append(f"ds_read_b128 {vr(FB[nb]+4*k,4)}, v{vB} offset:{192 - (rr+1)*64 + k*512}")
        have = -1; issued = 0
        for n_, (aa, bb) in enumerate(pairs):
            m_ = max(aa, bb)
            if m_ > have:
                outstanding = 16 - 2 * (m_ + 1) + issued
                p(f"s_waitcnt lgkmcnt({min(outstanding, 15)})")
                have = m_
            J = aa + bb
            first = (rr == 0 and (aa, bb) == min((t for t in pairs if t[0] + t[1] == J), key=lambda t: pairs.index(t)))
            c = '0' if first else vr(CA + 4 * J, 4)
            p(f"v_mfma_f32_16x16x32_f16 {vr(CA+4*J,4)}, {vr(FA[bsel]+4*aa,4)}, {vr(FB[bsel]+4*bb,4)}, {c}")
            if have == 7 or True:
                if have == 7 and nxt:
                    for x in nxt: p(x)
                    nxt = []; issued = 16
    stamp(p, 6)
    for r in FA + FB: V.free(r, 32)
    p(f"""s_barrier
    s_lshl_b32 s60, s{S_WAVE}, 12
    v_add_u32 v{t1}, s60, v{vL16}
    s_xor_b32 s60, s60, 4096
    v_add_u32 v{t2}, s60, v{vL16}
    s_and_b32 s62, s{S_WAVE}, 1
    s_cmp_eq_u32 s62, 0
    s_cbranch_scc1 L_b_e0""")
    for k in range(4): p(f"ds_write_b128 v{t1}, {vr(CA+4*k,4)} offset:{KC+k*1024}")
    for k in range(16): p(f"v_mov_b32 v{CA+k}, v{CA+16+k}")
    p("s_branch L_b_e1\nL_b_e0:")
    for k in range(4): p(f"ds_write_b128 v{t1}, {vr(CA+16+4*k,4)} offset:{KC+k*1024}")
    p("L_b_e1:")
    XN = a(8, 2); O = CA + 16
    p(f"""s_lshr_b32 s60, s{S_WAVE}, 1
    s_mul_i32 s75, s60, {XCH}
    s_lshl_b32 s62, s62, 11
    s_add_u32 s75, s75, s62
    v_lshlrev_b32 v{t0}, 5, v{vi}
    v_lshl_add_u32 v{t0}, v{vg}, 3, v{t0}
    v_add_u32 v{t0}, s75, v{t0}""")
    for k in range(4): p(f"ds_read_b64 {vr(XN+2*k,2)}, v{t0} offset:{XBL + 512 + k*512}")
    p("s_waitcnt lgkmcnt(0)\n s_barrier")
    for k in range(4): p(f"ds_read_b128 {vr(O+4*k,4)}, v{t2} offset:{KC+k*1024}")
    p(f"""v_lshlrev_b32 v{t3}, 6, v{vi}
    v_lshl_add_u32 v{t3}, v{vg}, 4, v{t3}
    s_lshl_b32 s60, s63, 13
    s_lshl_b32 s62, s62, 1
    s_add_u32 s60, s60, s62
    s_add_u32 s60, s60, {ST}""")
    Y = a(4, 2); Xf = a(4, 2); GG = [a(4, 2), a(4, 2)]
    for k in range(4):
        g_ = GG[k & 1]
        p(f"s_waitcnt lgkmcnt({3-k})")
        for r in range(4):
            p(f"v_add_f32 v{Y+r}, v{CA+4*k+r}, v{O+4*k+r}")
            p(f"v_ldexp_f32 v{Y+r}, v{Y+r}, s72")
        for h in range(2):
            p(f"""v_cvt_f32_f16 v{Xf+2*h}, v{XN+2*k+h}
            v_cvt_f32_f16_sdwa v{Xf+2*h+1}, v{XN+2*k+h} dst_sel:DWORD dst_unused:UNUSED_PAD src0_sel:WORD_1""")
        for r in range(4): p(f"v_mul_f32 v{Xf+r}, v{Xf+r}, v{vDk}")
        for h in range(2):
            p(f"""v_cvt_pk_bf16_f32 v{t0}, v{Y+2*h}, v{Y+2*h+1}
            v_cvt_pk_bf16_f32 v{t1}, v{Xf+2*h}, v{Xf+2*h+1}
            v_lshlrev_b32 v{Y+2*h}, 16, v{t0}
            v_and_b32 v{Y+2*h+1}, 0xffff0000, v{t0}
            v_lshlrev_b32 v{Xf+2*h}, 16, v{t1}
            v_and_b32 v{Xf+2*h+1}, 0xffff0000, v{t1}
            v_pk_add_f32 {vr(Y+2*h,2)}, {vr(Y+2*h,2)}, {vr(Xf+2*h,2)}
            v_cvt_pk_bf16_f32 v{g_+h}, v{Y+2*h}, v{Y+2*h+1}""")
        if k < 2: p(f"v_mov_b32 v{g_+2}, s{S_TAGA}\n v_mov_b32 v{g_+3}, s{S_TAGB}")
        p(f"buffer_store_dwordx4 {vr(g_,4)}, v{t3}, s[4:7], s60 offen offset:{k*1024} sc1")
    stamp(p, 7)
    p(f"""s_or_b32 s60, s2, s{S_WAVE}
    s_cmp_lg_u32 s60, 0
    s_cbranch_scc1 L_b_done""")
    if cfg.only != 'B':
        FL = a(8, 2)
        p(f"""v_lshlrev_b32 v{t3}, 8, v{lane}
        s_mov_b32 s62, 0
L_b_gpoll:""")
        for i in range(4):
            p(f"s_mov_b32 s60, {HFLAG + i*16384}\n buffer_load_dwordx2 {vr(FL+2*i,2)}, v{t3}, s[4:7], s60 offen sc1")
        p(f"s_waitcnt vmcnt(0)\n v_mov_b32 v{t0}, 0")
        for i in range(4):
            p(f"""v_xor_b32 v{t1}, s{S_TAGA}, v{FL+2*i}
            v_xor_b32 v{t2}, s{S_TAGB}, v{FL+2*i+1}
            v_or3_b32 v{t0}, v{t0}, v{t1}, v{t2}""")
        p(f"""v_cmp_ne_u32 vcc, 0, v{t0}
        s_add_u32 s62, s62, 1
        s_cmp_eq_u64 vcc, 0
        s_cbranch_scc1 L_b_gok
        s_cmp_ge_u32 s62, {SPIN_MAX}
        s_cbranch_scc1 L_b_gok
        s_sleep 4
        s_branch L_b_gpoll
L_b_gok:""")
    p(f"""v_mov_b32 v{t0}, s{S_TAGA}
    v_mov_b32 v{t1}, 0
    s_mov_b64 exec, 1
    buffer_store_dword v{t0}, v{t1}, s[4:7], 0 offen offset:{GEN}
    s_mov_b64 exec, -1
L_b_done:""")
    stamps_out(p, 8, CA)
    p("s_endpgm")
    return V.hi_used

def build():
    p = Prog()
    name = NAME + "_kernel"
    p(f""".globl {name}
.p2align 8
.type {name},@function
{name}:
    s_cmp_ge_u32 s2, 512
    s_cbranch_scc1 L_exit
    s_load_dwordx16 s[16:31], s[0:1], 0
    s_load_dwordx16 s[32:47], s[0:1], 64
    s_load_dwordx2 s[48:49], s[0:1], 128""")
    stamp(p, 0)
    p(f"""v_lshrrev_b32 v1, 6, v0
    v_readfirstlane_b32 s{S_WAVE}, v1
    v_and_b32 v1, 63, v0
    v_mov_b32 v3, 0
    s_waitcnt lgkmcnt(0)
    s_mov_b32 s4, s48
    s_mov_b32 s5, s49
    s_mov_b32 s6, 0x10000000
    s_mov_b32 s7, 0x20000
    buffer_load_dword v2, v3, s[4:7], 0 offen offset:{GEN} sc1
    s_cmp_ge_u32 s2, 256
    s_cbranch_scc1 L_role_A""")
    if cfg.only == 'A':
        p("s_endpgm"); hb = 0
    else:
        hb = role_B(p, 2)
    p("L_role_A:")
    ha = 0
    if cfg.only != 'B':
        import roleA
        ha = roleA.role_A(p, 2, sys.modules[__name__])
    p("L_exit:\n s_endpgm")
    n = p.fix_hazards()
    print("vgprs B %d A %d, nops inserted %d, instrs %d" % (hb, ha, n, len(p.ins)), file=sys.stderr)
    hdr = open('cdna_kernels/' + NAME + '.s.ref').read().split('; Override launch')[0]
    hdr += f"; @launch kernel={name} grid=(512,1,1) block=(256,1,1) lds={LDS_BYTES}\n"
    hdr += '.amdgcn_target "amdgcn-amd-amdhsa--gfx950"\n.text\n'
    return hdr + p.text() + '.section .rodata,"a"\n.p2align 6\n' + kernel_desc(name, 256)

if __name__ == '__main__':
    import __main__
    out = sys.argv[1]
    for o in sys.argv[2:]:
        if o == 'ts': cfg.ts = True
        elif o == 'dumpK': cfg.dumpK = True
        elif o.startswith('only='): cfg.only = o[5:]
        elif o.startswith('spin='): SPIN_MAX = int(o[5:])
        elif '=' in o: setattr(cfg, o.split('=')[0], int(o.split('=')[1]))
    open(out, 'w').write(build())
```

```python
from asmlib import *
import math
from collections import deque

class Cnt:
    def __init__(self, p, name, cap):
        self.p = p; self.name = name; self.cap = cap; self.ops = []; self.done = 0
    def issue(self, tag): self.ops.append(tag)
    def wait(self, tag):
        idx = max((i for i, t in enumerate(self.ops) if t == tag), default=-1)
        assert idx >= 0, ('wait for never-issued', tag)
        if idx < self.done: return
        n = min(len(self.ops) - 1 - idx, self.cap)
        self.p(f"s_waitcnt {self.name}({n})")
        self.done = len(self.ops) - n
    def wait_all(self):
        self.p(f"s_waitcnt {self.name}(0)"); self.done = len(self.ops)

def role_A(p, vgen, G):
    S_WAVE, S_TAGA, S_TAGB = G.S_WAVE, G.S_TAGA, G.S_TAGB
    f32 = G.f32; cfg = G.cfg; stamp = G.stamp; srd = G.srd; PTR = G.PTR
    WS = 0; B1L = 512
    REG0 = 1024; REGS = 18432; NU = 9
    V = Regs('v', 4, 256); a = V.alloc
    lane = 1
    vm = Cnt(p, 'vmcnt', 63); lg = Cnt(p, 'lgkmcnt', 15)
    vm.issue('gen')
    t0 = a(); t1 = a(); t2 = a(); t3 = a()
    S2 = a(12, 4)
    vT = S2; TG = S2 + 2; FL = S2 + 4; vB2o = S2 + 6; vOo = S2 + 8; vSo = S2 + 9; vFo = S2 + 10
    vj16 = a(); vg4 = a(); vW2o = a(); vHo = a()
    X = a(128, 4)
    p(f"""s_sub_u32 s60, s2, 256
    s_and_b32 s61, s60, 7
    s_lshr_b32 s62, s60, 3""")
    srd(p, 8, 0, 2048 * 1024)
    srd(p, 12, 10, 512 * 3584)
    srd(p, 52, 12, 1792 * 1024)
    srd(p, 56, 14, 2048 * 1024)
    p(f"""v_and_b32 v{vj16}, 15, v{lane}
    v_lshrrev_b32 v{vg4}, 4, v{lane}
    s_mul_i32 s71, s{S_WAVE}, {REGS}
    s_add_u32 s71, s71, {REG0}
    s_lshr_b32 s66, s{S_WAVE}, 1
    s_and_b32 s67, s{S_WAVE}, 1
    s_cmp_ge_u32 s62, 28
    s_cbranch_scc1 L_a_nog1""")
    p(f"""s_mul_i32 s63, s62, 37
    s_lshr_b32 s63, s63, 8
    s_mul_i32 s64, s63, 7
    s_sub_u32 s64, s62, s64
    s_lshr_b32 s65, s61, 1
    s_lshl_b32 s65, s65, 2
    s_add_u32 s63, s63, s65
    s_and_b32 s65, s61, 1
    s_mul_i32 s65, s65, 7
    s_add_u32 s64, s64, s65""")
    vXr = a(4, 2); vXo = a(2); vWo = a()
    vXw = vXo + 1
    p(f"""v_lshrrev_b32 v{t0}, 3, v{lane}
    v_and_b32 v{t1}, 7, v{lane}
    v_lshlrev_b32 v{t2}, 4, v{t1}
    v_lshl_add_u32 v{vXo}, v{t0}, 10, v{t2}
    s_lshl_b32 s68, s63, 17
    s_lshl_b32 s65, s{S_WAVE}, 15
    s_add_u32 s68, s68, s65
    s_add_u32 s69, s62, s61
    s_and_b32 s69, s69, {7 if cfg.rot else 0}
    s_lshl_b32 s65, s69, 7
    s_add_u32 s77, s68, s65""")
    def xr(kc, sg): return X + (kc * 4 + sg) * 4
    def ld_x(t):
        for i in range(4):
            p(f"""s_xor_b32 s65, s77, {i*8192 + t*128}
            buffer_load_dwordx4 {vr(xr(t,i),4)}, v{vXo}, s[8:11], s65 offen""")
            vm.issue(('x', t))
    ld_x(0)
    p(f"""v_mul_u32_u24 v{vWo}, 3584, v{t0}
    v_bfe_u32 v{t2}, v{lane}, 4, 1
    v_lshlrev_b32 v{t2}, 2, v{t2}
    v_xor_b32 v{t2}, v{t1}, v{t2}
    v_lshl_add_u32 v{vWo}, v{t2}, 4, v{vWo}
    s_mul_i32 s70, s{S_WAVE}, {16*3584}
    s_lshl_b32 s65, s64, 8
    s_add_u32 s70, s70, s65""")
    SK = 18
    for kc in range(8):
        p(f"""s_xor_b32 s65, s69, {kc}
        s_mul_i32 s65, s65, {64*3584}
        s_add_u32 s{SK+kc}, s65, s70""")
    hi = deque(); lo = deque()
    def pump(n, nlo=None):
        k = 0
        while k < n and hi: hi.popleft()(); k += 1
        m = n - k if nlo is None else nlo
        while m > 0 and lo: lo.popleft()(); m -= 1
    def drain_q():
        while hi: hi.popleft()()
        while lo: lo.popleft()()
    unit_of = {}
    free_units = deque([2, 3, 4, 5, 6, 7, 8])
    pend = deque([('w1', t) for t in range(16)] + [('w2', k) for k in range(28)])
    def g2_phys(k):
        return 2 * k if k < 14 else 2 * (k - 14) + 1
    def dma_item(item, u, cnt):
        kind, t = item
        unit_of[item] = u
        out = []
        for i in range(2):
            def f(i=i):
                if cfg.nodma and not (kind == 'w1' and t < 7):
                    p("s_nop 0")
                elif kind == 'w1':
                    phi, kc = t >> 3, t & 7
                    p(f"""s_add_u32 m0, s71, {u*2048 + i*1024}
                    s_add_u32 s65, s{SK+kc}, {8*i*3584 + phi*128}
                    buffer_load_dwordx4 v{vWo}, s[12:15], s65 offen lds""")
                else:
                    p(f"""s_add_u32 m0, s71, {u*2048 + i*1024}
                    s_add_u32 s65, s73, {(64*g2_phys(t) + 8*i)*1024}
                    buffer_load_dwordx4 v{vW2o}, s[52:55], s65 offen lds""")
                cnt.issue(item)
            out.append(f)
        return out
    def refill(q, cnt):
        while free_units and pend:
            for f in dma_item(pend.popleft(), free_units.popleft(), cnt): q.append(f)
    for t in range(7):
        for f in dma_item(pend.popleft(), free_units.popleft(), vm): f()
        ld_x(t + 1)
    def g2_setup():
        p(f"""s_lshl_b32 s78, s61, 2
        s_lshr_b32 s65, s62, 3
        s_add_u32 s78, s78, s65
        s_and_b32 s79, s62, 7
        v_lshrrev_b32 v{t0}, 3, v{lane}
        v_lshlrev_b32 v{vW2o}, 10, v{t0}
        v_and_b32 v{t0}, 7, v{lane}
        v_bfe_u32 v{t1}, v{lane}, 4, 1
        v_lshlrev_b32 v{t1}, 1, v{t1}
        v_xor_b32 v{t0}, v{t0}, v{t1}
        v_lshl_add_u32 v{vW2o}, v{t0}, 4, v{vW2o}
        s_lshl_b32 s73, s{S_WAVE}, 14
        s_lshl_b32 s65, s79, 7
        s_add_u32 s73, s73, s65
        v_lshlrev_b32 v{vHo}, 4, v{lane}""")
    g2_setup()
    vB1 = a(2, 2); AB_ = a(4, 2); vABo = a()
    p(f"""s_lshl_b32 s65, s64, 8
    v_lshl_add_u32 v{t0}, v{lane}, 2, s65
    global_load_dword v{vB1}, v{t0}, {sr(PTR(11),2)}
    v_and_b32 v{vABo}, 31, v{lane}
    v_lshlrev_b32 v{vABo}, 4, v{vABo}
    s_lshr_b32 s72, s68, 6
    s_add_u32 s72, s72, {G.AB}""")
    vm.issue('b1')
    SEL = S2; ONE = S2 + 4; vA = S2 + 8
    p(f"""v_lshrrev_b32 v{t0}, 5, v{lane}
    v_lshlrev_b32 v{t0}, 10, v{t0}
    v_bfe_u32 v{t1}, v{lane}, 2, 2
    v_lshl_add_u32 v{t0}, v{t1}, 7, v{t0}
    v_bfe_u32 v{t1}, v{lane}, 4, 1
    v_lshl_add_u32 v{t0}, v{t1}, 5, v{t0}
    v_and_b32 v{t1}, 3, v{lane}
    v_lshl_add_u32 v{t0}, v{t1}, 3, v{t0}
    v_bfe_u32 v{t1}, v{lane}, 3, 1
    v_xor_b32 v{t1}, s67, v{t1}
    v_lshl_add_u32 v{t0}, v{t1}, 6, v{t0}
    s_mul_i32 s65, s66, {REGS}
    v_add_u32 v{vA}, s65, v{t0}
    v_xor_b32 v{vA+1}, 64, v{vA}
    s_sub_u32 s65, {REGS}, s65
    v_add_u32 v{vA+2}, s65, v{t0}
    v_xor_b32 v{vA+3}, 64, v{vA+2}
    v_xor_b32 v{t0}, v{vg4}, v{vj16}
    v_and_b32 v{t0}, 1, v{t0}
    v_cmp_eq_u32 vcc, 0, v{t0}
    v_mov_b32 v{t1}, 0x3f803f80
    v_cndmask_b32 v{SEL}, 0, v{t1}, vcc
    v_mov_b32 v{SEL+1}, v{SEL}
    v_mov_b32 v{SEL+2}, v{SEL}
    v_mov_b32 v{SEL+3}, v{SEL}
    v_mov_b32 v{t0}, 0
    v_mov_b32 v{t1}, 0
    v_lshlrev_b32 v{t2}, 3, v{lane}
    ds_write_b64 v{t2}, {vr(t0,2)} offset:{WS}
    v_and_b32 v{t0}, 31, v{lane}
    v_bfe_u32 v{t1}, v{lane}, 1, 3
    v_lshrrev_b32 v{t2}, 5, v{lane}
    v_xor_b32 v{t1}, v{t1}, v{t2}
    s_lshl_b32 s65, s66, 1
    v_xor_b32 v{t1}, s65, v{t1}
    v_lshlrev_b32 v{t1}, 4, v{t1}
    v_lshl_add_u32 v{t1}, v{t0}, 7, v{t1}
    v_add_u32 v{vXr}, s71, v{t1}
    v_xor_b32 v{vXr+1}, 32, v{vXr}
    v_xor_b32 v{vXr+2}, 64, v{vXr}
    v_xor_b32 v{vXr+3}, 96, v{vXr}
    v_and_b32 v{t1}, 7, v{lane}
    v_xor_b32 v{t1}, v{t1}, v{vg4}
    v_lshlrev_b32 v{t1}, 4, v{t1}
    v_lshrrev_b32 v{t0}, 3, v{lane}
    v_lshl_add_u32 v{t1}, v{t0}, 7, v{t1}
    v_add_u32 v{vXo}, s71, v{t1}
    v_xor_b32 v{vXw}, 64, v{vXo}""")
    assert t0 % 2 == 0 and t1 == t0 + 1
    lg.issue('z')
    ACC = a(64, 4)
    FR = a(24, 4)
    def acc(phi, mu): return ACC + (phi * 2 + mu) * 16
    PF = 2
    def rd_frag(n):
        t, sg = n >> 2, n & 3
        b = FR + (n % 3) * 8
        u = unit_of[('w1', t)]
        for mu in range(2):
            for rho in range(2):
                p(f"ds_read_b64_tr_b16 {vr(b + mu*4 + rho*2, 2)}, v{vA + (sg&1)*2 + mu} offset:{REG0 + (sg>>1)*2*REGS + u*2048 + rho*512}")
                lg.issue(('fr', n))
    def x_drain(t):
        out = []
        def w():
            vm.wait(('x', t))
            for i in range(4):
                if cfg.nobounce: continue
                p(f"ds_write_b128 v{vXo + (i & 1)}, {vr(xr(t,i),4)} offset:{i*1024}")
                lg.issue(('xw', t))
        def r():
            for sg in range(4):
                if cfg.nobounce and sg: continue
                p(f"ds_read_b128 {vr(xr(t,sg),4)}, v{vXr+sg}")
                lg.issue(('xr', t))
            if t == 7:
                def fr():
                    lg.wait(('xr', 7)); free_units.append(0); free_units.append(1); refill(hi, vm)
                late.append(fr)
        return [w, r]
    late = []
    C1 = -2 * 0.7978845608028654 * G.LOG2E; C2 = C1 * 0.044715
    vE = vXo; vE2 = vXo + 1; KC_ = vXr if vXr % 2 == 0 else None
    if KC_ is None: raise RuntimeError('align')
    def gelu_setup():
        p(f"""s_mov_b32 s69, 0
L_a_abpoll:""")
        vm.wait('ab')
        p(f"""v_xor_b32 v{t0}, s{S_TAGA}, v{AB_+2}
        v_xor_b32 v{t1}, s{S_TAGB}, v{AB_+3}
        v_or_b32 v{t0}, v{t0}, v{t1}
        v_cmp_ne_u32 vcc, 0, v{t0}
        s_add_u32 s69, s69, 1
        s_cmp_eq_u64 vcc, 0
        s_cbranch_scc1 L_a_abok
        s_cmp_ge_u32 s69, {G.SPIN_MAX}
        s_cbranch_scc1 L_a_abok
        s_sleep 1
        buffer_load_dwordx4 {vr(AB_,4)}, v{vABo}, s[4:7], s72 offen sc1
        s_waitcnt vmcnt(0)
        s_branch L_a_abpoll
L_a_abok:
        v_mov_b32 v{KC_}, {f32(C1)}
        v_mov_b32 v{KC_+2}, {f32(C2)}
        v_lshrrev_b32 v{vE}, 5, v{lane}
        v_lshlrev_b32 v{vE}, 4, v{vE}
        s_lshl_b32 s65, s67, 7
        v_add_u32 v{vE}, s65, v{vE}
        v_xor_b32 v{vE2}, 128, v{vE}
        s_lshl_b32 s72, s63, 2
        s_add_u32 s72, s72, s{S_WAVE}
        s_mul_i32 s72, s72, {112*1024}
        s_lshl_b32 s65, s64, 13
        s_add_u32 s72, s72, s65
        s_lshl_b32 s65, s67, 11
        s_add_u32 s72, s72, s65
        s_add_u32 s72, s72, {G.HB}
        s_xor_b32 s69, s72, 2048""")
    GT = X
    def gelu_ops(phi):
        ops = []
        quarters = [(mu, q) for mu in range(2) for q in range(4)]
        def rd(k):
            mu, q = quarters[k]; s = GT + (k & 1) * 12
            def f():
                p(f"ds_read_b128 {vr(s,4)}, v{vE2 if mu else vE} offset:{WS + phi*256 + q*32}")
                p(f"ds_read_b128 {vr(s+4,4)}, v{vE2 if mu else vE} offset:{B1L + phi*256 + q*32}")
                lg.issue(('wb', phi, k)); lg.issue(('wb', phi, k))
            return f
        ops.append(rd(0))
        for k, (mu, q) in enumerate(quarters):
            s = GT + (k & 1) * 12; tm = s + 8; ac = acc(phi, mu) + 4 * q; ho = GT + 24 + ((k >> 1) & 1) * 4
            if k < 7: ops.append(rd(k + 1))
            L = []
            for j in range(4): L.append(f"v_fma_f32 v{s+j}, v{s+j}, v{AB_+1}, v{s+4+j}")
            for j in range(4): L.append(f"v_fma_f32 v{ac+j}, v{ac+j}, v{AB_}, v{s+j}")
            for j in range(4): L.append(f"v_mul_f32 v{tm+j}, v{ac+j}, v{ac+j}")
            for j in range(4): L.append(f"v_fma_f32 v{tm+j}, v{tm+j}, v{KC_+2}, v{KC_}")
            for j in range(4): L.append(f"v_mul_f32 v{tm+j}, v{tm+j}, v{ac+j}")
            for j in range(4): L.append(f"v_exp_f32 v{tm+j}, v{tm+j}")
            for j in range(4): L.append(f"v_add_f32 v{tm+j}, 1.0, v{tm+j}")
            for j in range(4): L.append(f"v_rcp_f32 v{tm+j}, v{tm+j}")
            for j in range(4): L.append(f"v_mul_f32 v{tm+j}, v{tm+j}, v{ac+j}")
            for j in range(2): L.append(f"v_cvt_pk_bf16_f32 v{ho + (q&1)*2 + j}, v{tm+2*j}, v{tm+2*j+1}")
            def first(k=k, l=L[0]):
                lg.wait(('wb', phi, k)); p(l)
            ops.append(first)
            for l in L[1:]: ops.append(lambda l=l: p(l))
            if q & 1:
                def st(mu=mu, q=q, ho=ho):
                    p(f"s_add_u32 s65, s{69 if mu else 72}, {phi*4096}")
                    p(f"buffer_store_dwordx4 {vr(ho,4)}, v{vHo}, s[4:7], s65 offen offset:{(q>>1)*1024} sc1")
                    vm.issue(('hst', phi))
                ops.append(st)
        return ops
    def flag(phi, cnt, tg):
        p(f"""v_mov_b32 v{tg}, s{S_TAGA}
        v_mov_b32 v{tg+1}, s{S_TAGB}
        s_lshl_b32 s65, s60, 2
        s_add_u32 s65, s65, s{S_WAVE}
        s_lshl_b32 s65, s65, 6
        s_add_u32 s65, s65, {G.HFLAG + phi*G.HFLAG1}
        v_mov_b32 v{t0}, 0
        s_mov_b64 exec, 1
        buffer_store_dwordx2 {vr(tg,2)}, v{t0}, s[4:7], s65 offen sc1
        s_mov_b64 exec, -1""")
        cnt.issue(('flag', phi))
    def wsum(phi):
        p(f"""s_lshl_b32 s65, s67, 7
        v_lshlrev_b32 v{t0}, 6, v{vj16}
        v_lshl_add_u32 v{t0}, v{vg4}, 4, v{t0}
        v_add_u32 v{t0}, s65, v{t0}
        s_mov_b32 s74, 0x00030003
        s_mov_b32 s75, 0x00030003
        s_mov_b64 exec, s[74:75]""")
        for r in range(4):
            p(f"ds_add_f32 v{t0}, v{ONE+r} offset:{WS + phi*256 + r*4}")
            lg.issue(('wsum', phi))
        p("s_mov_b64 exec, -1")
    if cfg.fine: vm.wait_all()
    for f in x_drain(0): f()
    stamp(p, 1)
    vm.wait(('w1', 0)); lg.wait('z')
    p("s_barrier")
    for n in range(PF): rd_frag(n)
    for n in range(64):
        t, sg = n >> 2, n & 3
        phi, kc = t >> 3, t & 7
        if sg == 0 and t + 1 < 8:
            for f in x_drain(t + 1): hi.append(f)
        if n == 29: hi.append(late.pop())
        if n == 5:
            def b1w():
                vm.wait('b1')
                G.make_tags(p, vgen)
                p(f"""v_and_b32 v{vB1+1}, 0xffff0000, v{vB1}
                v_lshlrev_b32 v{vB1}, 16, v{vB1}
                v_lshlrev_b32 v{t0}, 3, v{lane}
                ds_write_b64 v{t0}, {vr(vB1,2)} offset:{B1L}""")
                lg.issue('b1w')
            hi.append(b1w)
        if n == 30:
            def abl():
                p(f"buffer_load_dwordx4 {vr(AB_,4)}, v{vABo}, s[4:7], s72 offen sc1"); vm.issue('ab')
            hi.append(abl)
        if n == cfg.gstart and not cfg.nogelu:
            lo.append(gelu_setup)
            for f in gelu_ops(0): lo.append(f)
        m = n + PF
        if m < 64:
            if (m & 3) == 0:
                tn = m >> 2
                while ('w1', tn) not in [o for o in vm.ops]: pump(1, 0)
                while vm.ops.count(('w1', tn)) < 2: pump(1, 0)
                vm.wait(('w1', tn))
                if tn == 9: lg.wait(('wsum', 0))
                if not cfg.nobar: p("s_barrier")
                if tn >= 2:
                    free_units.append(unit_of[('w1', tn - 2)]); refill(hi, vm)
            rd_frag(m)
        if phi == 0 and sg == 0:
            while ('xr', t) not in lg.ops: pump(1, 0)
            lg.wait(('xr', t))
        lg.wait(('fr', n))
        b = FR + (n % 3) * 8
        first = (kc == 0 and sg == 0)
        if n == 32: wsum(0)
        for mu in range(2):
            cc = '0' if first else vr(acc(phi, mu), 16)
            p(f"v_mfma_f32_32x32x16_bf16 {vr(acc(phi,mu),16)}, {vr(b+mu*4,4)}, {vr(xr(kc, sg),4)}, {cc}")
            pump(1, cfg.glo)
        if (sg & 1) == 0:
            cc = '0' if first else vr(ONE, 4)
            p(f"v_mfma_f32_16x16x32_bf16 {vr(ONE,4)}, {vr(b,4)}, {vr(SEL,4)}, {cc}")
            pump(1, 2)
        if cfg.fine and sg == 3 and t % 2 == 1 and t < 15: stamp(p, 2 + t // 2)
    if cfg.gstart >= 64:
        stamp(p, 8)
        gelu_setup()
        for f in gelu_ops(0): f()
    drain_q()
    if cfg.fine: stamp(p, 9)
    wsum(1)
    if cfg.fine:
        G.stamps_out(p, 10, ACC); p("s_endpgm\nL_a_nog1:\n s_endpgm"); return V.hi_used
    vm.wait(('hst', 0))
    flag(0, vm, FR)
    lg.wait_all()
    p("s_barrier")
    stamp(p, 2)
    for tt in (14, 15): free_units.append(unit_of[('w1', tt)])
    refill(hi, vm)
    def vt_setup():
        p(f"""v_lshrrev_b32 v{t0}, 5, v{lane}
        v_lshlrev_b32 v{t0}, 9, v{t0}
        v_bfe_u32 v{t1}, v{lane}, 2, 2
        v_lshl_add_u32 v{t0}, v{t1}, 7, v{t0}
        v_and_b32 v{t1}, 1, v{lane}
        v_lshl_add_u32 v{t0}, v{t1}, 6, v{t0}
        v_bfe_u32 v{t1}, v{lane}, 4, 1
        v_lshl_add_u32 v{t0}, v{t1}, 4, v{t0}
        v_bfe_u32 v{t1}, v{lane}, 1, 1
        v_lshl_add_u32 v{t0}, v{t1}, 3, v{t0}
        v_bfe_u32 v{t1}, v{lane}, 3, 1
        v_lshl_add_u32 v{t0}, v{t1}, 5, v{t0}
        v_add_u32 v{vT}, s71, v{t0}
        v_xor_b32 v{vT+1}, 32, v{vT}""")
    vt_setup()
    NK_R = cfg.nkr
    wblk = {k: X + 32 + 8 * k for k in range(NK_R)}
    def rd_w2(k, dst, lgc):
        u = unit_of[('w2', k)]
        for md in range(2):
            for rho in range(2):
                p(f"ds_read_b64_tr_b16 {vr(dst + md*4 + rho*2, 2)}, v{vT+md} offset:{u*2048 + rho*1024}")
                lgc.issue(('w2r', k))
    g1 = gelu_ops(1)
    moves = deque()
    def mv(k):
        def f():
            while vm.ops.count(('w2', k)) < 2: hi.popleft()()
            vm.wait(('w2', k)); rd_w2(k, wblk[k], lg)
        def g():
            lg.wait(('w2r', k)); free_units.append(unit_of[('w2', k)]); refill(hi, vm)
        return f, g
    seq = []
    for k in range(NK_R):
        f, g = mv(k); seq.append(f); seq.append(g)
    order = []
    for k in range(NK_R + 1):
        if k < NK_R: order.append(seq[2 * k])
        if k >= 1: order.append(seq[2 * (k - 1) + 1])
    per = max(1, len(g1) // (len(order) + 1))
    gi = 0
    for o in order:
        for _ in range(per):
            if gi < len(g1): g1[gi](); gi += 1
            if hi: hi.popleft()()
        o()
    while gi < len(g1):
        g1[gi](); gi += 1
        if hi: hi.popleft()()
    drain_q()
    stamp(p, 3)
    state = (dict(unit_of), list(free_units), list(pend))
    p("s_branch L_a_g2")
    p("L_a_nog1:")
    g2_setup()
    vt_setup()
    vm2 = Cnt(p, 'vmcnt', 63); lg2 = Cnt(p, 'lgkmcnt', 15)
    save_units = dict(unit_of)
    for k in range(NK_R):
        for f in dma_item(('w2', k), k, vm2): f()
    vm2.wait_all()
    for k in range(NK_R): rd_w2(k, wblk[k], lg2)
    lg2.wait_all()
    unit_of.update(save_units)
    for (kind, k), u in sorted(save_units.items()):
        if kind == 'w2' and k >= NK_R:
            for f in dma_item(('w2', k), u, vm2): f()
    G.make_tags(p, vgen)
    flag(0, vm2, FR)
    vm2.wait_all()
    if cfg.ts:
        for k in range(1, 4): stamp(p, k)
    p("L_a_g2:")
    ACC2 = ACC
    hfree = deque([X, X + 8, X + 16, X + 24, FR, FR + 8, FR + 16] + [X + 32 + 8 * k for k in range(NK_R, 12)])
    extra = []
    for r, n in ((vXo, 2), (vWo, 1), (vXr, 4), (vB1, 2), (AB_, 4), (vABo, 1)): V.free(r, n)
    try:
        while True: hfree.append(a(8, 4))
    except RuntimeError: pass
    WF = [hfree.pop(), hfree.pop()]
    p(f"""v_min_u32 v{t3}, 27, v{lane}
    v_lshrrev_b32 v{t0}, 1, v{t3}
    v_cmp_le_u32 vcc, 7, v{t0}
    v_cndmask_b32 v{t1}, 0, 1, vcc
    v_mul_u32_u24 v{t2}, 7, v{t1}
    v_sub_u32 v{t0}, v{t0}, v{t2}
    s_lshr_b32 s65, s78, 1
    s_and_b32 s69, s65, 3
    s_mul_i32 s69, s69, 7
    v_add_u32 v{t0}, s69, v{t0}
    s_lshr_b32 s65, s65, 2
    s_lshl_b32 s65, s65, 1
    v_add_u32 v{t1}, s65, v{t1}
    v_lshl_add_u32 v{t0}, v{t0}, 3, v{t1}
    s_and_b32 s65, s78, 1
    s_lshl_b32 s65, s65, 1
    v_and_b32 v{t1}, 1, v{t3}
    v_add_u32 v{t1}, s65, v{t1}
    v_lshl_add_u32 v{t0}, v{t0}, 2, v{t1}
    v_lshlrev_b32 v{vFo}, 6, v{t0}
    s_mul_i32 s74, s78, {2*112*1024}
    s_lshl_b32 s65, s{S_WAVE}, 10
    s_add_u32 s74, s74, s65
    s_add_u32 s74, s74, {G.HB}
    s_add_u32 s75, s74, {112*1024}""")
    def poll_issue(phi):
        p(f"s_mov_b32 s65, {G.HFLAG + phi*G.HFLAG1}\n buffer_load_dwordx2 {vr(FL,2)}, v{vFo}, s[4:7], s65 offen sc1")
        vm.issue(('poll', phi))
    def poll_check(phi):
        p(f"s_mov_b32 s69, 0\nL_a_hpoll{phi}:")
        vm.wait(('poll', phi))
        p(f"""v_xor_b32 v{t0}, s{S_TAGA}, v{FL}
        v_xor_b32 v{t1}, s{S_TAGB}, v{FL+1}
        v_or_b32 v{t0}, v{t0}, v{t1}
        v_cmp_ne_u32 vcc, 0, v{t0}
        s_add_u32 s69, s69, 1
        s_cmp_eq_u64 vcc, 0
        s_cbranch_scc1 L_a_hok{phi}
        s_cmp_ge_u32 s69, {G.SPIN_MAX}
        s_cbranch_scc1 L_a_hok{phi}
        s_mov_b32 s65, {G.HFLAG + phi*G.HFLAG1}
        buffer_load_dwordx2 {vr(FL,2)}, v{vFo}, s[4:7], s65 offen sc1
        s_waitcnt vmcnt(0)
        s_branch L_a_hpoll{phi}
L_a_hok{phi}:""")
    poll_issue(0)
    p(f"""v_and_b32 v{t0}, 31, v{lane}
    v_lshlrev_b32 v{vOo}, 10, v{t0}
    v_lshrrev_b32 v{t0}, 5, v{lane}
    v_lshl_add_u32 v{vOo}, v{t0}, 6, v{vOo}
    s_lshl_b32 s72, s78, 16
    s_lshl_b32 s65, s66, 15
    s_add_u32 s72, s72, s65
    s_lshl_b32 s69, s79, 7
    s_lshl_b32 s65, s67, 5
    s_add_u32 s69, s69, s65
    s_add_u32 s72, s72, s69
    v_lshl_add_u32 v{vB2o}, v{t0}, 6, s69
    v_lshrrev_b32 v{t0}, 3, v{lane}
    v_lshlrev_b32 v{vSo}, 13, v{t0}
    v_and_b32 v{t0}, 7, v{lane}
    v_lshl_add_u32 v{vSo}, v{t0}, 4, v{vSo}
    s_lshl_b32 s76, s79, 19
    s_lshl_b32 s65, s67, 17
    s_add_u32 s76, s76, s65
    s_lshl_b32 s65, s78, 8
    s_add_u32 s76, s76, s65
    s_lshl_b32 s65, s66, 7
    s_add_u32 s76, s76, s65
    s_add_u32 s76, s76, {G.ST}""")
    poll_check(0)
    flag(1, vm, TG)
    stamp(p, 4)
    hblk = {}
    nh = [0]
    lim = [14]
    def ld_h_all():
        while hfree and nh[0] < lim[0]:
            k = nh[0]; nh[0] += 1
            r = hfree.popleft(); hblk[k] = r
            for nt in range(2):
                def f(nt=nt, k=k, r=r):
                    p(f"s_add_u32 s65, s{74+nt}, {g2_phys(k)*4096}")
                    p(f"buffer_load_dwordx4 {vr(r + nt*4, 4)}, v{vHo}, s[4:7], s65 offen sc1")
                    vm.issue(('h', k))
                hi.append(f)
    ld_h_all(); drain_q()
    def ld_s(dst):
        for i in range(4):
            off = (i >> 1) * 32 * 8192 + (i & 1) * 8 * 8192
            r = dst[i >> 1] + (i & 1) * 4
            p(f"s_add_u32 s65, s76, {off}\n buffer_load_dwordx4 {vr(r,4)}, v{vSo}, s[4:7], s65 offen sc1")
    def a2(md, nt): return ACC2 + (nt * 2 + md) * 16
    def wsrc(k): return wblk[k] if k < NK_R else WF[k & 1]
    KP = cfg.kpoll
    for k in range(28):
        if k == KP: poll_issue(1)
        if k == KP + 2:
            drain_q()
            poll_check(1); lim[0] = 28; ld_h_all()
            stamp(p, 5)
        if NK_R <= k + 1 < 28:
            while vm.ops.count(('w2', k + 1)) < 2: hi.popleft()()
            vm.wait(('w2', k + 1)); rd_w2(k + 1, wsrc(k + 1), lg)
        while vm.ops.count(('h', k)) < 2: hi.popleft()()
        vm.wait(('h', k))
        if k >= NK_R:
            lg.wait(('w2r', k))
            free_units.append(unit_of[('w2', k)]); refill(hi, vm)
        for nt in range(2):
            for md in range(2):
                cc = '0' if k == 0 else vr(a2(md, nt), 16)
                p(f"v_mfma_f32_32x32x16_bf16 {vr(a2(md,nt),16)}, {vr(wsrc(k)+md*4,4)}, {vr(hblk[k] + nt*4, 4)}, {cc}")
                pump(1)
        hfree.append(hblk[k])
        if k < NK_R: hfree.append(wblk[k])
        ld_h_all()
        if k == 21:
            drain_q()
            assert nh[0] == 28 and len(hfree) >= 4, (nh, hfree)
            SG = [hfree.popleft(), hfree.popleft()]; XE = hfree.popleft(); B2E = hfree.popleft()
            ld_s(SG)
            for _ in range(4): vm.issue('s')
            p(f"""buffer_load_dwordx4 {vr(XE,4)}, v{vOo}, s[8:11], s72 offen
            buffer_load_dwordx4 {vr(XE+4,4)}, v{vOo}, s[8:11], s72 offen offset:16
            global_load_dwordx4 {vr(B2E,4)}, v{vB2o}, {sr(PTR(13),2)}
            global_load_dwordx4 {vr(B2E+4,4)}, v{vB2o}, {sr(PTR(13),2)} offset:16""")
            for _ in range(4): vm.issue('xe')
    drain_q()
    stamp(p, 6)
    sgr = lambda i: SG[i >> 1] + (i & 1) * 4
    used = set()
    for b_ in SG + [XE, B2E]: used |= set(range(b_, b_ + 8))
    pool = [r for r in range(X, X + 128, 8) if r not in used]
    def take(n):
        for i in range(len(pool)):
            blk = [pool[i] + 8 * j for j in range(n // 8)]
            if all(b in pool for b in blk):
                for b in blk: pool.remove(b)
                return blk[0]
        raise RuntimeError('no scratch')
    OWN = take(16); TM = take(16); OUT = take(8); SV = take(8)
    p(f"""v_lshlrev_b32 v{t0}, 4, v{lane}
    v_add_u32 v{t1}, s71, v{t0}""")
    for T in range(4):
        p(f"s_cmp_eq_u32 s{S_WAVE}, {T}\n s_cbranch_scc1 L_a_skipw{T}")
        for q in range(4): p(f"ds_write_b128 v{t1}, {vr(ACC2 + T*16 + 4*q, 4)} offset:{T*4096 + q*1024}")
        p(f"s_branch L_a_endw{T}\nL_a_skipw{T}:")
        for q in range(8): p(f"v_mov_b64 {vr(OWN+2*q,2)}, {vr(ACC2 + T*16 + 2*q,2)}")
        p(f"L_a_endw{T}:")
    p(f"""s_mov_b32 s69, 0
L_a_spoll:
    s_waitcnt vmcnt(0)
    v_mov_b32 v{t2}, 0""")
    for i in range(4):
        p(f"""v_xor_b32 v{t0}, s{S_TAGA}, v{sgr(i)+2}
        v_xor_b32 v{t3}, s{S_TAGB}, v{sgr(i)+3}
        v_or3_b32 v{t2}, v{t2}, v{t0}, v{t3}""")
    p(f"""v_cmp_ne_u32 vcc, 0, v{t2}
    s_add_u32 s69, s69, 1
    s_cmp_eq_u64 vcc, 0
    s_cbranch_scc1 L_a_sok
    s_cmp_ge_u32 s69, {G.SPIN_MAX}
    s_cbranch_scc1 L_a_sok
    s_sleep 1""")
    ld_s(SG)
    p("s_branch L_a_spoll\nL_a_sok:")
    p(f"""s_lshl_b32 s65, s{S_WAVE}, 12
    s_add_u32 s65, s65, s71
    v_lshlrev_b32 v{t0}, 3, v{lane}
    v_add_u32 v{t0}, s65, v{t0}""")
    for i in range(4): p(f"ds_write_b64 v{t0}, {vr(sgr(i),2)} offset:{i*512}")
    p(f"""v_lshrrev_b32 v{t2}, 5, v{lane}
    v_lshlrev_b32 v{t2}, 10, v{t2}
    v_bfe_u32 v{t3}, v{lane}, 2, 2
    v_lshl_add_u32 v{t2}, v{t3}, 6, v{t2}
    v_bfe_u32 v{t3}, v{lane}, 4, 1
    v_lshl_add_u32 v{t2}, v{t3}, 5, v{t2}
    v_and_b32 v{t3}, 3, v{lane}
    v_lshl_add_u32 v{t2}, v{t3}, 3, v{t2}
    v_add_u32 v{t2}, s65, v{t2}
    v_lshlrev_b32 v{t0}, 4, v{lane}
    s_lshl_b32 s69, s{S_WAVE}, 12
    s_waitcnt lgkmcnt(0)
    s_barrier""")
    PP = ACC2
    for k in range(1, 4):
        p(f"""s_xor_b32 s65, s{S_WAVE}, {k}
        s_mul_i32 s65, s65, {REGS}
        s_add_u32 s65, s65, s69
        v_add_u32 v{t1}, s65, v{t0}""")
        for q in range(4): p(f"ds_read_b128 {vr(PP + (k-1)*16 + 4*q, 4)}, v{t1} offset:{REG0 + q*1024}")
    for q in range(4): p(f"ds_read_b64_tr_b16 {vr(SV+2*q,2)}, v{t2} offset:{q*256}")
    def unpack(dst, src, n):
        for q in range(n):
            p(f"v_lshlrev_b32 v{dst+2*q}, 16, v{src+q}\n v_and_b32 v{dst+2*q+1}, 0xffff0000, v{src+q}")
    def rnd(reg):
        for q in range(8): p(f"v_cvt_pk_bf16_f32 v{OUT+q}, v{reg+2*q}, v{reg+2*q+1}")
        unpack(reg, OUT, 8)
    unpack(TM, B2E, 8)
    for k in range(3):
        p(f"s_waitcnt lgkmcnt({12 - 4*k})")
        for q in range(16): p(f"v_add_f32 v{OWN+q}, v{OWN+q}, v{PP+k*16+q}")
    if cfg.exact: rnd(OWN)
    for q in range(16): p(f"v_add_f32 v{OWN+q}, v{OWN+q}, v{TM+q}")
    if cfg.exact: rnd(OWN)
    for q in range(16): p(f"v_mul_f32 v{TM+q}, {f32(-G.LOG2E)}, v{OWN+q}")
    for q in range(16): p(f"v_exp_f32 v{TM+q}, v{TM+q}")
    for q in range(16): p(f"v_add_f32 v{TM+q}, 1.0, v{TM+q}")
    for q in range(16): p(f"v_rcp_f32 v{TM+q}, v{TM+q}")
    for q in range(16): p(f"v_mul_f32 v{OWN+q}, v{OWN+q}, v{TM+q}")
    if cfg.exact: rnd(OWN)
    p("s_waitcnt lgkmcnt(0)")
    unpack(TM, SV, 8)
    unpack(PP, XE, 8)
    if cfg.exact:
        for q in range(8): p(f"v_pk_mul_f32 {vr(OWN+2*q,2)}, {vr(OWN+2*q,2)}, {vr(TM+2*q,2)}")
        rnd(OWN)
        for q in range(8): p(f"v_pk_add_f32 {vr(OWN+2*q,2)}, {vr(OWN+2*q,2)}, {vr(PP+2*q,2)}")
    else:
        for q in range(16): p(f"v_fma_f32 v{OWN+q}, v{OWN+q}, v{TM+q}, v{PP+q}")
    for q in range(8): p(f"v_cvt_pk_bf16_f32 v{OUT+q}, v{OWN+2*q}, v{OWN+2*q+1}")
    p(f"""buffer_store_dwordx4 {vr(OUT,4)}, v{vOo}, s[56:59], s72 offen
    buffer_store_dwordx4 {vr(OUT+4,4)}, v{vOo}, s[56:59], s72 offen offset:16""")
    stamp(p, 7)
    G.stamps_out(p, 8, TM)
    p("s_endpgm")
    return V.hi_used
```

```python
import sys, math, struct
from asmlib import *

NAME = "recurrent_scan__ssm_conv_s4__mixer_channel_mlp__prompt"
GEN = 0; HFLAG = 0x1000; HFLAG1 = 0x10000; AB = 0x30000; XNT = 0x100000; ST = 0x600000; HB = 0xA00000
DBG = 0x2000000; TSB = 0x3000000
LDS_BYTES = 81920
SPIN_MAX = 200000

def f32(x): return '0x%08x' % struct.unpack('<I', struct.pack('<f', x))[0]
LOG2E = 1.4426950408889634

class Cfg:
    ts = False
    dumpK = False
    only = None
    fine = 0; gstart = 40; glo = 7; kpoll = 3; exact = 0; rot = 1; nkr = 8; nodma = 0; nobounce = 0; nogelu = 0; nobar = 0; cyc = 0; dbgts = 0
cfg = Cfg()

S_WAVE = 3
S_WS = 4
PTR = lambda i: 16 + 2 * i
S_TAGA, S_TAGB = 50, 51

def srd(p, s, ptr_idx, nbytes):
    p(f"""s_mov_b32 s{s}, s{PTR(ptr_idx)}
    s_mov_b32 s{s+1}, s{PTR(ptr_idx)+1}
    s_mov_b32 s{s+2}, {nbytes}
    s_mov_b32 s{s+3}, 0x20000""")

ts_count = [0]
def stamp(p, k):
    if cfg.ts: p(f"{'s_memtime' if cfg.cyc else 's_memrealtime'} s[{80+2*k}:{81+2*k}]")
def stamps_out(p, n, vt):
    if not cfg.ts: return
    if cfg.dbgts:
        lab = 'L_dbg%d' % len(p.ins)
        p(f"""s_waitcnt lgkmcnt(0)
        s_and_b32 s76, s2, 255
        s_cmp_lg_u32 s76, {cfg.dbgts - 1}
        s_cbranch_scc1 {lab}
        s_mov_b32 s76, s46
        s_mov_b32 s77, s47
        s_mov_b32 s78, 256
        s_mov_b32 s79, 0x20000
        s_lshr_b32 s75, s2, 8
        s_lshl_b32 s75, s75, 5
        v_mov_b32 v{vt+4}, 0
        v_cmp_eq_u32 vcc, 0, v0
        s_and_saveexec_b64 s[72:73], vcc""")
        for k in range(0, 8, 4):
            for j in range(4): p(f"v_mov_b32 v{vt+j}, s{80+2*(k+j)}")
            p(f"buffer_store_dwordx4 {vr(vt,4)}, v{vt+4}, s[76:79], s75 offen offset:{k*4}\n s_nop 2")
        p(f"s_mov_b64 exec, s[72:73]\n{lab}:")
        return
    p(f"""s_waitcnt lgkmcnt(0)
    v_cmp_eq_u32 vcc, 0, v0
    s_and_saveexec_b64 s[76:77], vcc
    s_lshl_b32 s78, s2, 4
    v_mov_b32 v{vt+4}, s78""")
    for k in range(n - 1):
        p(f"""v_mov_b32 v{vt}, s{80+2*k}
        v_mov_b32 v{vt+1}, s{81+2*k}
        v_mov_b32 v{vt+2}, s{82+2*k}
        v_mov_b32 v{vt+3}, s{83+2*k}
        s_mov_b32 s78, {TSB + k*0x10000}
        buffer_store_dwordx4 {vr(vt,4)}, v{vt+4}, s[4:7], s78 offen
        s_nop 2""")
    p("s_mov_b64 exec, s[76:77]")

def make_tags(p, vgen):
    p(f"""v_readfirstlane_b32 s{S_TAGA}, v{vgen}
    s_mul_i32 s{S_TAGA}, s{S_TAGA}, 0x9E3779B1
    s_add_u32 s{S_TAGA}, s{S_TAGA}, 0x7F4A7C15
    s_xor_b32 s{S_TAGB}, s{S_TAGA}, 0x5bd1e995""")

def reduce4(p, A1, A2, Z2):
    p(f"""v_permlane16_swap_b32 v{A1}, v{A1+1}
    v_permlane16_swap_b32 v{A2}, v{A2+1}
    v_add_f32 v{A1}, v{A1}, v{A1+1}
    v_add_f32 v{A2}, v{A2}, v{A2+1}
    v_permlane32_swap_b32 v{A1}, v{A2}
    v_add_f32 v{A1}, v{A1}, v{A2}
    v_add_f32_dpp v{A1}, v{A1}, v{A1} quad_perm:[1,0,3,2] row_mask:0xf bank_mask:0xf
    v_add_f32_dpp v{A1}, v{A1}, v{A1} quad_perm:[2,3,0,1] row_mask:0xf bank_mask:0xf
    v_add_f32_dpp v{A1}, v{A1}, v{A1} row_half_mirror row_mask:0xf bank_mask:0xf
    v_add_f32_dpp v{A1}, v{A1}, v{A1} row_mirror row_mask:0xf bank_mask:0xf
    v_mov_b32 v{Z2}, v{A1}
    v_permlane32_swap_b32 v{A1}, v{Z2}""")

XBL = 0; XCH = 4608
TT = 9216 + 16; TCH = 1344
KC = 12288; KCS = 4160; KCH = 8 * KCS
LNB = KC
PT = KC + 8192
PX = KC + 16384

def role_B(p, vgen):
    V = Regs('v', 4, 256)
    lane = 1
    a = V.alloc
    vL16 = a(); XA = a(4, 2); XB = a(4, 2); PR = a(6); vLd = a(); vDk = a(); t0 = a(); t1 = a(); t2 = a(); t3 = a()
    srd(p, 8, 0, 2048 * 1024)
    p(f"""s_lshl_b32 s61, s2, 3
    s_lshl_b32 s62, s{S_WAVE}, 1
    s_add_u32 s61, s61, s62
    s_lshl_b32 s62, s61, 10
    v_lshlrev_b32 v{vL16}, 4, v{lane}
    buffer_load_dwordx4 {vr(XA,4)}, v{vL16}, s[8:11], s62 offen
    buffer_load_dwordx4 {vr(XB,4)}, v{vL16}, s[8:11], s62 offen offset:1024
    s_lshr_b32 s63, s{S_WAVE}, 1
    s_lshl_b32 s60, s2, 1
    s_add_u32 s63, s63, s60
    s_lshl_b32 s60, s63, 8
    v_lshl_add_u32 v{t0}, v{lane}, 2, s60
    s_lshl_b32 s60, s63, 1
    v_mov_b32 v{t1}, s60""")
    for k in range(6):
        p(f"global_load_dword v{PR+k}, v{t0}, {sr(PTR(1+k),2)}")
    p(f"global_load_ushort v{vLd}, v{t1}, {sr(PTR(7),2)}")
    p(f"global_load_ushort v{vDk}, v{t1}, {sr(PTR(8),2)}")
    vi = a(); vg = a(); tB = a(2, 2); tA = a(6, 2)
    p(f"""v_and_b32 v{vi}, 15, v{lane}
    v_lshrrev_b32 v{vg}, 4, v{lane}
    v_lshlrev_b32 v{t0}, 4, v{vi}
    v_cvt_f32_u32 v{tB}, v{t0}
    v_cvt_f32_u32 v{tA}, v{vi}
    v_lshlrev_b32 v{t0}, 1, v{vi}
    v_add_u32 v{t0}, 256, v{t0}
    v_bfe_u32 v{t1}, v{vi}, 2, 1
    v_lshlrev_b32 v{t1}, 8, v{t1}
    v_and_b32 v{t2}, 3, v{vi}
    v_lshl_add_u32 v{t1}, v{t2}, 2, v{t1}
    v_add_u32 v{t1}, 512, v{t1}
    v_cmp_gt_u32 vcc, 8, v{vi}
    v_cndmask_b32 v{t0}, v{t1}, v{t0}, vcc
    v_cvt_f32_u32 v{tA+2}, v{t0}
    v_lshrrev_b32 v{t0}, 1, v{vi}
    v_lshlrev_b32 v{t0}, 8, v{t0}
    v_and_b32 v{t1}, 1, v{vi}
    v_lshl_add_u32 v{t0}, v{t1}, 3, v{t0}
    v_add_u32 v{t0}, 1024, v{t0}
    v_min_u32 v{t0}, 2048, v{t0}
    v_cvt_f32_u32 v{tA+4}, v{t0}""")
    GA = a(16)
    p(f"v_lshlrev_b32 v{t3}, 3, v0")
    for e in range(0, 16, 2):
        for h in range(2):
            d = 7 - (e + h)
            p(f"v_add_u32 v{GA+e+h}, {d}, v{t3}")
            p(f"v_max_i32 v{t0+h}, 128, v{GA+e+h}")
            p(f"v_cvt_f32_i32 v{t0+h}, v{t0+h}")
        p(f"""v_cvt_pk_bf16_f32 v{t0}, v{t0}, v{t1}
        v_lshrrev_b32 v{t1}, 16, v{t0}
        v_and_b32 v{t0}, 0xffff, v{t0}""")
        for h in range(2):
            p(f"v_subrev_u32 v{t0+h}, 0x4280, v{t0+h}")
            p(f"v_min_i32 v{GA+e+h}, v{t0+h}, v{GA+e+h}")
            p(f"v_lshlrev_b32 v{GA+e+h}, 1, v{GA+e+h}")
            p(f"v_add_u32 v{GA+e+h}, {TT}, v{GA+e+h}")
    P = a(16, 2); D = a(16, 2); A1 = a(2, 2); A2 = a(2, 2); B1 = a(2, 2); B2 = a(2, 2); Z2 = a(); vC0 = a(); vM = a(); vR = a()
    p("s_waitcnt vmcnt(8)")
    stamp(p, 1)
    for q in range(4):
        p(f"""v_lshlrev_b32 v{P+4*q}, 16, v{XA+q}
        v_lshlrev_b32 v{P+4*q+1}, 16, v{XB+q}
        v_and_b32 v{P+4*q+2}, 0xffff0000, v{XA+q}
        v_and_b32 v{P+4*q+3}, 0xffff0000, v{XB+q}""")
    p(f"""v_readfirstlane_b32 s64, v{P}
    v_readfirstlane_b32 s65, v{P+1}
    s_mov_b32 s70, 0xffff0000
    s_mov_b32 s71, 0xffff0000""")
    make_tags(p, vgen)
    for c in range(8):
        p(f"v_pk_add_f32 {vr(D+2*c,2)}, {vr(P+2*c,2)}, s[64:65] neg_lo:[0,1] neg_hi:[0,1]")
    def sums(X):
        p(f"""v_pk_add_f32 {vr(A1,2)}, {vr(X,2)}, {vr(X+2,2)}
        v_pk_add_f32 {vr(B1,2)}, {vr(X+4,2)}, {vr(X+6,2)}
        v_pk_mul_f32 {vr(A2,2)}, {vr(X,2)}, {vr(X,2)}
        v_pk_mul_f32 {vr(B2,2)}, {vr(X+2,2)}, {vr(X+2,2)}""")
        for c in range(4, 8):
            acc = A1 if c % 2 == 0 else B1
            p(f"v_pk_add_f32 {vr(acc,2)}, {vr(acc,2)}, {vr(X+2*c,2)}")
        for c in range(2, 8):
            acc = A2 if c % 2 == 0 else B2
            p(f"v_pk_fma_f32 {vr(acc,2)}, {vr(X+2*c,2)}, {vr(X+2*c,2)}, {vr(acc,2)}")
        p(f"""v_pk_add_f32 {vr(A1,2)}, {vr(A1,2)}, {vr(B1,2)}
        v_pk_add_f32 {vr(A2,2)}, {vr(A2,2)}, {vr(B2,2)}""")
    sums(D)
    p(f"""v_mov_b32 v{vC0}, s64
    s_mov_b64 exec, s[70:71]
    v_mov_b32 v{vC0}, s65
    s_mov_b64 exec, -1""")
    reduce4(p, A1, A2, Z2)
    def stats(mean_add, vm, vsd_r):
        p(f"""v_mul_f32 v{A1}, {f32(1/512)}, v{A1}
        v_mul_f32 v{Z2}, {f32(1/512)}, v{Z2}
        v_fma_f32 v{Z2}, -v{A1}, v{A1}, v{Z2}
        v_max_f32 v{Z2}, 0, v{Z2}""")
        if mean_add is not None: p(f"v_add_f32 v{A1}, v{mean_add}, v{A1}")
        p(f"""v_cvt_pk_bf16_f32 v{t0}, v{A1}, v{Z2}
        v_lshlrev_b32 v{vm}, 16, v{t0}
        v_and_b32 v{t0}, 0xffff0000, v{t0}
        v_add_f32 v{t0}, {f32(1e-5)}, v{t0}
        v_cvt_pk_bf16_f32 v{t0}, v{t0}, v{t0}
        v_lshlrev_b32 v{t0}, 16, v{t0}
        v_sqrt_f32 v{t0}, v{t0}
        v_cvt_pk_bf16_f32 v{t0}, v{t0}, v{t0}
        v_lshlrev_b32 v{t0}, 16, v{t0}
        v_rcp_f32 v{vsd_r}, v{t0}""")
    stats(vC0, vM, vR)
    p(f"""v_readlane_b32 s66, v{vM}, 0
    v_readlane_b32 s67, v{vM}, 16
    v_readlane_b32 s68, v{vR}, 0
    v_readlane_b32 s69, v{vR}, 16""")
    F = a(8, 2); K_ = a(8)
    for c in range(8): p(f"v_pk_add_f32 {vr(D+2*c,2)}, {vr(P+2*c,2)}, s[66:67] neg_lo:[0,1] neg_hi:[0,1]")
    for c in range(8): p(f"v_cvt_pk_bf16_f32 v{K_+c}, v{D+2*c}, v{D+2*c+1}")
    for c in range(8):
        p(f"v_lshlrev_b32 v{D+2*c}, 16, v{K_+c}\n v_and_b32 v{D+2*c+1}, 0xffff0000, v{K_+c}")
    for c in range(8): p(f"v_pk_mul_f32 {vr(D+2*c,2)}, {vr(D+2*c,2)}, s[68:69]")
    for c in range(8): p(f"v_cvt_pk_bf16_f32 v{K_+c}, v{D+2*c}, v{D+2*c+1}")
    for c in range(8):
        p(f"v_lshlrev_b32 v{D+2*c}, 16, v{K_+c}\n v_and_b32 v{D+2*c+1}, 0xffff0000, v{K_+c}")
    for c in range(8): p(f"v_cvt_pkrtz_f16_f32 v{F+c}, v{D+2*c}, v{D+2*c+1}")
    p(f"""s_lshl_b32 s60, s{S_WAVE}, 11
    v_lshl_add_u32 v{t1}, v{lane}, 5, s60
    ds_write_b128 v{t1}, {vr(F,4)} offset:{LNB}
    ds_write_b128 v{t1}, {vr(F+4,4)} offset:{LNB+16}""")
    sums(D)
    reduce4(p, A1, A2, Z2)
    G = a(16, 2)
    vM2 = a(); vR2 = a()
    stats(None, vM2, vR2)
    p(f"""v_mul_f32 v{G}, v{vR}, v{vR2}
    v_fma_f32 v{t0}, v{vM}, v{vR}, v{vM2}
    v_mul_f32 v{G+1}, v{t0}, -v{vR2}
    v_mov_b32 v{G+2}, s{S_TAGA}
    v_mov_b32 v{G+3}, s{S_TAGB}
    v_lshlrev_b32 v{t0}, 4, v{vg}
    s_lshl_b32 s60, s61, 4
    s_add_u32 s60, s60, {AB}
    s_mov_b64 exec, 0x10001
    buffer_store_dwordx4 {vr(G,4)}, v{t0}, s[4:7], s60 offen sc1
    s_mov_b64 exec, -1
    s_waitcnt lgkmcnt(0)
    s_barrier""")
    p(f"""v_lshrrev_b32 v{t0}, 1, v0
    v_lshlrev_b32 v{t0}, 2, v{t0}
    v_and_b32 v{t1}, 1, v0
    v_lshl_add_u32 v{t0}, v{t1}, 12, v{t0}""")
    for i in range(4):
        p(f"ds_read2st64_b32 {vr(G+4*i,2)}, v{t0} offset0:{(LNB + i*512)//256} offset1:{(LNB + i*512)//256 + 8}")
        if i: p(f"v_mov_b32 v{G+4*i+2}, s{S_TAGA}\n v_mov_b32 v{G+4*i+3}, s{S_TAGB}")
    p(f"""v_lshlrev_b32 v{t0}, 4, v0
    s_lshl_b32 s60, s2, 14
    s_add_u32 s60, s60, {XNT}""")
    for i in range(4):
        p(f"s_waitcnt lgkmcnt({3-i})")
        p(f"buffer_store_dwordx4 {vr(G+4*i,4)}, v{t0}, s[4:7], s60 offen sc1")
        if i < 3: p("s_add_u32 s60, s60, 4096")
    stamp(p, 2)
    for r, n in ((P, 16), (D, 16), (A1, 2), (A2, 2), (B1, 2), (B2, 2), (Z2, 1), (vC0, 1), (vM, 1), (vR, 1), (F, 8), (K_, 8), (vM2, 1), (vR2, 1), (XA, 4), (XB, 4)): V.free(r, n)
    p("s_waitcnt vmcnt(5)")
    U = a(12, 2); E = a(8, 2); vdt = a()
    p(f"""v_lshlrev_b32 v{vdt}, 16, v{vLd}
    v_mul_f32 v{vdt}, {f32(LOG2E)}, v{vdt}
    v_exp_f32 v{vdt}, v{vdt}
    v_lshlrev_b32 v{vDk}, 16, v{vDk}
    v_cvt_pk_bf16_f32 v{vdt}, v{vdt}, v{vdt}
    v_lshlrev_b32 v{vdt}, 16, v{vdt}""")
    for k in range(6):
        p(f"v_lshlrev_b32 v{U+2*k}, 16, v{PR+k}\n v_and_b32 v{U+2*k+1}, 0xffff0000, v{PR+k}")
    for k in range(4):
        for h in range(2): p(f"v_mul_f32 v{U+2*k+h}, v{vdt}, v{U+2*k+h}")
    for h in range(2):
        p(f"""v_mul_f32 v{E+4*h}, {f32(LOG2E)}, v{U+h}
        v_mul_f32 v{E+4*h+1}, {f32(1/(2*math.pi))}, v{U+2+h}
        v_mul_f32 v{E+4*h+2}, v{U+8+h}, v{U+4+h}
        v_fma_f32 v{E+4*h+2}, -v{U+10+h}, v{U+6+h}, v{E+4*h+2}
        v_mul_f32 v{E+4*h+3}, v{U+8+h}, v{U+6+h}
        v_fma_f32 v{E+4*h+3}, v{U+10+h}, v{U+4+h}, v{E+4*h+3}""")
    p(f"""v_max_f32 v{t0}, |v{E+2}|, |v{E+3}|
    v_max3_f32 v{t0}, |v{E+6}|, |v{E+7}|, v{t0}
    v_max_f32_dpp v{t0}, v{t0}, v{t0} quad_perm:[1,0,3,2] row_mask:0xf bank_mask:0xf
    v_max_f32_dpp v{t0}, v{t0}, v{t0} quad_perm:[2,3,0,1] row_mask:0xf bank_mask:0xf
    v_max_f32_dpp v{t0}, v{t0}, v{t0} row_half_mirror row_mask:0xf bank_mask:0xf
    v_max_f32_dpp v{t0}, v{t0}, v{t0} row_mirror row_mask:0xf bank_mask:0xf
    v_max_f32_dpp v{t0}, v{t0}, v{t0} row_bcast:15 row_mask:0xa bank_mask:0xf
    v_max_f32_dpp v{t0}, v{t0}, v{t0} row_bcast:31 row_mask:0xc bank_mask:0xf
    v_frexp_exp_i32_f32 v{t0}, v{t0}
    v_readlane_b32 s72, v{t0}, 63
    s_sub_u32 s73, 0, s72
    s_and_b32 s60, s{S_WAVE}, 1
    s_cmp_eq_u32 s60, 1
    s_cselect_b64 vcc, -1, 0""")
    for k in range(4): p(f"v_cndmask_b32 v{E+k}, v{E+k}, v{E+4+k}, vcc")
    p(f"""v_ldexp_f32 v{E+2}, v{E+2}, s73
    v_ldexp_f32 v{E+3}, v{E+3}, s73
    s_lshl_b32 s60, s{S_WAVE}, 10
    v_add_u32 v{t1}, s60, v{vL16}
    ds_write_b128 v{t1}, {vr(E,4)} offset:{PT}
    v_lshl_add_u32 v{t1}, v{vg}, 6, s60
    s_waitcnt lgkmcnt(0)""")
    V.free(U, 12); V.free(E, 8); V.free(PR, 6)
    ACC = a(12, 4); Q = a(32, 4); FR = a(32, 4)
    W_ = a(24, 2)
    def rdq(kap):
        for q in range(4): p(f"ds_read_b128 {vr(Q + (kap&1)*16 + 4*q, 4)}, v{t1} offset:{PT + kap*256 + q*16}")
    rdq(0)
    for kap in range(4):
        if kap < 3: rdq(kap + 1); p("s_waitcnt lgkmcnt(4)")
        else: p("s_waitcnt lgkmcnt(0)")
        fr = FR + (kap & 1) * 16
        for q in range(4):
            pq = Q + (kap & 1) * 16 + 4 * q
            ts_ = [tA, tA + 2, tA + 4, tB]
            for k in range(4):
                w = W_ + 6 * k
                p(f"v_pk_mul_f32 {vr(w,2)}, {vr(pq,2)}, {vr(ts_[k],2)} op_sel_hi:[1,0]")
            for k in range(4): p(f"v_fract_f32 v{W_+6*k+1}, v{W_+6*k+1}")
            for k in range(4):
                w = W_ + 6 * k
                p(f"v_exp_f32 v{w}, v{w}\n v_cos_f32 v{w+2}, v{w+1}\n v_sin_f32 v{w+3}, v{w+1}")
            for k in range(4):
                w = W_ + 6 * k
                p(f"v_pk_mul_f32 {vr(w+2,2)}, {vr(w+2,2)}, {vr(w,2)} op_sel_hi:[1,0]")
            for k in range(3):
                w = W_ + 6 * k
                p(f"v_cvt_pk_f16_f32 v{fr+4*k+q}, v{w+2}, v{w+3}")
            w = W_ + 18
            p(f"""v_mul_f32 v{w+4}, v{pq+2}, v{w+2}
            v_mul_f32 v{w+5}, v{pq+2}, v{w+3}
            v_fma_f32 v{w+4}, -v{pq+3}, v{w+3}, v{w+4}
            v_fma_f32 v{w+5}, v{pq+3}, v{w+2}, v{w+5}
            v_cvt_pk_f16_f32 v{fr+12+q}, v{w+4}, -v{w+5}""")
        for k in range(3):
            c = vr(ACC + 4 * k, 4) if kap else '0'
            p(f"v_mfma_f32_16x16x32_f16 {vr(ACC+4*k,4)}, {vr(fr+4*k,4)}, {vr(fr+12,4)}, {c}")
    V.free(Q, 32); V.free(FR, 32); V.free(W_, 24)
    stamp(p, 3)
    XG = a(16, 4); vXo = a()
    p(f"""v_lshrrev_b32 v{vXo}, 2, v{lane}
    v_lshlrev_b32 v{vXo}, 14, v{vXo}
    v_and_b32 v{t0}, 3, v{lane}
    v_lshl_add_u32 v{vXo}, v{t0}, 4, v{vXo}
    s_lshl_b32 s74, s{S_WAVE}, 20
    s_lshl_b32 s60, s2, 6
    s_add_u32 s74, s74, s60
    s_add_u32 s74, s74, {XNT}""")
    def gather():
        for i in range(4):
            p(f"s_add_u32 s60, s74, {i << 18}")
            p(f"buffer_load_dwordx4 {vr(XG+4*i,4)}, v{vXo}, s[4:7], s60 offen sc1")
    gather()
    p(f"""s_lshr_b32 s60, s{S_WAVE}, 1
    s_mul_i32 s75, s60, 3072
    v_add_u32 v{t1}, s75, v{vL16}
    s_and_b32 s62, s{S_WAVE}, 1
    s_cmp_eq_u32 s62, 0
    s_cbranch_scc1 L_b_even1""")
    for k in range(3): p(f"ds_write_b128 v{t1}, {vr(ACC+4*k,4)} offset:{PX + k*1024}")
    ZR = a(4, 2)
    p(f"""v_mov_b32 v{ZR}, 0
    v_mov_b32 v{ZR+1}, 0
    s_mul_i32 s75, s60, {XCH}
    v_lshl_add_u32 v{t0}, v{lane}, 3, s75
    ds_write_b64 v{t0}, {vr(ZR,2)} offset:{XBL}
    s_mul_i32 s75, s60, {TCH}
    v_and_b32 v{t0}, 3, v{lane}
    v_lshl_add_u32 v{t0}, v{t0}, 2, s75
    ds_write_b32 v{t0}, v{ZR} offset:{TT-16}
    s_waitcnt lgkmcnt(0)
L_b_even1:
    s_barrier
    s_cbranch_scc0 L_b_odd2""")
    O = a(12, 4)
    for k in range(3): p(f"ds_read_b128 {vr(O+4*k,4)}, v{t1} offset:{PX + k*1024}")
    a0 = a(); a1 = a(); a2 = a()
    p(f"""s_mul_i32 s75, s60, {TCH}
    v_lshlrev_b32 v{a0}, 5, v{vi}
    v_lshl_add_u32 v{a0}, v{vg}, 3, v{a0}
    v_add_u32 v{a0}, s75, v{a0}
    v_lshlrev_b32 v{a1}, 4, v{vi}
    v_lshl_add_u32 v{a1}, v{vg}, 3, v{a1}
    v_add_u32 v{a1}, 512, v{a1}
    v_lshlrev_b32 v{t0}, 3, v{vi}
    v_lshl_add_u32 v{t0}, v{vg}, 7, v{t0}
    v_add_u32 v{t0}, {768-256}, v{t0}
    v_cmp_gt_u32 vcc, 2, v{vg}
    v_cndmask_b32 v{a1}, v{t0}, v{a1}, vcc
    v_add_u32 v{a1}, s75, v{a1}
    v_lshlrev_b32 v{a2}, 2, v{vi}
    v_lshl_add_u32 v{a2}, v{vg}, 7, v{a2}
    v_add_u32 v{a2}, s75, v{a2}
    s_waitcnt lgkmcnt(0)""")
    for k in range(12): p(f"v_add_f32 v{ACC+k}, v{ACC+k}, v{O+k}")
    for k in range(6): p(f"v_cvt_pk_f16_f32 v{O+k}, v{ACC+2*k}, v{ACC+2*k+1}")
    p(f"""ds_write_b64 v{a0}, {vr(O,2)} offset:{TT}
    ds_write_b64 v{a1}, {vr(O+2,2)} offset:{TT}
    s_mov_b32 s76, -1
    s_mov_b32 s77, 1
    s_mov_b64 exec, s[76:77]
    ds_write_b32 v{a2}, v{O+4} offset:{TT+1024}
    s_mov_b32 s77, 0
    s_mov_b64 exec, s[76:77]
    ds_write_b32 v{a2}, v{O+5} offset:{TT+1024+64}
    s_mov_b64 exec, -1
    s_waitcnt lgkmcnt(0)
L_b_odd2:
    s_barrier""")
    for r in (a0, a1, a2): V.free(r)
    V.free(O, 12); V.free(ACC, 12)
    vKW = a(2)
    p(f"v_lshlrev_b32 v{vKW}, 4, v0\n v_add_u32 v{vKW+1}, {KCH}, v{vKW}")
    W0 = a(8, 2); W1 = a(9, 2); S0 = a(8, 2); S1 = a(9, 2); EL = [a(15), a(15)]
    for ch in range(2):
        for e in range(15):
            p(f"ds_read_u16 v{EL[ch] + e}, v{GA+e} offset:{ch*TCH}")
    for ch in range(2):
        el = EL[ch]
        p(f"s_waitcnt lgkmcnt({15 if ch == 0 else 8})")
        for q in range(7):
            p(f"v_lshl_or_b32 v{W0+q}, v{el+2*q+1}, 16, v{el+2*q}")
            p(f"v_lshl_or_b32 v{S0+q}, v{el+2*q+2}, 16, v{el+2*q+1}")
        for q in range(1, 7):
            p(f"v_lshl_or_b32 v{W1+1+q}, v{el+2*q+1}, 16, v{el+2*q}")
            p(f"v_lshl_or_b32 v{S1+1+q}, v{el+2*q+2}, 16, v{el+2*q+1}")
        for s_ in range(8):
            if s_ & 1: o = (7 - s_) // 2; e_, o_ = W0, W1
            else: o = (6 - s_) // 2; e_, o_ = S0, S1
            src = e_ + o if o % 2 == 0 else o_ + 1 + o
            p(f"ds_write_b128 v{vKW+ch}, {vr(src,4)} offset:{KC + s_*KCS + 16}")
    p(f"""v_mov_b32 v{ZR}, 0
    v_mov_b32 v{ZR+1}, 0
    v_mov_b32 v{ZR+2}, 0
    v_mov_b32 v{ZR+3}, 0
    v_mul_u32_u24 v{t0}, {KCS}, v{vi}
    ds_write_b128 v{t0}, {vr(ZR,4)} offset:{KC}""")
    for r, n in ((W0, 8), (W1, 9), (S0, 8), (S1, 9), (GA, 16), (EL[0], 15), (EL[1], 15)): V.free(r, n)
    stamp(p, 4)
    p(f"""s_mov_b32 s62, 0
L_b_poll:
    s_waitcnt vmcnt(0)
    v_xor_b32 v{t0}, s{S_TAGA}, v{XG+2}
    v_xor_b32 v{t1}, s{S_TAGB}, v{XG+3}
    v_or_b32 v{t0}, v{t0}, v{t1}""")
    for i in range(1, 4):
        p(f"""v_xor_b32 v{t1}, s{S_TAGA}, v{XG+4*i+2}
        v_xor_b32 v{t2}, s{S_TAGB}, v{XG+4*i+3}
        v_or3_b32 v{t0}, v{t0}, v{t1}, v{t2}""")
    p(f"""v_cmp_ne_u32 vcc, 0, v{t0}
    s_add_u32 s62, s62, 1
    s_cmp_eq_u64 vcc, 0
    s_cbranch_scc1 L_b_got
    s_cmp_ge_u32 s62, {SPIN_MAX}
    s_cbranch_scc1 L_b_got
    s_sleep 1""")
    gather()
    p("s_branch L_b_poll\nL_b_got:")
    p(f"""v_lshrrev_b32 v{t0}, 2, v{lane}
    v_lshlrev_b32 v{t0}, 4, v{t0}
    v_and_b32 v{t1}, 1, v{lane}
    v_lshl_add_u32 v{t0}, v{t1}, 3, v{t0}
    v_bfe_u32 v{t1}, v{lane}, 1, 1
    v_mul_u32_u24 v{t1}, {XCH}, v{t1}
    s_lshl_b32 s60, s{S_WAVE}, 10
    v_add3_u32 v{t0}, v{t0}, v{t1}, s60""")
    for i in range(4): p(f"ds_write_b64 v{t0}, {vr(XG+4*i,2)} offset:{XBL + 512 + i*256}")
    V.free(XG, 16)
    vA = a(); vB = a()
    p(f"""s_lshr_b32 s60, s{S_WAVE}, 1
    s_and_b32 s62, s{S_WAVE}, 1
    s_lshl_b32 s62, s62, 8
    v_and_b32 v{vA}, 7, v{vi}
    v_mul_u32_u24 v{vA}, {KCS}, v{vA}
    v_lshrrev_b32 v{t0}, 3, v{vi}
    v_sub_u32 v{t0}, v{t0}, v{vg}
    v_add_u32 v{t0}, 3, v{t0}
    v_lshl_add_u32 v{vA}, v{t0}, 4, v{vA}
    s_mul_i32 s75, s60, {KCH}
    s_add_u32 s75, s75, s62
    v_add_u32 v{vA}, s75, v{vA}
    v_lshlrev_b32 v{vB}, 5, v{vi}
    v_lshl_add_u32 v{vB}, v{vg}, 4, v{vB}
    s_mul_i32 s75, s60, {XCH}
    s_sub_u32 s75, s75, s62
    s_add_u32 s75, s75, {XBL + 480 - 192}
    v_add_u32 v{vB}, s75, v{vB}
    s_waitcnt lgkmcnt(0)
    s_barrier""")
    stamp(p, 5)
    if cfg.dumpK:
        Dm = a(4, 4)
        for ch in range(2):
            p(f"""ds_read_b128 {vr(Dm,4)}, v{vKW+ch} offset:{KC + 7*KCS + 16}
            s_lshl_b32 s60, s2, 13
            s_add_u32 s60, s60, {DBG + ch*4096}
            s_waitcnt lgkmcnt(0)
            buffer_store_dwordx4 {vr(Dm,4)}, v{vKW}, s[4:7], s60 offen
            s_waitcnt vmcnt(0)""")
        p(f"""v_mov_b32 v{Dm}, s72
        s_lshl_b32 s60, s63, 2
        s_add_u32 s60, s60, {DBG + 0x400000}
        v_mov_b32 v{Dm+1}, 0
        buffer_store_dword v{Dm}, v{Dm+1}, s[4:7], s60 offen
        s_waitcnt vmcnt(0)""")
        V.free(Dm, 4)
    CA = a(32, 4); FA = [a(32, 4), a(32, 4)]; FB = [a(32, 4), a(32, 4)]
    def rd_res(rr):
        bsel = rr & 1
        for k in range(8):
            p(f"ds_read_b128 {vr(FA[bsel]+4*k,4)}, v{vA} offset:{KC + rr*64 + k*512}")
            p(f"ds_read_b128 {vr(FB[bsel]+4*k,4)}, v{vB} offset:{192 - rr*64 + k*512}")
    rd_res(0)
    for rr in range(4):
        bsel = rr & 1
        pairs = sorted([(aa, bb) for aa in range(8) for bb in range(8 - aa)], key=lambda t: (max(t), t[0] + t[1]))
        nxt = []
        if rr < 3:
            nb = (rr + 1) & 1
            for k in range(8):
                nxt.append(f"ds_read_b128 {vr(FA[nb]+4*k,4)}, v{vA} offset:{KC + (rr+1)*64 + k*512}")
                nxt.append(f"ds_read_b128 {vr(FB[nb]+4*k,4)}, v{vB} offset:{192 - (rr+1)*64 + k*512}")
        have = -1; issued = 0
        for n_, (aa, bb) in enumerate(pairs):
            m_ = max(aa, bb)
            if m_ > have:
                outstanding = 16 - 2 * (m_ + 1) + issued
                p(f"s_waitcnt lgkmcnt({min(outstanding, 15)})")
                have = m_
            J = aa + bb
            first = (rr == 0 and (aa, bb) == min((t for t in pairs if t[0] + t[1] == J), key=lambda t: pairs.index(t)))
            c = '0' if first else vr(CA + 4 * J, 4)
            p(f"v_mfma_f32_16x16x32_f16 {vr(CA+4*J,4)}, {vr(FA[bsel]+4*aa,4)}, {vr(FB[bsel]+4*bb,4)}, {c}")
            if have == 7 or True:
                if have == 7 and nxt:
                    for x in nxt: p(x)
                    nxt = []; issued = 16
    stamp(p, 6)
    for r in FA + FB: V.free(r, 32)
    p(f"""s_barrier
    s_lshl_b32 s60, s{S_WAVE}, 12
    v_add_u32 v{t1}, s60, v{vL16}
    s_xor_b32 s60, s60, 4096
    v_add_u32 v{t2}, s60, v{vL16}
    s_and_b32 s62, s{S_WAVE}, 1
    s_cmp_eq_u32 s62, 0
    s_cbranch_scc1 L_b_e0""")
    for k in range(4): p(f"ds_write_b128 v{t1}, {vr(CA+4*k,4)} offset:{KC+k*1024}")
    for k in range(16): p(f"v_mov_b32 v{CA+k}, v{CA+16+k}")
    p("s_branch L_b_e1\nL_b_e0:")
    for k in range(4): p(f"ds_write_b128 v{t1}, {vr(CA+16+4*k,4)} offset:{KC+k*1024}")
    p("L_b_e1:")
    XN = a(8, 2); O = CA + 16
    p(f"""s_lshr_b32 s60, s{S_WAVE}, 1
    s_mul_i32 s75, s60, {XCH}
    s_lshl_b32 s62, s62, 11
    s_add_u32 s75, s75, s62
    v_lshlrev_b32 v{t0}, 5, v{vi}
    v_lshl_add_u32 v{t0}, v{vg}, 3, v{t0}
    v_add_u32 v{t0}, s75, v{t0}""")
    for k in range(4): p(f"ds_read_b64 {vr(XN+2*k,2)}, v{t0} offset:{XBL + 512 + k*512}")
    p("s_waitcnt lgkmcnt(0)\n s_barrier")
    for k in range(4): p(f"ds_read_b128 {vr(O+4*k,4)}, v{t2} offset:{KC+k*1024}")
    p(f"""v_lshlrev_b32 v{t3}, 6, v{vi}
    v_lshl_add_u32 v{t3}, v{vg}, 4, v{t3}
    s_lshl_b32 s60, s63, 13
    s_lshl_b32 s62, s62, 1
    s_add_u32 s60, s60, s62
    s_add_u32 s60, s60, {ST}""")
    Y = a(4, 2); Xf = a(4, 2); GG = [a(4, 2), a(4, 2)]
    for k in range(4):
        g_ = GG[k & 1]
        p(f"s_waitcnt lgkmcnt({3-k})")
        for r in range(4):
            p(f"v_add_f32 v{Y+r}, v{CA+4*k+r}, v{O+4*k+r}")
            p(f"v_ldexp_f32 v{Y+r}, v{Y+r}, s72")
        for h in range(2):
            p(f"""v_cvt_f32_f16 v{Xf+2*h}, v{XN+2*k+h}
            v_cvt_f32_f16_sdwa v{Xf+2*h+1}, v{XN+2*k+h} dst_sel:DWORD dst_unused:UNUSED_PAD src0_sel:WORD_1""")
        for r in range(4): p(f"v_mul_f32 v{Xf+r}, v{Xf+r}, v{vDk}")
        for h in range(2):
            p(f"""v_cvt_pk_bf16_f32 v{t0}, v{Y+2*h}, v{Y+2*h+1}
            v_cvt_pk_bf16_f32 v{t1}, v{Xf+2*h}, v{Xf+2*h+1}
            v_lshlrev_b32 v{Y+2*h}, 16, v{t0}
            v_and_b32 v{Y+2*h+1}, 0xffff0000, v{t0}
            v_lshlrev_b32 v{Xf+2*h}, 16, v{t1}
            v_and_b32 v{Xf+2*h+1}, 0xffff0000, v{t1}
            v_pk_add_f32 {vr(Y+2*h,2)}, {vr(Y+2*h,2)}, {vr(Xf+2*h,2)}
            v_cvt_pk_bf16_f32 v{g_+h}, v{Y+2*h}, v{Y+2*h+1}""")
        if k < 2: p(f"v_mov_b32 v{g_+2}, s{S_TAGA}\n v_mov_b32 v{g_+3}, s{S_TAGB}")
        p(f"buffer_store_dwordx4 {vr(g_,4)}, v{t3}, s[4:7], s60 offen offset:{k*1024} sc1")
    stamp(p, 7)
    p(f"""s_or_b32 s60, s2, s{S_WAVE}
    s_cmp_lg_u32 s60, 0
    s_cbranch_scc1 L_b_done""")
    if cfg.only != 'B':
        FL = a(8, 2)
        p(f"""v_lshlrev_b32 v{t3}, 8, v{lane}
        s_mov_b32 s62, 0
L_b_gpoll:""")
        for i in range(4):
            p(f"s_mov_b32 s60, {HFLAG + i*16384}\n buffer_load_dwordx2 {vr(FL+2*i,2)}, v{t3}, s[4:7], s60 offen sc1")
        p(f"s_waitcnt vmcnt(0)\n v_mov_b32 v{t0}, 0")
        for i in range(4):
            p(f"""v_xor_b32 v{t1}, s{S_TAGA}, v{FL+2*i}
            v_xor_b32 v{t2}, s{S_TAGB}, v{FL+2*i+1}
            v_or3_b32 v{t0}, v{t0}, v{t1}, v{t2}""")
        p(f"""v_cmp_ne_u32 vcc, 0, v{t0}
        s_add_u32 s62, s62, 1
        s_cmp_eq_u64 vcc, 0
        s_cbranch_scc1 L_b_gok
        s_cmp_ge_u32 s62, {SPIN_MAX}
        s_cbranch_scc1 L_b_gok
        s_sleep 4
        s_branch L_b_gpoll
L_b_gok:""")
    p(f"""v_mov_b32 v{t0}, s{S_TAGA}
    v_mov_b32 v{t1}, 0
    s_mov_b64 exec, 1
    buffer_store_dword v{t0}, v{t1}, s[4:7], 0 offen offset:{GEN}
    s_mov_b64 exec, -1
L_b_done:""")
    stamps_out(p, 8, CA)
    p("s_endpgm")
    return V.hi_used

def build():
    p = Prog()
    name = NAME + "_kernel"
    p(f""".globl {name}
.p2align 8
.type {name},@function
{name}:
    s_cmp_ge_u32 s2, 512
    s_cbranch_scc1 L_exit
    s_load_dwordx16 s[16:31], s[0:1], 0
    s_load_dwordx16 s[32:47], s[0:1], 64
    s_load_dwordx2 s[48:49], s[0:1], 128""")
    stamp(p, 0)
    p(f"""v_lshrrev_b32 v1, 6, v0
    v_readfirstlane_b32 s{S_WAVE}, v1
    v_and_b32 v1, 63, v0
    v_mov_b32 v3, 0
    s_waitcnt lgkmcnt(0)
    s_mov_b32 s4, s48
    s_mov_b32 s5, s49
    s_mov_b32 s6, 0x10000000
    s_mov_b32 s7, 0x20000
    buffer_load_dword v2, v3, s[4:7], 0 offen offset:{GEN} sc1
    s_cmp_ge_u32 s2, 256
    s_cbranch_scc1 L_role_A""")
    if cfg.only == 'A':
        p("s_endpgm"); hb = 0
    else:
        hb = role_B(p, 2)
    p("L_role_A:")
    ha = 0
    if cfg.only != 'B':
        import roleA
        ha = roleA.role_A(p, 2, sys.modules[__name__])
    p("L_exit:\n s_endpgm")
    n = p.fix_hazards()
    print("vgprs B %d A %d, nops inserted %d, instrs %d" % (hb, ha, n, len(p.ins)), file=sys.stderr)
    hdr = open('cdna_kernels/' + NAME + '.s.ref').read().split('; Override launch')[0]
    hdr += f"; @launch kernel={name} grid=(512,1,1) block=(256,1,1) lds={LDS_BYTES}\n"
    hdr += '.amdgcn_target "amdgcn-amd-amdhsa--gfx950"\n.text\n'
    return hdr + p.text() + '.section .rodata,"a"\n.p2align 6\n' + kernel_desc(name, 256)

if __name__ == '__main__':
    import __main__
    out = sys.argv[1]
    for o in sys.argv[2:]:
        if o == 'ts': cfg.ts = True
        elif o == 'dumpK': cfg.dumpK = True
        elif o.startswith('only='): cfg.only = o[5:]
        elif o.startswith('spin='): SPIN_MAX = int(o[5:])
        elif '=' in o: setattr(cfg, o.split('=')[0], int(o.split('=')[1]))
    open(out, 'w').write(build())
```

```python
import re

REG_RE = re.compile(r'(?<![\w.])([vas])(\d+)(?![\w\[])|(?<![\w.])([vas])\[(\d+):(\d+)\]|(?<![\w.])(vcc|exec|m0)(?:_lo|_hi)?(?![\w])')

def regs_of(text):
    out = set()
    for m in REG_RE.finditer(text):
        if m.group(1): out.add((m.group(1), int(m.group(2))))
        elif m.group(3):
            for i in range(int(m.group(4)), int(m.group(5)) + 1): out.add((m.group(3), i))
        else: out.add((m.group(6), 0))
    return out

def split_ops(s):
    ops, depth, cur = [], 0, ''
    for ch in s:
        if ch in '[(': depth += 1
        if ch in '])': depth -= 1
        if ch == ',' and depth == 0: ops.append(cur.strip()); cur = ''
        else: cur += ch
    if cur.strip(): ops.append(cur.strip())
    return ops

TRANS = ('v_exp_f32', 'v_log_f32', 'v_rcp_f32', 'v_rsq_f32', 'v_sqrt_f32', 'v_sin_f32', 'v_cos_f32', 'v_rcp_iflag_f32')

def mfma_info(mn):
    if mn.endswith('_f32') and mn.startswith('v_mfma_f32_'):
        shape = mn.split('_')[3]
        return ('sgemm', {'32x32x2': 16, '16x16x4': 8, '4x4x1': 2, '32x32x1': 16, '16x16x1': 8}[shape])
    shape = mn.split('_')[3]
    return ('xdl', {'32x32x16': 8, '16x16x32': 4, '32x32x8': 8, '16x16x16': 4}[shape])

class Ins:
    __slots__ = ('text', 'mn', 'rd', 'wr', 'kind', 'ws', 'label', 'target', 'extra')
    def __init__(self, text):
        self.text = text; self.label = None; self.target = None; self.extra = {}
        t = text.split(';')[0].strip()
        self.rd = set(); self.wr = set(); self.kind = 'other'; self.ws = 1
        if t.endswith(':'):
            self.label = t[:-1]; self.kind = 'label'; self.ws = 0; self.mn = ''; return
        if not t or t.startswith('.'):
            self.kind = 'directive'; self.ws = 0; self.mn = ''; return
        parts = t.split(None, 1)
        mn = parts[0]; self.mn = mn
        rest = parts[1] if len(parts) > 1 else ''
        base = mn.replace('_e32', '').replace('_e64', '').replace('_dpp', '').replace('_sdwa', '')
        ops = split_ops(rest)
        R = regs_of
        if mn == 's_nop':
            self.ws = int(ops[0], 0) + 1; self.kind = 'nop'; return
        if mn.startswith('s_cbranch') or mn == 's_branch':
            self.kind = 'branch'; self.target = ops[0]
            if 'vcc' in mn: self.rd.add(('vcc', 0))
            if 'exec' in mn: self.rd.add(('exec', 0))
            return
        if mn in ('s_endpgm',): self.kind = 'end'; return
        if mn in ('s_waitcnt', 's_barrier', 's_setprio', 's_sleep', 's_sethalt') : self.kind = 'salu'; return
        if mn.startswith('s_'):
            self.kind = 'smem' if (mn.startswith('s_load') or mn.startswith('s_buffer') or mn.startswith('s_mem') or mn.startswith('s_atomic')) else 'salu'
            if mn.startswith('s_cmp') or mn.startswith('s_bitcmp'):
                for o in ops: self.rd |= R(o)
            else:
                self.wr |= R(ops[0])
                for o in ops[1:]: self.rd |= R(o)
                if 'saveexec' in mn: self.wr.add(('exec', 0)); self.rd.add(('exec', 0))
                if mn in ('s_addk_i32', 's_mulk_i32'): self.rd |= R(ops[0])
            return
        if mn.startswith('v_mfma'):
            self.kind = 'mfma'
            self.extra['cls'], self.extra['passes'] = mfma_info(mn)
            self.wr |= R(ops[0]); self.extra['A'] = R(ops[1]); self.extra['B'] = R(ops[2]); self.extra['C'] = R(ops[3].split()[0])
            self.extra['Ctext'] = ops[3].split()[0]; self.extra['Dtext'] = ops[0]
            self.rd |= self.extra['A'] | self.extra['B'] | self.extra['C']
            return
        if mn.startswith('v_'):
            self.kind = 'valu'
            if base in TRANS: self.extra['trans'] = True
            if 'dpp' in mn or re.search(r'\b(row_|quad_perm|wave_|row_bcast|row_mirror|row_half_mirror)', rest): self.extra['dpp'] = True
            if 'sdwa' in mn or 'op_sel' in rest or 'dst_sel' in rest: self.extra['opsel'] = True
            if base.startswith('v_cmpx'):
                self.wr |= R(ops[0]); self.wr.add(('exec', 0))
                for o in ops[1:]: self.rd |= R(o)
            elif base.startswith('v_cmp'):
                self.wr |= R(ops[0])
                for o in ops[1:]: self.rd |= R(o)
            elif base.startswith('v_permlane') or base == 'v_swap_b32':
                self.extra['permlane'] = base.startswith('v_permlane')
                for o in ops[:2]: self.wr |= R(o); self.rd |= R(o)
            elif base in ('v_add_co_u32', 'v_sub_co_u32', 'v_subrev_co_u32', 'v_addc_co_u32', 'v_subb_co_u32', 'v_mad_u64_u32', 'v_div_scale_f32'):
                self.wr |= R(ops[0]) | R(ops[1])
                for o in ops[2:]: self.rd |= R(o)
            else:
                self.wr |= R(ops[0])
                for o in ops[1:]: self.rd |= R(o)
                if base in ('v_fmac_f32', 'v_pk_fmac_f16', 'v_dot2c_f32_bf16', 'v_dot2c_f32_f16', 'v_writelane_b32', 'v_fmac_f16') or self.extra.get('dpp') or 'UNUSED_PRESERVE' in rest:
                    self.rd |= R(ops[0])
                if base in ('v_readlane_b32', 'v_readfirstlane_b32'):
                    self.extra['readlane'] = True
                    if base == 'v_readlane_b32': self.extra['lanesel'] = R(ops[2])
                if base == 'v_writelane_b32': self.extra['lanesel'] = R(ops[2])
                if base == 'v_cndmask_b32' and len(ops) == 3: self.rd.add(('vcc', 0))
                if base.startswith('v_dot'): self.extra['dot'] = base
            return
        if mn.startswith('ds_'):
            self.kind = 'ds'
            mo = re.search(r'offset:(-?\d+)', rest)
            if mo: assert 0 <= int(mo.group(1)) <= 65535, 'bad ds offset: ' + text
            for mo in re.finditer(r'offset[01]:(\d+)', rest): assert int(mo.group(1)) <= 255, 'bad ds offset: ' + text
            if 'd16' in mn and mn.startswith('ds_read'): self.rd |= R(ops[0])
            if mn.startswith('ds_write') or mn.startswith('ds_add') and 'rtn' not in mn:
                for o in ops: self.rd |= R(o)
            else:
                self.wr |= R(ops[0])
                for o in ops[1:]: self.rd |= R(o)
            return
        if mn.startswith('buffer_') or mn.startswith('global_') or mn.startswith('flat_'):
            self.kind = 'vmem'
            mo = re.search(r'offset:(-?\d+)', rest)
            if mo:
                ov = int(mo.group(1))
                assert (0 <= ov <= 4095) if mn.startswith('buffer_') else (-4096 <= ov <= 4095), 'bad offset: ' + text
            lds = bool(re.search(r'\blds\b', rest)) or '_lds_' in mn
            if lds: self.extra['ldsdma'] = True; self.rd.add(('m0', 0))
            if mn in ('buffer_inv', 'buffer_wbl2'): return
            if 'store' in mn or lds or ('atomic' in mn and 'sc0' not in rest):
                for o in ops: self.rd |= R(o)
                if 'store' in mn and ('x3' in mn or 'x4' in mn):
                    di = 0 if mn.startswith('buffer_') else 1
                    self.extra['wide_store'] = R(ops[di])
            elif 'atomic' in mn:
                for o in ops: self.rd |= R(o)
                self.wr |= R(ops[0])
            else:
                self.wr |= R(ops[0])
                for o in ops[1:]: self.rd |= R(o)
            return
        raise ValueError('unknown instruction: ' + text)

def is_vgpr(r): return r[0] in ('v', 'a')
def is_sgpr(r): return r[0] in ('s', 'vcc')

def need(p, c):
    n = 0
    pv = {r for r in p.wr if is_vgpr(r)}
    ps = {r for r in p.wr if is_sgpr(r)}
    if p.kind == 'valu':
        if c.kind == 'mfma' and pv & c.rd: n = max(n, 3 if p.extra.get('dot') else 2)
        if c.kind == 'valu':
            if p.extra.get('trans') and not c.extra.get('trans') and pv & c.rd: n = max(n, 1)
            if p.extra.get('trans') and pv & c.rd: n = max(n, 1)
            if p.extra.get('opsel') and pv & (c.rd | c.wr): n = max(n, 1)
            if c.extra.get('dpp') and pv & c.rd: n = max(n, 2)
            if c.extra.get('permlane') and pv & c.rd: n = max(n, 2)
            if c.extra.get('readlane') and pv & c.rd: n = max(n, 1)
            if ps & c.rd: n = max(n, 2)
            if c.extra.get('lanesel') and ps & c.extra['lanesel']: n = max(n, 4)
            if ('exec', 0) in p.wr:
                if c.extra.get('dpp'): n = max(n, 5)
                if c.extra.get('readlane') or c.extra.get('permlane') or c.extra.get('lanesel'): n = max(n, 4)
                if ('exec', 0) in c.rd: n = max(n, 2)
            if p.extra.get('dot') and pv & (c.rd | c.wr):
                if not (c.extra.get('dot') == p.extra['dot'] and not (pv & (c.rd - c.wr))): n = max(n, 3)
        if c.kind in ('vmem', 'ds') and p.extra.get('dot') and pv & c.rd: n = max(n, 3)
        if c.kind == 'vmem' and ps & c.rd: n = max(n, 5)
        if c.kind == 'mfma' and ('exec', 0) in p.wr: n = max(n, 4)
        if c.kind == 'branch' and (ps | (p.wr & {('exec', 0)})) & c.rd: n = max(n, 5)
        if c.kind in ('salu', 'smem') and ps & c.rd: n = max(n, 1)
    if p.kind == 'salu' and ('m0', 0) in p.wr and c.extra.get('ldsdma'): n = max(n, 1)
    if p.kind == 'vmem' and p.extra.get('wide_store') and (p.extra['wide_store'] & c.wr):
        n = max(n, 2 if c.kind in ('valu', 'mfma') else 1)
    if p.kind == 'mfma':
        cls, ps_ = p.extra['cls'], p.extra['passes']
        idx = {2: 0, 4: 1, 8: 2, 16: 3}[ps_]
        D = p.wr
        if c.kind == 'mfma':
            if D & (c.extra['A'] | c.extra['B']):
                n = max(n, [5, 8, 12, 20][idx] if cls == 'xdl' else [4, 6, 10, 18][idx])
            if D & c.extra['C']:
                exact = (c.extra['Ctext'] == p.extra['Dtext'] and c.extra['passes'] == ps_ and c.extra['cls'] == cls)
                if exact: n = max(n, [2, 0, 0, 0][idx])
                elif cls == 'xdl': n = max(n, [4, 6, 10, 18][idx])
                else: n = max(n, [2, 4, 8, 16][idx])
            elif D & c.wr:
                n = max(n, [5, 8, 12, 20][idx])
        elif c.kind in ('valu', 'vmem', 'ds'):
            if D & (c.rd | c.wr):
                n = max(n, [5, 8, 12, 20][idx] if cls == 'xdl' else [4, 6, 10, 18][idx])
        if cls == 'xdl' and c.kind == 'valu' and (p.extra['C'] & c.wr):
            n = max(n, [1, 3, 7, 15][idx])
    return n

MAXWS = 20

def depack(line):
    m = re.match(r'(v_pk_(add|mul|fma)_f32)\s+(.*)$', line)
    if not m: return [line]
    op = m.group(2); rest = m.group(3)
    mods = dict(re.findall(r'(op_sel_hi|op_sel|neg_lo|neg_hi):\[([\d,]+)\]', rest))
    rest = re.sub(r'\s+(op_sel_hi|op_sel|neg_lo|neg_hi):\[[\d,]+\]', '', rest)
    ops = split_ops(rest); n = len(ops) - 1
    gl = lambda k, d: [int(x) for x in mods[k].split(',')] if k in mods else [d] * n
    sel = [gl('op_sel', 0), gl('op_sel_hi', 1)]; neg = [gl('neg_lo', 0), gl('neg_hi', 0)]
    def half(o, h):
        mm = re.match(r'([vs])\[(\d+):(\d+)\]', o)
        if mm: return '%s%d' % (mm.group(1), int(mm.group(2)) + h)
        return o
    out = []
    for h in range(2):
        srcs = [('-' if neg[h][i] else '') + half(ops[1 + i], sel[h][i]) for i in range(n)]
        out.append((half(ops[0], h), srcs))
    if any(s.lstrip('-') == out[0][0] for s in out[1][1]): out = out[::-1]
    assert not any(s.lstrip('-') == out[0][0] for s in out[1][1]), line
    res = []
    for d, srcs in out:
        if op == 'add' and srcs[1].startswith('-') and not srcs[0].startswith('-'):
            s1 = srcs[1][1:]
            res.append(f"v_subrev_f32 {d}, {s1}, {srcs[0]}" if s1.startswith('s') else f"v_sub_f32 {d}, {srcs[0]}, {s1}")
        elif op in ('add', 'mul') and not srcs[1].startswith('v'):
            res.append(f"v_{op}_f32 {d}, {srcs[1]}, {srcs[0]}")
        else:
            res.append(f"v_{op}_f32 {d}, " + ', '.join(srcs))
    return res

class Prog:
    nopk = False
    def __init__(self):
        self.ins = []
    def __call__(self, text):
        for line in text.split('\n'):
            line = line.strip()
            if not line or line.startswith(';'): continue
            for l2 in (depack(line) if self.nopk else [line]): self.ins.append(Ins(l2))
    def label(self, name): self(name + ':')
    def fix_hazards(self):
        changed = True; total = 0
        while changed:
            changed = False
            ins = self.ins
            labels = {x.label: i for i, x in enumerate(ins) if x.label}
            srcs = {}
            for i, x in enumerate(ins):
                if x.kind == 'branch' and x.target in labels: srcs.setdefault(labels[x.target], []).append(i)
            out = []
            inserts = {}
            for i, c in enumerate(ins):
                if c.kind in ('label', 'directive', 'nop', 'end'): continue
                worst = 0
                stack = [(i - 1, 0)]
                seen = set()
                while stack:
                    j, dist = stack.pop()
                    while j >= 0 and dist < MAXWS:
                        if (j, dist) in seen: break
                        seen.add((j, dist))
                        p = ins[j]
                        if p.kind == 'label':
                            for s in srcs.get(j, []): stack.append((s, dist))
                            k = j - 1
                            while k >= 0 and ins[k].kind in ('directive',): k -= 1
                            if k >= 0 and (ins[k].mn == 's_branch' or ins[k].kind == 'end'): break
                            j -= 1; continue
                        if p.kind == 'end': break
                        n = need(p, c) if p.kind in ('valu', 'mfma', 'salu', 'vmem') else 0
                        if n > dist: worst = max(worst, n - dist)
                        dist += p.ws + inserts.get(j, 0)
                        j -= 1
                if worst:
                    inserts[i] = worst
            if inserts:
                new = []
                for i, x in enumerate(ins):
                    w = inserts.get(i, 0)
                    while w > 0:
                        k = min(w, 16)
                        new.append(Ins('s_nop %d' % (k - 1))); w -= k; total += 1
                    new.append(x)
                self.ins = new
                changed = True
        return total
    def text(self):
        return '\n'.join((x.text if x.kind in ('label', 'directive') else '    ' + x.text) for x in self.ins) + '\n'

class Regs:
    def __init__(self, pfx, lo, hi):
        self.pfx = pfx; self.free_ = set(range(lo, hi)); self.hi_used = lo
    def alloc(self, n=1, align=1):
        for b in sorted(self.free_):
            if b % align == 0 and all((b + i) in self.free_ for i in range(n)):
                for i in range(n): self.free_.discard(b + i)
                self.hi_used = max(self.hi_used, b + n)
                return b
        raise RuntimeError('out of %s regs (n=%d)' % (self.pfx, n))
    def free(self, b, n=1):
        for i in range(n): self.free_.add(b + i)

def vr(b, n=1, p='v'):
    return '%s%d' % (p, b) if n == 1 else '%s[%d:%d]' % (p, b, b + n - 1)
def sr(b, n=1): return vr(b, n, 's')

def kernel_desc(name, vgpr, sgpr=102, accum=None):
    if accum is None: accum = (vgpr + 3) // 4 * 4
    return f""".amdhsa_kernel {name}
  .amdhsa_next_free_vgpr {vgpr}
  .amdhsa_next_free_sgpr {sgpr}
  .amdhsa_accum_offset {accum}
  .amdhsa_group_segment_fixed_size 0
  .amdhsa_kernarg_size 136
  .amdhsa_user_sgpr_count 2
  .amdhsa_user_sgpr_kernarg_segment_ptr 1
  .amdhsa_system_sgpr_workgroup_id_x 1
  .amdhsa_float_denorm_mode_32 3
  .amdhsa_float_denorm_mode_16_64 3
.end_amdhsa_kernel
"""
```

```python
from asmlib import *
import math
from collections import deque

class Cnt:
    def __init__(self, p, name, cap):
        self.p = p; self.name = name; self.cap = cap; self.ops = []; self.done = 0
    def issue(self, tag): self.ops.append(tag)
    def wait(self, tag):
        idx = max((i for i, t in enumerate(self.ops) if t == tag), default=-1)
        assert idx >= 0, ('wait for never-issued', tag)
        if idx < self.done: return
        n = min(len(self.ops) - 1 - idx, self.cap)
        self.p(f"s_waitcnt {self.name}({n})")
        self.done = len(self.ops) - n
    def wait_all(self):
        self.p(f"s_waitcnt {self.name}(0)"); self.done = len(self.ops)

def role_A(p, vgen, G):
    S_WAVE, S_TAGA, S_TAGB = G.S_WAVE, G.S_TAGA, G.S_TAGB
    f32 = G.f32; cfg = G.cfg; stamp = G.stamp; srd = G.srd; PTR = G.PTR
    REGS = 20480; NU = 10
    NXP = cfg.nxp
    V = Regs('v', 4, 256); a = V.alloc
    lane = 1
    vm = Cnt(p, 'vmcnt', 63); lg = Cnt(p, 'lgkmcnt', 15)
    vm.issue('cpf'); vm.issue('gen')
    t0 = a(); t1 = a(); t2 = a(); t3 = a()
    S2 = a(12, 4)
    CFR = S2; vA = S2 + 8
    TG = S2 + 2; FL = S2 + 4; vB2o = S2 + 6; vOo = S2 + 8; vSo = S2 + 9; vSw = S2 + 10; vSr = S2 + 11; vH = [S2, S2 + 1]
    vW2o = a(2); vHo = a(); vABo = a()
    X = a(128, 4)
    vXr = a(4, 2); vXo = a(4); vWo = a(2); AB_ = a(4, 4)
    vT = vXr; vFo = vXr + 2
    ACC = a(64, 4); FR = a(24, 4)
    if cfg.prio: p(f"s_setprio {cfg.prio}")
    p(f"""s_sub_u32 s60, s2, 256
    s_and_b32 s61, s60, 7
    s_lshr_b32 s62, s60, 3""")
    srd(p, 8, 0, 2048 * 1024)
    srd(p, 12, 10, 512 * 3584)
    p(f"""s_mul_i32 s71, s{S_WAVE}, {REGS}
    v_lshrrev_b32 v{t0}, 3, v{lane}
    v_and_b32 v{t1}, 7, v{lane}
    v_mul_u32_u24 v{vWo}, 3584, v{t0}
    v_bfe_u32 v{t2}, v{lane}, 4, 1
    v_lshlrev_b32 v{t2}, 2, v{t2}
    v_xor_b32 v{t2}, v{t1}, v{t2}
    v_lshl_add_u32 v{vWo}, v{t2}, 4, v{vWo}
    v_add_u32 v{vWo+1}, {8*3584 - 1024}, v{vWo}
    s_cmp_ge_u32 s62, 28
    s_cbranch_scc1 L_a_nog1""")
    p(f"""s_mul_i32 s63, s62, 37
    s_lshr_b32 s63, s63, 8
    s_mul_i32 s64, s63, 7
    s_sub_u32 s64, s62, s64
    s_lshr_b32 s65, s61, 1
    s_lshl_b32 s65, s65, 2
    s_add_u32 s63, s63, s65
    s_and_b32 s65, s61, 1
    s_mul_i32 s65, s65, 7
    s_add_u32 s64, s64, s65
    v_lshrrev_b32 v{t2}, 4, v{lane}
    v_xor_b32 v{t2}, v{t1}, v{t2}
    v_lshlrev_b32 v{t2}, 4, v{t2}
    v_lshl_add_u32 v{vXo}, v{t0}, 10, v{t2}
    v_xor_b32 v{vXo+1}, 64, v{vXo}
    v_add_u32 v{vXo+1}, {7168}, v{vXo+1}
    v_add_u32 v{vXo+2}, {2*7168}, v{vXo}
    v_add_u32 v{vXo+3}, {2*7168}, v{vXo+1}
    s_lshl_b32 s68, s63, 17
    s_lshl_b32 s65, s{S_WAVE}, 15
    s_add_u32 s68, s68, s65
    s_add_u32 s69, s62, s61
    s_and_b32 s69, s69, {7 if cfg.rot else 0}
    s_lshl_b32 s65, s69, 7
    s_add_u32 s77, s68, s65
    s_mul_i32 s70, s{S_WAVE}, {16*3584}
    s_lshl_b32 s65, s64, 8
    s_add_u32 s70, s70, s65""")
    def xr(kc, sg): return X + (kc * 4 + sg) * 4
    SK = 18
    hi = deque(); lo = deque()
    def pump(n, nlo=0):
        k = 0
        while k < n and hi: hi.popleft()(); k += 1
        while nlo > 0 and lo: lo.popleft()(); nlo -= 1
    def drain_q():
        while hi: hi.popleft()()
        while lo: lo.popleft()()
    unit_of = {}
    free_units = deque(range(2 * NXP, NU))
    pend = deque([('w1', t) for t in range(16)])
    def g2_phys(k): return 2 * k if k < 14 else 2 * (k - 14) + 1
    sk_done = set()
    def dma_item(item, u, cnt):
        kind, t = item
        unit_of[item] = u
        def f():
            if kind == 'w1':
                phi, kc = t >> 3, t & 7
                if kc not in sk_done:
                    sk_done.add(kc)
                    p(f"""s_xor_b32 s65, s69, {kc}
                    s_mul_i32 s65, s65, {64*3584}
                    s_add_u32 s{SK+kc}, s65, s70""")
                else:
                    p(f"s_add_u32 s{SK+kc}, s{SK+kc}, 128")
                p(f"""s_add_u32 m0, s71, {u*2048}
                buffer_load_dwordx4 v{vWo}, s[12:15], s{SK+kc} offen lds
                buffer_load_dwordx4 v{vWo+1}, s[12:15], s{SK+kc} offen offset:1024 lds""")
            else:
                p(f"""s_add_u32 m0, s71, {u*2048}
                s_add_u32 s65, s73, {g2_phys(t)*8192}
                buffer_load_dwordx4 v{vHo}, s[4:7], s65 offen sc1 lds
                buffer_load_dwordx4 v{vHo}, s[4:7], s65 offen offset:1024 sc1 lds""")
            cnt.issue(item); cnt.issue(item)
        return [f]
    def refill(q, cnt):
        while free_units and pend:
            for f in dma_item(pend.popleft(), free_units.popleft(), cnt): q.append(f)
    def dma_x(t):
        out = []
        for h in range(2):
            def f(h=h):
                p(f"s_add_u32 m0, s71, {(t % NXP)*4096}")
                p(f"s_xor_b32 s65, s77, {t*128}")
                for i in range(2 * h, 2 * h + 2):
                    p(f"buffer_load_dwordx4 v{vXo+i}, s[8:11], s65 offen offset:{i*1024} lds")
                    vm.issue(('x', t))
            out.append(f)
        return out
    for t in range(NXP):
        for f in dma_x(t): f()
        for f in dma_item(pend.popleft(), free_units.popleft(), vm): f()
    refill(hi, vm); drain_q()
    def g2_setup():
        srd(p, 56, 14, 2048 * 1024)
        p(f"""s_lshl_b32 s78, s61, 2
        s_lshr_b32 s65, s62, 3
        s_add_u32 s78, s78, s65
        s_and_b32 s79, s62, 7
        s_lshr_b32 s66, s{S_WAVE}, 1
        s_and_b32 s67, s{S_WAVE}, 1
        s_mul_i32 s73, s79, {112*2048}
        s_lshl_b32 s65, s{S_WAVE}, 11
        s_add_u32 s73, s73, s65
        s_add_u32 s73, s73, {G.W2P}
        v_lshlrev_b32 v{vHo}, 4, v{lane}
        s_lshl_b32 s65, s67, 10
        v_add_u32 v{vW2o}, s65, v{vHo}
        v_xor_b32 v{vW2o+1}, 0x400, v{vW2o}""")
    def va_setup(dst):
        p(f"""v_lshrrev_b32 v{t0}, 5, v{lane}
        v_lshlrev_b32 v{t0}, 10, v{t0}
        v_bfe_u32 v{t1}, v{lane}, 2, 2
        v_lshl_add_u32 v{t0}, v{t1}, 7, v{t0}
        v_bfe_u32 v{t1}, v{lane}, 4, 1
        v_lshl_add_u32 v{t0}, v{t1}, 5, v{t0}
        v_and_b32 v{t1}, 3, v{lane}
        v_lshl_add_u32 v{t0}, v{t1}, 3, v{t0}
        v_bfe_u32 v{t1}, v{lane}, 3, 1
        v_lshl_add_u32 v{dst}, v{t1}, 6, v{t0}""")
    g2_setup()
    va_setup(vA)
    p(f"""v_xor_b32 v{vA+1}, 64, v{vA}
    v_add_u32 v{vA+2}, {REGS}, v{vA}
    v_add_u32 v{vA+3}, {REGS}, v{vA+1}
    v_and_b32 v{t0}, 31, v{lane}
    v_lshlrev_b32 v{vABo}, 4, v{t0}
    v_bfe_u32 v{t1}, v{lane}, 1, 3
    v_lshrrev_b32 v{t2}, 5, v{lane}
    v_xor_b32 v{t1}, v{t1}, v{t2}
    v_lshlrev_b32 v{t1}, 4, v{t1}
    v_lshl_add_u32 v{t1}, v{t0}, 7, v{t1}
    v_add_u32 v{vXr}, s71, v{t1}
    v_xor_b32 v{vXr+1}, 32, v{vXr}
    v_xor_b32 v{vXr+2}, 64, v{vXr}
    v_xor_b32 v{vXr+3}, 96, v{vXr}
    s_lshr_b32 s72, s68, 6
    s_add_u32 s72, s72, {G.AB}
    s_lshl_b32 s76, s64, 11
    s_add_u32 s76, s76, {G.CF}""")
    def acc(phi, mu): return ACC + (phi * 2 + mu) * 16
    PF = 2
    def rd_frag(n, mus=(0, 1)):
        t, sg = n >> 2, n & 3
        b = FR + (n % 3) * 8
        u = unit_of[('w1', t)]
        for mu in mus:
            for rho in range(2):
                p(f"ds_read_b64_tr_b16 {vr(b + mu*4 + rho*2, 2)}, v{vA + (sg&1)*2 + mu} offset:{(sg>>1)*2*REGS + u*2048 + rho*512}")
                lg.issue(('fr', n))
    def x_drain(t):
        out = []
        for h in range(2):
            def r(h=h):
                if h == 0: vm.wait(('x', t))
                for sg in range(2 * h, 2 * h + 2):
                    p(f"ds_read_b128 {vr(xr(t,sg),4)}, v{vXr+sg} offset:{(t % NXP)*4096}")
                    lg.issue(('xr', t) if h else ('xr0', t))
            out.append(r)
        return out
    def x_next(t):
        def w():
            lg.wait(('xr', t))
            if t + NXP < 8:
                for f in dma_x(t + NXP): hi.append(f)
            else:
                free_units.append((t % NXP) * 2); free_units.append((t % NXP) * 2 + 1)
                refill(hi, vm)
        return w
    C1 = -2 * 0.7978845608028654 * G.LOG2E; C2 = C1 * 0.044715
    K1 = vXo; K2 = vXo + 1; IA = vXo + 2
    def ld_cf(phi, withab):
        if withab: p(f"buffer_load_dwordx4 {vr(AB_,4)}, v{vABo}, s[4:7], s72 offen sc1")
        for mu in range(2):
            p(f"buffer_load_dwordx4 {vr(CFR+4*mu,4)}, v{vABo}, s[4:7], s76 offen offset:{phi*1024 + mu*512} sc1")
    def corr(phi):
        p(f"s_mov_b32 s69, 0\nL_a_cfpoll{phi}:")
        vm.wait(('cf', phi))
        p(f"""v_xor_b32 v{t0}, s{S_TAGA}, v{CFR+3}
        v_xor_b32 v{t1}, s{S_TAGA}, v{CFR+7}""")
        if phi == 0: p(f"v_xor_b32 v{t2}, s{S_TAGA}, v{AB_+3}\n v_or3_b32 v{t0}, v{t0}, v{t1}, v{t2}")
        else: p(f"v_or_b32 v{t0}, v{t0}, v{t1}")
        p(f"""v_cmp_ne_u32 vcc, 0, v{t0}
        s_add_u32 s69, s69, 1
        s_cmp_eq_u64 vcc, 0
        s_cbranch_scc1 L_a_cfok{phi}
        s_cmp_ge_u32 s69, {G.SPIN_MAX}
        s_cbranch_scc1 L_a_cfok{phi}
        s_sleep 1""")
        ld_cf(phi, phi == 0)
        p(f"""s_waitcnt vmcnt(0)
        s_branch L_a_cfpoll{phi}
L_a_cfok{phi}:
        v_mov_b32 v{CFR+3}, 0
        v_mov_b32 v{CFR+7}, 0""")
        if phi == 0:
            p(f"""v_and_b32 v{IA}, 0xffff0000, v{AB_+1}
            v_lshlrev_b32 v{t0}, 16, v{AB_+2}
            v_add_f32 v{IA}, v{IA}, v{t0}
            v_rcp_f32 v{t0}, v{IA}
            v_mov_b32 v{AB_+3}, 0
            s_mov_b32 s74, 0
            s_mov_b32 s75, -1
            s_mov_b64 exec, s[74:75]
            v_mov_b32 v{AB_}, 0
            v_mov_b32 v{AB_+1}, 0
            v_mov_b32 v{AB_+2}, 0
            s_mov_b64 exec, -1
            v_mul_f32 v{K1}, {f32(C1)}, v{t0}
            v_mul_f32 v{t1}, v{t0}, v{t0}
            v_mul_f32 v{t1}, v{t1}, v{t0}
            v_mul_f32 v{K2}, {f32(C2)}, v{t1}
            s_lshl_b32 s72, s63, 2
            s_add_u32 s72, s72, s{S_WAVE}
            s_mul_i32 s72, s72, {112*1024}
            s_lshl_b32 s65, s64, 13
            s_add_u32 s72, s72, s65
            s_add_u32 s72, s72, {G.HB}""")
        else:
            p("s_add_u32 s72, s72, 4096")
        for mu in range(2):
            p(f"v_mfma_f32_32x32x16_bf16 {vr(acc(phi,mu),16)}, {vr(CFR+4*mu,4)}, {vr(AB_,4)}, {vr(acc(phi,mu),16)}")
    GT = X
    def gelu_ops(phi):
        ops = []
        quarters = [(mu, q) for mu in range(2) for q in range(4)]
        for k, (mu, q) in enumerate(quarters):
            tm = GT + (k & 1) * 4; ac = acc(phi, mu) + 4 * q; ho = GT + 8 + ((k >> 1) & 1) * 4
            L = []
            for j in range(4): L.append(f"v_mul_f32 v{tm+j}, v{ac+j}, v{ac+j}")
            for j in range(4): L.append(f"v_fma_f32 v{tm+j}, v{tm+j}, v{K2}, v{K1}")
            for j in range(4): L.append(f"v_mul_f32 v{tm+j}, v{tm+j}, v{ac+j}")
            for j in range(4): L.append(f"v_exp_f32 v{tm+j}, v{tm+j}")
            for j in range(4): L.append(f"v_fma_f32 v{tm+j}, v{tm+j}, v{IA}, v{IA}")
            for j in range(4): L.append(f"v_rcp_f32 v{tm+j}, v{tm+j}")
            for j in range(4): L.append(f"v_mul_f32 v{tm+j}, v{tm+j}, v{ac+j}")
            for j in range(2): L.append(f"v_cvt_pk_bf16_f32 v{ho + (q&1)*2 + j}, v{tm+2*j}, v{tm+2*j+1}")
            for l in L: ops.append(lambda l=l: p(l))
            if q & 1:
                def st(mu=mu, q=q, ho=ho):
                    p(f"buffer_store_dwordx4 {vr(ho,4)}, v{vHo}, s[4:7], s72 offen offset:{mu*2048 + (q>>1)*1024} sc1")
                    vm.issue(('hst', phi))
                ops.append(st)
        return ops
    def flag(phi, cnt, tg):
        p(f"""v_mov_b32 v{tg}, s{S_TAGA}
        v_mov_b32 v{tg+1}, s{S_TAGB}
        s_lshl_b32 s65, s60, 2
        s_add_u32 s65, s65, s{S_WAVE}
        s_lshl_b32 s65, s65, 6
        s_add_u32 s65, s65, {G.HFLAG + phi*G.HFLAG1}
        v_mov_b32 v{t0}, 0
        s_mov_b64 exec, 1
        buffer_store_dwordx2 {vr(tg,2)}, v{t0}, s[4:7], s65 offen sc1
        s_mov_b64 exec, -1""")
        cnt.issue(('flag', phi))
    def lines(txt): return [(lambda l=l: p(l)) for l in txt.strip().split('\n')]
    vt_txt = f"""v_add_u32 v{vT}, s71, v{vW2o}
        v_add_u32 v{vT+1}, s71, v{vW2o+1}
        v_min_u32 v{t3}, 27, v{lane}
        v_lshrrev_b32 v{t2}, 1, v{t3}
        v_mul_u32_u24 v{vFo}, 37, v{t2}
        v_lshrrev_b32 v{vFo}, 8, v{vFo}
        v_mul_u32_u24 v{vFo+1}, 7, v{vFo}
        v_sub_u32 v{t2}, v{t2}, v{vFo+1}
        s_lshr_b32 s28, s78, 1
        s_and_b32 s29, s28, 3
        s_mul_i32 s29, s29, 7
        v_add_u32 v{t2}, s29, v{t2}
        s_lshr_b32 s28, s28, 2
        s_lshl_b32 s28, s28, 1
        v_add_u32 v{vFo}, s28, v{vFo}
        v_lshl_add_u32 v{t2}, v{t2}, 3, v{vFo}
        s_and_b32 s28, s78, 1
        s_lshl_b32 s28, s28, 1
        v_and_b32 v{t3}, 1, v{t3}
        v_add_u32 v{t3}, s28, v{t3}
        v_lshl_add_u32 v{t2}, v{t2}, 2, v{t3}
        v_lshlrev_b32 v{vFo}, 6, v{t2}
        v_min_u32 v{t3}, 27, v{lane}
        s_lshl_b32 s28, s{S_WAVE}, 6
        v_lshl_add_u32 v{vFo+1}, v{t3}, 8, s28
        s_mul_i32 s30, s78, {2*112*1024}
        s_lshl_b32 s28, s{S_WAVE}, 10
        s_add_u32 s30, s30, s28
        s_add_u32 s30, s30, {G.HB}
        s_mul_i32 s31, s66, {112*1024}
        s_sub_u32 s32, {112*1024}, s31"""
    NK_R = cfg.nkr; NK_L = NU
    BLK = lambda i: X + 8 * i
    wblk = {k: BLK(2 + k) for k in range(NK_R)}
    isL = lambda k: NK_R <= k < NK_R + NK_L
    def rd_w2(k, dst, lgc, mds=(0, 1)):
        u = unit_of[('w2', k)]
        for md in mds:
            p(f"ds_read_b128 {vr(dst + md*4, 4)}, v{vT+md} offset:{u*2048}")
            lgc.issue(('w2r', k))
    def ld_w(k, r, cnt):
        p(f"s_add_u32 s65, s73, {g2_phys(k)*8192}")
        for md in range(2):
            p(f"buffer_load_dwordx4 {vr(r + md*4, 4)}, v{vW2o+md}, s[4:7], s65 offen sc1")
            cnt.issue(('w2', k))
    FLb = {0: (FL, G.HFLAG, vFo), 1: (FL, G.HFLAG + G.HFLAG1, vFo), 2: (t2, G.WFLAG, vFo + 1)}
    def poll_issue(phi, cnt):
        fl, base, va = FLb[phi]
        p(f"s_mov_b32 s65, {base}\n buffer_load_dwordx2 {vr(fl,2)}, v{va}, s[4:7], s65 offen sc1")
        cnt.issue(('poll', phi))
    def poll_check(phi, cnt, sfx=''):
        fl, base, va = FLb[phi]
        p(f"s_mov_b32 s69, 0\nL_a_hpoll{phi}{sfx}:")
        cnt.wait(('poll', phi))
        p(f"""v_xor_b32 v{t0}, s{S_TAGA}, v{fl}
        v_xor_b32 v{t1}, s{S_TAGB}, v{fl+1}
        v_or_b32 v{t0}, v{t0}, v{t1}
        v_cmp_ne_u32 vcc, 0, v{t0}
        s_add_u32 s69, s69, 1
        s_cmp_eq_u64 vcc, 0
        s_cbranch_scc1 L_a_hok{phi}{sfx}
        s_cmp_ge_u32 s69, {G.SPIN_MAX}
        s_cbranch_scc1 L_a_hok{phi}{sfx}
        s_mov_b32 s65, {base}
        buffer_load_dwordx2 {vr(fl,2)}, v{va}, s[4:7], s65 offen sc1
        s_waitcnt vmcnt(0)
        s_branch L_a_hpoll{phi}{sfx}
L_a_hok{phi}{sfx}:""")
    hblk = {}; nh = [0]; lim = [14]
    hfree = deque([FR, FR + 8, FR + 16] + [BLK(i) for i in range(2 + NK_R, 16)])
    WF = [hfree.pop(), hfree.pop()]
    def ld_h(k, r, cnt):
        p(f"s_add_u32 s65, s30, {g2_phys(k)*4096}")
        for nt in range(2):
            p(f"buffer_load_dwordx4 {vr(r + nt*4, 4)}, v{vH[nt]}, s[4:7], s65 offen sc1")
            cnt.issue(('h', k))
    def ld_h_all():
        while hfree and nh[0] < lim[0]:
            k = nh[0]
            needw = (k >= NK_R + NK_L and k not in wblk)
            r = hfree.popleft()
            if needw:
                wblk[k] = r
                hi.append(lambda k=k, r=r: ld_w(k, r, vm))
            else:
                nh[0] += 1; hblk[k] = r
                hi.append(lambda k=k, r=r: ld_h(k, r, vm))
    wl = [0]; wok = [False]
    def w_early(nblk):
        while wok[0] and wl[0] < NK_R and 2 + wl[0] < nblk:
            k = wl[0]; wl[0] += 1
            hi.append(lambda k=k: ld_w(k, wblk[k], vm))
    vh_txt = f"""v_add_u32 v{vH[0]}, s31, v{vHo}
        v_add_u32 v{vH[1]}, s32, v{vHo}"""
    vm.wait('gen')
    G.make_tags(p, vgen)
    for f in x_drain(0): f()
    stamp(p, 1)
    vm.wait(('w1', 0))
    p("s_barrier")
    for n in range(PF): rd_frag(n)
    x_next(0)()
    flagged = [False]
    for n in range(64):
        t, sg = n >> 2, n & 3
        phi, kc = t >> 3, t & 7
        if sg == 0 and t + 1 < 8:
            for f in x_drain(t + 1): hi.append(f)
        if sg == 2 and t + 1 < 8: hi.append(x_next(t + 1))
        if n == cfg.gstart - 8:
            def l0():
                ld_cf(0, True)
                for _ in range(3): vm.issue(('cf', 0))
            hi.append(l0)
        if n == 29:
            for f in lines(vt_txt): lo.append(f)
        if n == cfg.gstart:
            while lo: lo.popleft()()
            lo.append(lambda: corr(0))
            def l1():
                ld_cf(1, False)
                for _ in range(2): vm.issue(('cf', 1))
            for _ in range(4): lo.append(lambda: None)
            lo.append(l1)
            for f in gelu_ops(0): lo.append(f)
        if n == cfg.wpi: poll_issue(2, vm)
        if n == cfg.wpc:
            poll_check(2, vm); wok[0] = True
            for k in range(NK_R, NK_R + NK_L): pend.append(('w2', k))
        if phi == 1: w_early(2 * kc)
        if n == cfg.wpc: refill(hi, vm)
        m = n + PF
        if m < 64 and (m & 3) == 0:
            tn = m >> 2
            while vm.ops.count(('w1', tn)) < 2: pump(1)
            vm.wait(('w1', tn))
            p("s_barrier")
            if tn >= 2:
                free_units.append(unit_of[('w1', tn - 2)]); refill(hi, vm)
        if phi == 0 and sg == 0:
            while ('xr', t) not in lg.ops: pump(1)
            lg.wait(('xr', t))
        lg.wait(('fr', n))
        b = FR + (n % 3) * 8
        first = (kc == 0 and sg == 0)
        for mu in range(2):
            cc = '0' if first else vr(acc(phi, mu), 16)
            p(f"v_mfma_f32_32x32x16_bf16 {vr(acc(phi,mu),16)}, {vr(b+mu*4,4)}, {vr(xr(kc, sg),4)}, {cc}")
            if m < 64: rd_frag(m, (mu,))
            if hi: pump(1, max(0, cfg.glo - 3))
            else: pump(0, cfg.glo)
        if n >= cfg.fl0 and not lo and not flagged[0]:
            vm.wait(('hst', 0)); flag(0, vm, GT); flagged[0] = True
        if cfg.fine and sg == 3 and t % 2 == 1 and t < 15: stamp(p, 2 + t // 2)
    drain_q()
    if cfg.fine:
        stamp(p, 9)
        G.stamps_out(p, 10, ACC); p("s_endpgm\nL_a_nog1:\n s_endpgm"); return V.hi_used
    corr(1)
    if not flagged[0]:
        vm.wait(('hst', 0)); flag(0, vm, FR)
    p("s_barrier")
    stamp(p, 2)
    for tt in (14, 15): free_units.append(unit_of[('w1', tt)])
    refill(hi, vm)
    p(vh_txt)
    w_early(16)
    g1 = gelu_ops(1)
    for gi, g in enumerate(g1):
        if gi == len(g1) * cfg.p0i // 100: poll_issue(0, vm)
        if gi == len(g1) * cfg.p0c // 100: poll_check(0, vm); ld_h_all()
        g()
        if hi and gi % 4 == 0: hi.popleft()()
    drain_q()
    stamp(p, 3)
    p("s_branch L_a_g2")
    p("L_a_nog1:")
    vm2 = Cnt(p, 'vmcnt', 63); lg2 = Cnt(p, 'lgkmcnt', 15)
    p(f"""s_sub_u32 s63, s62, 28
    s_lshl_b32 s63, s63, 3
    s_add_u32 s63, s63, s61
    s_cmp_ge_u32 s63, 28
    s_cbranch_scc1 L_a_nocf
    s_mul_i32 s70, s{S_WAVE}, {128*3584}
    s_lshl_b32 s65, s63, 7
    s_add_u32 s70, s70, s65""")
    for u in range(8):
        p(f"""s_add_u32 m0, s71, {u*2048}
        buffer_load_dwordx4 v{vWo}, s[12:15], s70 offen lds
        buffer_load_dwordx4 v{vWo+1}, s[12:15], s70 offen offset:1024 lds
        s_add_u32 s70, s70, {16*3584}""")
        vm2.issue(('c', u)); vm2.issue(('c', u))
    SEL = X; ONE = X + 4; CB = X + 16; vb = X + 12; vj = X + 13; vq = X + 14
    srd(p, 52, 12, 1792 * 1024)
    p(f"""s_lshl_b32 s70, s63, 16
    s_lshl_b32 s28, s{S_WAVE}, 14
    s_add_u32 s70, s70, s28
    s_mov_b32 s28, s70
    v_lshlrev_b32 v{t1}, 4, v{lane}""")
    for i in range(16):
        if i and i % 4 == 0: p("s_add_u32 s28, s28, 4096")
        p(f"buffer_load_dwordx4 {vr(ACC + i*4,4)}, v{t1}, s[52:55], s28 offen offset:{(i%4)*1024}")
        vm2.issue('touch')
    p(f"""v_lshl_add_u32 v{t0}, v{lane}, 1, s65
    global_load_ushort v{vb}, v{t0}, {sr(PTR(11),2)}""")
    vm2.issue('b1')
    va_setup(vA)
    p(f"""v_add_u32 v{vA}, s71, v{vA}
    v_xor_b32 v{vA+1}, 64, v{vA}
    v_and_b32 v{vj}, 15, v{lane}
    v_lshrrev_b32 v{vq}, 4, v{lane}
    v_xor_b32 v{t0}, v{vq}, v{vj}
    v_and_b32 v{t0}, 1, v{t0}
    v_cmp_eq_u32 vcc, 0, v{t0}
    v_mov_b32 v{t1}, 0x3f803f80
    v_cndmask_b32 v{SEL}, 0, v{t1}, vcc
    v_mov_b32 v{SEL+1}, v{SEL}
    v_mov_b32 v{SEL+2}, v{SEL}
    v_mov_b32 v{SEL+3}, v{SEL}""")
    for u in range(8):
        vm2.wait(('c', u))
        for mu in range(2):
            for rho in range(2):
                p(f"ds_read_b64_tr_b16 {vr(CB + u*8 + mu*4 + rho*2, 2)}, v{vA+mu} offset:{u*2048 + rho*512}")
                lg2.issue(('cr', u))
    for u in range(8):
        lg2.wait(('cr', u))
        for mu in range(2):
            cc = '0' if u == 0 else vr(ONE + 4 * mu, 4)
            p(f"v_mfma_f32_16x16x32_bf16 {vr(ONE+4*mu,4)}, {vr(CB + u*8 + mu*4,4)}, {vr(SEL,4)}, {cc}")
    p(f"""v_lshlrev_b32 v{t0}, 6, v{vj}
    v_lshl_add_u32 v{t0}, v{vq}, 4, v{t0}
    v_add_u32 v{t0}, s71, v{t0}
    s_mov_b32 s74, 0x00030003
    s_mov_b32 s75, 0x00030003
    s_mov_b64 exec, s[74:75]
    ds_write_b128 v{t0}, {vr(ONE,4)} offset:{8*2048}
    ds_write_b128 v{t0}, {vr(ONE+4,4)} offset:{8*2048+128}
    s_mov_b64 exec, -1
    v_lshlrev_b32 v{t0}, 2, v{lane}
    v_add_u32 v{t1}, {2*REGS}, v{t0}
    s_waitcnt vmcnt(0) lgkmcnt(0)
    s_barrier
    ds_read_b32 v{CB}, v{t0} offset:{8*2048}
    ds_read_b32 v{CB+1}, v{t0} offset:{8*2048 + REGS}
    ds_read_b32 v{CB+2}, v{t1} offset:{8*2048}
    ds_read_b32 v{CB+3}, v{t1} offset:{8*2048 + REGS}""")
    G.make_tags(p, vgen)
    p(f"""s_waitcnt lgkmcnt(0)
    v_add_f32 v{CB}, v{CB}, v{CB+1}
    v_add_f32 v{CB+2}, v{CB+2}, v{CB+3}
    v_add_f32 v{CB}, v{CB}, v{CB+2}
    v_cvt_pk_bf16_f32 v{CB+1}, v{CB}, v{CB}
    v_and_b32 v{CB+2}, 0xffff0000, v{CB+1}
    v_sub_f32 v{CB+3}, v{CB}, v{CB+2}
    v_cvt_pk_bf16_f32 v{CB+4}, v{CB}, v{CB+3}
    v_and_b32 v{CB+1}, 0xffff, v{CB+1}
    v_lshl_or_b32 v{CB+5}, v{vb}, 16, v{CB+1}
    v_mov_b32 v{CB+6}, v{vb}
    v_mov_b32 v{CB+7}, s{S_TAGA}
    v_lshlrev_b32 v{t0}, 4, v{lane}
    s_lshl_b32 s65, s63, 10
    s_add_u32 s65, s65, {G.CF}
    s_cmp_lg_u32 s{S_WAVE}, 0
    s_cbranch_scc1 L_a_nocf2
    buffer_store_dwordx4 {vr(CB+4,4)}, v{t0}, s[4:7], s65 offen sc1
L_a_nocf2:
    s_barrier""")
    stamp(p, 1)
    vP = X + 8; vQ = X + 10
    p(f"""v_lshrrev_b32 v{t0}, 3, v{lane}
    v_lshlrev_b32 v{vP}, 10, v{t0}
    v_and_b32 v{t0}, 7, v{lane}
    v_bfe_u32 v{t1}, v{lane}, 4, 1
    v_lshlrev_b32 v{t1}, 1, v{t1}
    v_xor_b32 v{t0}, v{t0}, v{t1}
    v_lshl_add_u32 v{vP}, v{t0}, 4, v{vP}
    v_add_u32 v{vP+1}, 7168, v{vP}""")
    vm3 = Cnt(p, 'vmcnt', 63); lg3 = Cnt(p, 'lgkmcnt', 15)
    for db in range(8):
        p(f"""s_add_u32 m0, s71, {db*2048}
        s_add_u32 s65, s70, {db*128}
        buffer_load_dwordx4 v{vP}, s[52:55], s65 offen lds
        buffer_load_dwordx4 v{vP+1}, s[52:55], s65 offen offset:1024 lds""")
        vm3.issue(('d', db)); vm3.issue(('d', db))
    p(f"""v_lshrrev_b32 v{t2}, 5, v{lane}
    v_lshlrev_b32 v{t2}, 9, v{t2}
    v_bfe_u32 v{t3}, v{lane}, 2, 2
    v_lshl_add_u32 v{t2}, v{t3}, 7, v{t2}
    v_and_b32 v{t3}, 1, v{lane}
    v_lshl_add_u32 v{t2}, v{t3}, 6, v{t2}
    v_bfe_u32 v{t3}, v{lane}, 4, 1
    v_lshl_add_u32 v{t2}, v{t3}, 4, v{t2}
    v_bfe_u32 v{t3}, v{lane}, 1, 1
    v_lshl_add_u32 v{t2}, v{t3}, 3, v{t2}
    v_bfe_u32 v{t3}, v{lane}, 3, 1
    v_lshl_add_u32 v{t2}, v{t3}, 5, v{t2}
    v_add_u32 v{vQ}, s71, v{t2}
    v_xor_b32 v{vQ+1}, 32, v{vQ}
    v_lshlrev_b32 v{t0}, 4, v{lane}
    s_lshl_b32 s28, s63, 2
    s_add_u32 s28, s28, s{S_WAVE}
    s_lshl_b32 s29, s28, 11
    s_add_u32 s29, s29, {G.W2P}""")
    for db in range(8):
        vm3.wait(('d', db))
        for md in range(2):
            for rho in range(2):
                p(f"ds_read_b64_tr_b16 {vr(CB + db*8 + md*4 + rho*2, 2)}, v{vQ+md} offset:{db*2048 + rho*1024}")
                lg3.issue(('r', db))
    stamp(p, 2)
    for db in range(8):
        lg3.wait(('r', db))
        for md in range(2):
            p(f"buffer_store_dwordx4 {vr(CB + db*8 + md*4, 4)}, v{t0}, s[4:7], s29 offen offset:{md*1024} sc1")
        p(f"s_add_u32 s29, s29, {112*2048}")
    p(f"""v_mov_b32 v{vP}, s{S_TAGA}
    v_mov_b32 v{vP+1}, s{S_TAGB}
    s_lshl_b32 s28, s28, 6
    s_add_u32 s28, s28, {G.WFLAG}
    v_mov_b32 v{t1}, 0
    s_waitcnt vmcnt(0)
    s_mov_b64 exec, 1
    buffer_store_dwordx2 {vr(vP,2)}, v{t1}, s[4:7], s28 offen sc1
    s_mov_b64 exec, -1""")
    stamp(p, 3)
    p(f"""L_a_nocf:
    s_waitcnt vmcnt(0)""")
    G.make_tags(p, vgen)
    g2_setup()
    p(vt_txt); p(vh_txt)
    vm2 = Cnt(p, 'vmcnt', 63); lg2 = Cnt(p, 'lgkmcnt', 15)
    flag(0, vm2, TG)
    poll_issue(2, vm2); poll_check(2, vm2, 'i')
    for k in range(NK_R): ld_w(k, wblk[k], vm2)
    for (kind, k), u in sorted(unit_of.items()):
        if kind == 'w2':
            for f in dma_item(('w2', k), u, vm2): f()
    poll_issue(0, vm2); poll_check(0, vm2, 'i')
    for k in sorted(hblk): ld_h(k, hblk[k], vm2)
    vm2.wait_all()
    p("L_a_g2:")
    ACC2 = ACC
    for r, n in ((vXo, 4), (vWo, 2), (AB_, 4)): V.free(r, n)
    fin_txt = f"""v_and_b32 v{t2}, 31, v{lane}
    v_lshlrev_b32 v{vOo}, 10, v{t2}
    v_lshrrev_b32 v{t2}, 5, v{lane}
    v_lshl_add_u32 v{vOo}, v{t2}, 6, v{vOo}
    s_lshl_b32 s26, s78, 16
    s_lshl_b32 s28, s66, 15
    s_add_u32 s26, s26, s28
    s_lshl_b32 s29, s79, 7
    s_lshl_b32 s28, s67, 5
    s_add_u32 s29, s29, s28
    s_add_u32 s26, s26, s29
    v_lshl_add_u32 v{vB2o}, v{t2}, 6, s29
    v_lshrrev_b32 v{t2}, 3, v{lane}
    v_lshlrev_b32 v{vSo}, 13, v{t2}
    v_and_b32 v{t2}, 7, v{lane}
    v_lshl_add_u32 v{vSo}, v{t2}, 4, v{vSo}
    s_lshl_b32 s27, s79, 19
    s_lshl_b32 s28, s67, 17
    s_add_u32 s27, s27, s28
    s_lshl_b32 s28, s78, 8
    s_add_u32 s27, s27, s28
    s_lshl_b32 s28, s66, 7
    s_add_u32 s27, s27, s28
    s_add_u32 s27, s27, {G.ST}
    v_lshlrev_b32 v{vSw}, 3, v{lane}
    v_add_u32 v{vSw}, s71, v{vSw}
    v_lshrrev_b32 v{t2}, 5, v{lane}
    v_lshlrev_b32 v{t2}, 10, v{t2}
    v_bfe_u32 v{t3}, v{lane}, 2, 2
    v_lshl_add_u32 v{t2}, v{t3}, 6, v{t2}
    v_bfe_u32 v{t3}, v{lane}, 4, 1
    v_lshl_add_u32 v{t2}, v{t3}, 5, v{t2}
    v_and_b32 v{t3}, 3, v{lane}
    v_lshl_add_u32 v{t2}, v{t3}, 3, v{t2}
    v_add_u32 v{vSr}, s71, v{t2}"""
    for f in lines(fin_txt): lo.append(f)
    def ld_s(dst):
        for i in range(4):
            off = (i >> 1) * 32 * 8192 + (i & 1) * 8 * 8192
            r = dst[i >> 1] + (i & 1) * 4
            p(f"s_add_u32 s65, s27, {off}\n buffer_load_dwordx4 {vr(r,4)}, v{vSo}, s[4:7], s65 offen sc1")
    def a2(md, nt): return ACC2 + (nt * 2 + md) * 16
    def wsrc(k): return WF[k & 1] if isL(k) else wblk[k]
    def unpack_l(dst, src, n):
        out = []
        for q in range(n):
            out.append(f"v_lshlrev_b32 v{dst(2*q)}, 16, v{src+q}"); out.append(f"v_and_b32 v{dst(2*q+1)}, 0xffff0000, v{src+q}")
        return out
    KP = cfg.kpoll
    for k in range(28):
        if k == cfg.kfl1:
            vm.wait(('hst', 1)); flag(1, vm, TG)
            hfree.append(BLK(0)); hfree.append(BLK(1)); ld_h_all()
            stamp(p, 4)
        if k == KP:
            while hi: hi.popleft()()
            poll_issue(1, vm)
        if k == KP + 2:
            while hi: hi.popleft()()
            poll_check(1, vm); lim[0] = 28; ld_h_all()
            stamp(p, 5)
        pre = isL(k + 1)
        if pre:
            while vm.ops.count(('w2', k + 1)) < 2: hi.popleft()()
            vm.wait(('w2', k + 1))
        while vm.ops.count(('h', k)) < 2: hi.popleft()()
        vm.wait(('h', k))
        if isL(k): lg.wait(('w2r', k))
        else: vm.wait(('w2', k))
        j = 0
        for nt in (1, 0):
            for md in (1, 0):
                cc = '0' if k == 0 else vr(a2(md, nt), 16)
                p(f"v_mfma_f32_32x32x16_bf16 {vr(a2(md,nt),16)}, {vr(wsrc(k)+md*4,4)}, {vr(hblk[k] + nt*4, 4)}, {cc}")
                if pre and j < 2: rd_w2(k + 1, wsrc(k + 1), lg, (j,))
                if hi: pump(1, 1)
                else: pump(0, 4)
                j += 1
        hfree.append(hblk[k])
        if not isL(k): hfree.append(wblk[k])
        if k == NK_R + NK_L - 1: hfree.append(WF[0]); hfree.append(WF[1])
        ld_h_all()
        if k == cfg.ks:
            drain_q()
            assert nh[0] == 28 and len(hfree) >= 4, (nh, hfree)
            SG = [hfree.popleft(), hfree.popleft()]; XE = hfree.popleft(); B2E = hfree.popleft()
            p(f"""buffer_load_dwordx4 {vr(XE,4)}, v{vOo}, s[8:11], s26 offen
            buffer_load_dwordx4 {vr(XE+4,4)}, v{vOo}, s[8:11], s26 offen offset:16
            global_load_dwordx4 {vr(B2E,4)}, v{vB2o}, {sr(PTR(13),2)}
            global_load_dwordx4 {vr(B2E+4,4)}, v{vB2o}, {sr(PTR(13),2)} offset:16""")
            for _ in range(4): vm.issue('xe')
            ld_s(SG)
            for _ in range(4): vm.issue('s')
        if k == 25:
            assert len(hfree) >= 4
            XF = [hfree.popleft(), hfree.popleft()]; BF = [hfree.popleft(), hfree.popleft()]
            xf = lambda i: XF[i >> 3] + (i & 7); bfr = lambda i: BF[i >> 3] + (i & 7)
            lo.append(lambda: vm.wait('xe'))
            for l in unpack_l(xf, XE, 8) + unpack_l(bfr, B2E, 8): lo.append(lambda l=l: p(l))
    drain_q()
    stamp(p, 6)
    sgr = lambda i: SG[i >> 1] + (i & 1) * 4
    SV = hfree.popleft(); OUT = hfree.popleft()
    TMb = [hfree.popleft(), hfree.popleft()]; tm = lambda i: TMb[i >> 3] + (i & 7)
    SFb = [hfree.popleft(), hfree.popleft()]; sf = lambda i: SFb[i >> 3] + (i & 7)
    OWN = ACC2
    p(f"v_add_u32 v{t1}, s71, v{vHo}")
    for T in (3, 2, 1):
        for q in range(4): p(f"ds_write_b128 v{t1}, {vr(ACC2 + T*16 + 4*q, 4)} offset:{T*4096 + q*1024}")
    p(f"""s_mov_b32 s69, 0
L_a_spoll:
    s_waitcnt vmcnt(0)
    v_mov_b32 v{t2}, 0""")
    for i in range(4):
        p(f"""v_xor_b32 v{t0}, s{S_TAGA}, v{sgr(i)+2}
        v_xor_b32 v{t3}, s{S_TAGB}, v{sgr(i)+3}
        v_or3_b32 v{t2}, v{t2}, v{t0}, v{t3}""")
    p(f"""v_cmp_ne_u32 vcc, 0, v{t2}
    s_add_u32 s69, s69, 1
    s_cmp_eq_u64 vcc, 0
    s_cbranch_scc1 L_a_sok
    s_cmp_ge_u32 s69, {G.SPIN_MAX}
    s_cbranch_scc1 L_a_sok
    s_sleep 1""")
    ld_s(SG)
    p("s_branch L_a_spoll\nL_a_sok:")
    for i in range(4): p(f"ds_write_b64 v{vSw}, {vr(sgr(i),2)} offset:{i*512}")
    for q in range(4): p(f"ds_read_b64_tr_b16 {vr(SV+2*q,2)}, v{vSr} offset:{q*256}")
    for q in range(16): p(f"v_add_f32 v{OWN+q}, v{OWN+q}, v{bfr(q)}")
    for k in range(1, 4):
        p(f"""s_xor_b32 s65, s{S_WAVE}, {k}
        s_mul_i32 s65, s65, {REGS}
        v_add_u32 v{t0+k}, s65, v{vHo}""")
    p("s_waitcnt lgkmcnt(0)\n s_barrier")
    for k in range(1, 4):
        for q in range(4): p(f"ds_read_b128 {vr(ACC2 + k*16 + 4*q, 4)}, v{t0+k} offset:{k*4096 + q*1024}")
    for l in unpack_l(sf, SV, 8): p(l)
    for k in range(1, 4):
        p(f"s_waitcnt lgkmcnt({12 - 4*k})")
        for q in range(16): p(f"v_add_f32 v{OWN+q}, v{OWN+q}, v{ACC2+k*16+q}")
    for q in range(16): p(f"v_mul_f32 v{tm(q)}, {f32(-G.LOG2E)}, v{OWN+q}")
    for q in range(16): p(f"v_exp_f32 v{tm(q)}, v{tm(q)}")
    for q in range(16): p(f"v_mul_f32 v{OWN+q}, v{OWN+q}, v{sf(q)}")
    for q in range(16): p(f"v_add_f32 v{tm(q)}, 1.0, v{tm(q)}")
    for q in range(16): p(f"v_rcp_f32 v{tm(q)}, v{tm(q)}")
    for h in range(2):
        for q in range(8 * h, 8 * h + 8): p(f"v_fma_f32 v{OWN+q}, v{OWN+q}, v{tm(q)}, v{xf(q)}")
        for q in range(4 * h, 4 * h + 4): p(f"v_cvt_pk_bf16_f32 v{OUT+q}, v{OWN+2*q}, v{OWN+2*q+1}")
        p(f"buffer_store_dwordx4 {vr(OUT+4*h,4)}, v{vOo}, s[56:59], s26 offen offset:{16*h}")
    stamp(p, 7)
    G.stamps_out(p, 8, ACC2 + 16)
    p("s_endpgm")
    return V.hi_used
```

```python
from asmlib import *
import math
from collections import deque
from roleA import Cnt

XBL = 0; XCH = 4608
TT = 9216 + 16; TCH = 1344
KC = 12288; KCS = 4160; KCH = 8 * KCS
LNB = 81920 - 8192
EI = KC; ERS = 528; ECH = 53 * ERS + 48
assert EI + 2 * ECH <= LNB

def role_B(p, vgen, G):
    S_WAVE, S_TAGA, S_TAGB = G.S_WAVE, G.S_TAGA, G.S_TAGB
    f32 = G.f32; cfg = G.cfg; stamp = G.stamp; srd = G.srd; PTR = G.PTR; LOG2E = G.LOG2E
    V = Regs('v', 4, 256); a = V.alloc
    lane = 1
    vm = Cnt(p, 'vmcnt', 63); lg = Cnt(p, 'lgkmcnt', 15)
    vm.issue('cpf'); vm.issue('gen')
    t0 = a(); t1 = a(); t2 = a(); t3 = a()
    vL16 = a(); vLd = a(); vDk = a(); vi = a(); vg = a(); vXo = a(); vKW = a(2); vA = a(); vB = a()
    XA = a(4, 2); XB = a(4, 2); PR = a(6); PQ = a(4)
    srd(p, 8, 0, 2048 * 1024)
    p(f"""s_lshl_b32 s61, s2, 3
    s_lshl_b32 s62, s{S_WAVE}, 1
    s_add_u32 s61, s61, s62
    s_lshl_b32 s62, s61, 10
    v_lshlrev_b32 v{vL16}, 4, v{lane}
    buffer_load_dwordx4 {vr(XA,4)}, v{vL16}, s[8:11], s62 offen
    buffer_load_dwordx4 {vr(XB,4)}, v{vL16}, s[8:11], s62 offen offset:1024
    s_and_b32 s59, s2, 7
    s_lshl_b32 s59, s59, 5
    s_lshr_b32 s60, s2, 3
    s_add_u32 s59, s59, s60
    s_lshr_b32 s57, s{S_WAVE}, 1
    s_and_b32 s58, s{S_WAVE}, 1
    s_lshl_b32 s63, s59, 1
    s_add_u32 s63, s63, s57
    s_lshl_b32 s60, s63, 8
    s_lshl_b32 s62, s58, 7
    s_add_u32 s62, s62, s60
    v_lshl_add_u32 v{t0}, v{lane}, 1, s62
    v_xor_b32 v{t2}, 128, v{t0}
    s_lshl_b32 s60, s63, 1
    v_mov_b32 v{t1}, s60""")
    vm.issue('x'); vm.issue('x')
    for k in range(6):
        p(f"global_load_ushort v{PR+k}, v{t0}, {sr(PTR(1+k),2)}"); vm.issue('par')
    for k in range(4):
        p(f"global_load_ushort v{PQ+k}, v{t2}, {sr(PTR(3+k),2)}"); vm.issue('par')
    p(f"global_load_ushort v{vLd}, v{t1}, {sr(PTR(7),2)}"); vm.issue('par')
    p(f"global_load_ushort v{vDk}, v{t1}, {sr(PTR(8),2)}"); vm.issue('par')
    GA = a(15); aT = a(4); vEw = a(); vEr = a(2); vXw = a(); vXe = a(); vSo = a(); vLr = a(); vLw = a()
    p(f"""v_and_b32 v{vi}, 15, v{lane}
    v_lshrrev_b32 v{vg}, 4, v{lane}
    v_lshlrev_b32 v{t3}, 3, v0""")
    for e in range(0, 16, 2):
        hs = [h for h in range(2) if e + h < 15]
        for h in hs:
            p(f"v_add_u32 v{GA+e+h}, {7 - (e + h)}, v{t3}")
            p(f"v_max_i32 v{t0+h}, 128, v{GA+e+h}")
            p(f"v_cvt_f32_i32 v{t0+h}, v{t0+h}")
        p(f"""v_cvt_pk_bf16_f32 v{t0}, v{t0}, v{t1}
        v_lshrrev_b32 v{t1}, 16, v{t0}
        v_and_b32 v{t0}, 0xffff, v{t0}""")
        for h in hs:
            p(f"v_subrev_u32 v{t0+h}, 0x4280, v{t0+h}")
            p(f"v_min_i32 v{GA+e+h}, v{t0+h}, v{GA+e+h}")
            p(f"v_lshlrev_b32 v{GA+e+h}, 1, v{GA+e+h}")
    p(f"""s_lshl_b32 s60, s58, 4
    v_add_u32 v{t3}, s60, v{vi}
    s_mul_i32 s60, s57, {TCH}
    v_lshlrev_b32 v{t0}, 4, v{t3}
    v_lshl_add_u32 v{aT}, v{vg}, 3, v{t0}
    v_lshlrev_b32 v{t0}, 3, v{t3}
    v_add_u32 v{t0}, 512, v{t0}
    v_cmp_eq_u32 vcc, 2, v{vg}
    v_cndmask_b32 v{aT}, v{aT}, v{t0}, vcc
    v_lshlrev_b32 v{t0}, 2, v{t3}
    v_add_u32 v{t0}, 768, v{t0}
    v_cmp_eq_u32 vcc, 3, v{vg}
    v_cndmask_b32 v{aT}, v{aT}, v{t0}, vcc
    v_add_u32 v{aT}, s60, v{aT}
    v_mov_b32 v{t1}, 128
    v_cndmask_b32 v{t1}, 4, v{t1}, vcc
    v_add_u32 v{aT+1}, v{aT}, v{t1}
    v_lshlrev_b32 v{t0}, 1, v{t3}
    v_add_u32 v{t0}, 1024, v{t0}
    v_mov_b32 v{t1}, {2*648 - 192}
    v_cmp_eq_u32 vcc, 0, v{vg}
    v_cndmask_b32 v{aT+3}, v{t1}, v{t0}, vcc
    v_mov_b32 v{t1}, {2*648}
    v_cndmask_b32 v{aT+2}, v{t1}, v{t0}, vcc
    v_lshl_add_u32 v{t0}, v{t3}, 2, v{vg}
    v_mov_b32 v{t1}, 1280
    v_cmp_eq_u32 vcc, 1, v{t0}
    v_cndmask_b32 v{aT+2}, v{aT+2}, v{t1}, vcc
    v_add_u32 v{aT+2}, s60, v{aT+2}
    v_add_u32 v{aT+3}, s60, v{aT+3}
    s_mul_i32 s60, s57, {ECH}
    s_lshl_b32 s62, s58, 8
    s_add_u32 s62, s62, s60
    v_lshl_add_u32 v{vEw}, v{lane}, 2, s62
    v_mul_u32_u24 v{t0}, {ERS}, v{vi}
    v_lshl_add_u32 v{t0}, v{vg}, 4, v{t0}
    v_add_u32 v{vEr+1}, s60, v{t0}
    s_mul_i32 s62, s58, {16*ERS}
    v_add_u32 v{vEr}, s62, v{vEr+1}
    v_lshlrev_b32 v{vKW}, 4, v0
    v_add_u32 v{vKW+1}, {KCH}, v{vKW}
    v_lshrrev_b32 v{vXo}, 2, v{lane}
    v_lshlrev_b32 v{vXw}, 4, v{vXo}
    v_lshlrev_b32 v{vXo}, 14, v{vXo}
    v_and_b32 v{t0}, 3, v{lane}
    v_lshl_add_u32 v{vXo}, v{t0}, 4, v{vXo}
    v_and_b32 v{t1}, 1, v{lane}
    v_lshl_add_u32 v{vXw}, v{t1}, 3, v{vXw}
    v_bfe_u32 v{t1}, v{lane}, 1, 1
    v_mul_u32_u24 v{t1}, {XCH}, v{t1}
    s_lshl_b32 s60, s{S_WAVE}, 10
    v_add3_u32 v{vXw}, v{vXw}, v{t1}, s60
    s_lshl_b32 s74, s{S_WAVE}, 20
    s_lshl_b32 s60, s59, 6
    s_add_u32 s74, s74, s60
    s_add_u32 s74, s74, {G.XNT}
    s_lshl_b32 s62, s58, 8
    v_and_b32 v{vA}, 7, v{vi}
    v_mul_u32_u24 v{vA}, {KCS}, v{vA}
    v_lshrrev_b32 v{t0}, 3, v{vi}
    v_sub_u32 v{t0}, v{t0}, v{vg}
    v_add_u32 v{t0}, 3, v{t0}
    v_lshl_add_u32 v{vA}, v{t0}, 4, v{vA}
    s_mul_i32 s75, s57, {KCH}
    s_add_u32 s75, s75, s62
    v_add_u32 v{vA}, s75, v{vA}
    v_lshlrev_b32 v{vB}, 5, v{vi}
    v_lshl_add_u32 v{vXe}, v{vg}, 3, v{vB}
    v_lshl_add_u32 v{vB}, v{vg}, 4, v{vB}
    s_mul_i32 s75, s57, {XCH}
    s_lshl_b32 s60, s58, 11
    s_add_u32 s60, s60, s75
    v_add_u32 v{vXe}, s60, v{vXe}
    s_sub_u32 s75, s75, s62
    s_add_u32 s75, s75, {XBL + 480 - 192}
    v_add_u32 v{vB}, s75, v{vB}
    v_lshlrev_b32 v{vSo}, 6, v{vi}
    v_lshl_add_u32 v{vSo}, v{vg}, 4, v{vSo}
    s_lshl_b32 s56, s63, 13
    s_lshl_b32 s60, s58, 12
    s_add_u32 s56, s56, s60
    s_add_u32 s56, s56, {G.ST}
    s_lshl_b32 s60, s{S_WAVE}, 11
    s_add_u32 s60, s60, {LNB}
    v_lshl_add_u32 v{vLw}, v{lane}, 5, s60
    v_lshrrev_b32 v{vLr}, 1, v0
    v_lshlrev_b32 v{vLr}, 2, v{vLr}
    v_and_b32 v{t1}, 1, v0
    v_lshl_add_u32 v{vLr}, v{t1}, 12, v{vLr}
    v_add_u32 v{vLr}, {LNB}, v{vLr}
    s_mov_b32 s70, 0xffff0000
    s_mov_b32 s71, 0xffff0000""")
    ZR = a(4, 2)
    p(f"""v_mov_b32 v{ZR}, 0
    v_mov_b32 v{ZR+1}, 0
    v_mov_b32 v{ZR+2}, 0
    v_mov_b32 v{ZR+3}, 0
    s_mul_i32 s75, s57, {XCH}
    v_lshl_add_u32 v{t0}, v{lane}, 3, s75
    ds_write_b64 v{t0}, {vr(ZR,2)} offset:{XBL}
    s_mul_i32 s75, s57, {TCH}
    v_mov_b32 v{t0}, s75
    ds_write_b128 v{t0}, {vr(ZR,4)} offset:{TT-16}""")
    lg.issue('z'); lg.issue('z')
    P = a(16, 2); D = a(16, 2); A1 = a(2, 2); A2 = a(2, 2); B1 = a(2, 2); B2 = a(2, 2); Z2 = a(); vC0 = a(); vM = a(); vR = a(); vSD = a()
    F = a(8, 2); Gr = a(16, 2)
    vm.wait('x')
    stamp(p, 1)
    for q in range(4):
        p(f"""v_lshlrev_b32 v{P+4*q}, 16, v{XA+q}
        v_lshlrev_b32 v{P+4*q+1}, 16, v{XB+q}
        v_and_b32 v{P+4*q+2}, 0xffff0000, v{XA+q}
        v_and_b32 v{P+4*q+3}, 0xffff0000, v{XB+q}""")
        if q == 0: p(f"v_readfirstlane_b32 s64, v{P}\n v_readfirstlane_b32 s65, v{P+1}")
    G.make_tags(p, vgen)
    for c in range(16): p(f"v_subrev_f32 v{D+c}, s{64 + (c & 1)}, v{P+c}")
    for h in range(2):
        p(f"""v_add_f32 v{A1+h}, v{D+h}, v{D+2+h}
        v_add_f32 v{B1+h}, v{D+4+h}, v{D+6+h}
        v_mul_f32 v{A2+h}, v{D+h}, v{D+h}
        v_mul_f32 v{B2+h}, v{D+2+h}, v{D+2+h}""")
    for c in range(2, 8):
        for h in range(2):
            if c >= 4: p(f"v_add_f32 v{(A1 if c % 2 == 0 else B1)+h}, v{(A1 if c % 2 == 0 else B1)+h}, v{D+2*c+h}")
            p(f"v_fmac_f32 v{(A2 if c % 2 == 0 else B2)+h}, v{D+2*c+h}, v{D+2*c+h}")
    for h in range(2):
        p(f"v_add_f32 v{A1+h}, v{A1+h}, v{B1+h}\n v_add_f32 v{A2+h}, v{A2+h}, v{B2+h}")
    p(f"""v_mov_b32 v{vC0}, s64
    s_mov_b64 exec, s[70:71]
    v_mov_b32 v{vC0}, s65
    s_mov_b64 exec, -1""")
    G.reduce4(p, A1, A2, Z2)
    def sd_of(vvar_bf, vsd):
        p(f"""v_add_f32 v{t0}, {f32(1e-5)}, v{vvar_bf}
        v_cvt_pk_bf16_f32 v{t0}, v{t0}, v{t0}
        v_lshlrev_b32 v{t0}, 16, v{t0}
        v_sqrt_f32 v{t0}, v{t0}
        v_cvt_pk_bf16_f32 v{t0}, v{t0}, v{t0}
        v_lshlrev_b32 v{vsd}, 16, v{t0}""")
    p(f"""v_mul_f32 v{A1}, {f32(1/512)}, v{A1}
    v_mul_f32 v{Z2}, {f32(1/512)}, v{Z2}
    v_fma_f32 v{Z2}, -v{A1}, v{A1}, v{Z2}
    v_max_f32 v{Z2}, 0, v{Z2}
    v_add_f32 v{A1}, v{vC0}, v{A1}
    v_cvt_pk_bf16_f32 v{t1}, v{A1}, v{Z2}
    v_lshlrev_b32 v{vM}, 16, v{t1}
    v_and_b32 v{t1}, 0xffff0000, v{t1}""")
    sd_of(t1, vSD)
    p(f"""v_rcp_f32 v{vR}, v{vSD}
    v_sub_f32 v{t2}, v{A1}, v{vM}
    v_mul_f32 v{t3}, v{vM}, -v{vR}
    v_readlane_b32 s68, v{vR}, 0
    v_readlane_b32 s69, v{vR}, 16
    v_readlane_b32 s66, v{t3}, 0
    v_readlane_b32 s67, v{t3}, 16
    v_mul_f32 v{t2}, v{t2}, v{vR}
    v_mul_f32 v{Z2}, v{Z2}, v{vR}
    v_mul_f32 v{Z2}, v{Z2}, v{vR}
    v_mov_b32 v{B1}, s66
    v_mov_b32 v{B1+1}, s67""")
    for c in range(16): p(f"v_fma_f32 v{D+c}, v{P+c}, s{68 + (c & 1)}, v{B1 + (c & 1)}")
    for c in range(8): p(f"v_cvt_pk_f16_f32 v{F+c}, v{D+2*c}, v{D+2*c+1}")
    p(f"""ds_write_b128 v{vLw}, {vr(F,4)}
    ds_write_b128 v{vLw}, {vr(F+4,4)} offset:16
    v_cvt_pk_bf16_f32 v{t1}, v{t2}, v{Z2}
    v_lshlrev_b32 v{B2}, 16, v{t1}
    v_and_b32 v{t1}, 0xffff0000, v{t1}""")
    sd_of(t1, B2 + 1)
    p(f"""v_fma_f32 v{t0}, -v{B2}, v{vSD}, -v{vM}
    v_mul_f32 v{t1}, v{vSD}, v{B2+1}
    v_cvt_pk_bf16_f32 v{Gr}, v{t0}, v{t0}
    v_cvt_pk_bf16_f32 v{t2}, v{t1}, v{t1}
    v_and_b32 v{t3}, 0xffff0000, v{Gr}
    v_sub_f32 v{t0}, v{t0}, v{t3}
    v_and_b32 v{t3}, 0xffff0000, v{t2}
    v_sub_f32 v{t2}, v{t1}, v{t3}
    v_cvt_pk_bf16_f32 v{Gr+1}, v{t0}, v{t1}
    v_cvt_pk_bf16_f32 v{Gr+2}, v{t2}, 0
    v_mov_b32 v{Gr+3}, s{S_TAGA}
    v_lshlrev_b32 v{t0}, 4, v{vg}
    s_lshl_b32 s60, s61, 4
    s_add_u32 s60, s60, {G.AB}
    s_mov_b64 exec, 0x10001
    buffer_store_dwordx4 {vr(Gr,4)}, v{t0}, s[4:7], s60 offen sc1
    s_mov_b64 exec, -1
    s_waitcnt lgkmcnt(0)
    s_barrier""")
    vm.issue('st'); lg.done = len(lg.ops)
    G2 = P
    for i in range(4):
        p(f"ds_read2st64_b32 {vr(G2+4*i,2)}, v{vLr} offset0:{i*2} offset1:{i*2 + 8}")
        p(f"v_mov_b32 v{G2+4*i+2}, s{S_TAGA}\n v_mov_b32 v{G2+4*i+3}, s{S_TAGB}")
    p(f"""s_lshl_b32 s60, s2, 14
    s_add_u32 s60, s60, {G.XNT}""")
    for i in range(4):
        p(f"s_waitcnt lgkmcnt({3-i})")
        p(f"buffer_store_dwordx4 {vr(G2+4*i,4)}, v{vKW}, s[4:7], s60 offen sc1"); vm.issue('st')
        if i < 3: p("s_add_u32 s60, s60, 4096")
    stamp(p, 2)
    for r, n in ((D, 16), (A1, 2), (A2, 2), (B1, 2), (B2, 2), (Z2, 1), (vC0, 1), (vM, 1), (vR, 1), (vSD, 1), (F, 8), (Gr, 16), (XA, 4), (XB, 4)): V.free(r, n)
    vm.wait('par')
    warm = deque()
    if cfg.warm:
        DUM = a(56, 4)
        srd(p, 12, 12, 1792 * 1024)
        p(f"""s_lshr_b32 s55, s2, 3
        s_lshl_b32 s55, s55, 2
        s_add_u32 s55, s55, s{S_WAVE}
        s_mul_i32 s55, s55, {14*1024}""")
        for i in range(14):
            def f(i=i):
                if i and i % 4 == 0: p("s_add_u32 s55, s55, 4096")
                p(f"buffer_load_dwordx4 {vr(DUM+4*i,4)}, v{vL16}, s[12:15], s55 offen offset:{(i%4)*1024}"); vm.issue('warm')
            warm.append(f)
    vdt = a(); a2 = a(); b2 = a(); C = a(2)
    p(f"""v_lshlrev_b32 v{vdt}, 16, v{vLd}
    v_mul_f32 v{vdt}, {f32(LOG2E)}, v{vdt}
    v_exp_f32 v{vdt}, v{vdt}
    v_lshlrev_b32 v{vDk}, 16, v{vDk}""")
    for k in range(6): p(f"v_lshlrev_b32 v{PR+k}, 16, v{PR+k}")
    for k in range(4): p(f"v_lshlrev_b32 v{PQ+k}, 16, v{PQ+k}")
    p(f"""v_cvt_pk_bf16_f32 v{vdt}, v{vdt}, v{vdt}
    v_lshlrev_b32 v{vdt}, 16, v{vdt}
    v_mul_f32 v{C}, v{PR+4}, v{PR+2}
    v_mul_f32 v{C+1}, v{PR+4}, v{PR+3}
    v_mul_f32 v{t0}, v{PQ+2}, v{PQ}
    v_mul_f32 v{t1}, v{PQ+2}, v{PQ+1}
    v_fma_f32 v{C}, -v{PR+5}, v{PR+3}, v{C}
    v_fma_f32 v{C+1}, v{PR+5}, v{PR+2}, v{C+1}
    v_fma_f32 v{t0}, -v{PQ+3}, v{PQ+1}, v{t0}
    v_fma_f32 v{t1}, v{PQ+3}, v{PQ}, v{t1}
    v_mul_f32 v{a2}, v{vdt}, v{PR}
    v_mul_f32 v{b2}, v{vdt}, v{PR+1}
    v_max_f32 v{t0}, |v{t0}|, |v{t1}|
    v_max3_f32 v{t0}, |v{C}|, |v{C+1}|, v{t0}
    v_mul_f32 v{a2}, {f32(LOG2E)}, v{a2}
    v_mul_f32 v{b2}, {f32(1/(2*math.pi))}, v{b2}
    v_max_f32_dpp v{t0}, v{t0}, v{t0} quad_perm:[1,0,3,2] row_mask:0xf bank_mask:0xf""")
    AN = {1: a(2), 8: a(2), 64: a(2), 256: a(2)}
    red = deque([f"v_max_f32_dpp v{t0}, v{t0}, v{t0} quad_perm:[2,3,0,1] row_mask:0xf bank_mask:0xf",
           f"v_max_f32_dpp v{t0}, v{t0}, v{t0} row_half_mirror row_mask:0xf bank_mask:0xf",
           f"v_max_f32_dpp v{t0}, v{t0}, v{t0} row_mirror row_mask:0xf bank_mask:0xf",
           f"v_max_f32_dpp v{t0}, v{t0}, v{t0} row_bcast:15 row_mask:0xa bank_mask:0xf",
           f"v_max_f32_dpp v{t0}, v{t0}, v{t0} row_bcast:31 row_mask:0xc bank_mask:0xf",
           f"v_frexp_exp_i32_f32 v{t0}, v{t0}",
           f"v_readlane_b32 s72, v{t0}, 63\n s_sub_u32 s73, 0, s72"])
    W_ = a(8)
    ks = [8, 64, 1, 256]
    for j, tt in enumerate(ks):
        p(f"v_mul_f32 v{W_+2*j}, {f32(float(tt))}, v{a2}\n v_mul_f32 v{W_+2*j+1}, {f32(float(tt))}, v{b2}"); p(red.popleft())
    for j, tt in enumerate(ks): p(f"v_fract_f32 v{W_+2*j+1}, v{W_+2*j+1}")
    p(red.popleft())
    for j, tt in enumerate(ks):
        p(f"v_exp_f32 v{W_+2*j}, v{W_+2*j}\n v_cos_f32 v{AN[tt]}, v{W_+2*j+1}\n v_sin_f32 v{AN[tt]+1}, v{W_+2*j+1}")
        if red: p(red.popleft())
    for j, tt in enumerate(ks):
        p(f"v_mul_f32 v{AN[tt]}, v{AN[tt]}, v{W_+2*j}\n v_mul_f32 v{AN[tt]+1}, v{AN[tt]+1}, v{W_+2*j}")
    assert not red
    p(f"""v_ldexp_f32 v{C}, v{C}, s73
    v_ldexp_f32 v{C+1}, v{C+1}, s73
    v_ldexp_f32 v{vdt}, v{vdt}, s72
    v_mov_b32 v{t0}, 0x3c00
    ds_write_b32 v{vEw}, v{t0} offset:{EI}""")
    V.free(W_, 8); V.free(PR, 6); V.free(PQ, 4)
    NCV = 52 if cfg.defer else 4
    CV = a(NCV); cvi = [0]; later = []
    def emit_slot(row, r, conj):
        c = CV + (cvi[0] % NCV); cvi[0] += 1
        p(f"v_cvt_pk_f16_f32 v{c}, v{r}, {'-' if conj else ''}v{r+1}")
        w_ = f"ds_write_b32 v{vEw}, v{c} offset:{EI + row*ERS}"
        if cfg.defer: later.append(w_)
        else: p(w_)
        if cfg.warm == 1 and warm and cvi[0] % 3 == 0: warm.popleft()()
    def cmul_group(items):
        for d, x, y in items: p(f"v_mul_f32 v{d}, v{x}, v{y}\n v_mul_f32 v{d+1}, v{x}, v{y+1}")
        for d, x, y in items: p(f"v_fma_f32 v{d}, -v{x+1}, v{y+1}, v{d}\n v_fma_f32 v{d+1}, v{x+1}, v{y}, v{d+1}")
    Pw = {1: AN[8]}; Qw = {1: AN[64]}
    for i in range(2, 8): Pw[i] = a(2)
    for i in (2, 3): Qw[i] = a(2)
    Gv = {0: C}
    for j in range(1, 8): Gv[j] = a(2)
    Hv = [a(2), a(2)]; Iv = [a(2), a(2)]; TP = [a(2) for _ in range(4)]
    LROW = lambda idx: 32 + idx
    E1, E256 = AN[1], AN[256]
    emit_slot(1, Pw[1], False); emit_slot(8, Qw[1], False); emit_slot(LROW(0), C, True)
    cmul_group([(Pw[2], Pw[1], Pw[1]), (Qw[2], Qw[1], Qw[1]), (Gv[1], C, E1), (Hv[0], C, E256)])
    emit_slot(2, Pw[2], False); emit_slot(16, Qw[2], False); emit_slot(LROW(1), Gv[1], True); emit_slot(LROW(8), Hv[0], True)
    cmul_group([(Pw[3], Pw[2], Pw[1]), (Pw[4], Pw[2], Pw[2]), (Qw[3], Qw[2], Qw[1]), (Gv[2], Gv[1], E1), (Hv[1], Hv[0], E256)])
    emit_slot(3, Pw[3], False); emit_slot(4, Pw[4], False); emit_slot(24, Qw[3], False); emit_slot(LROW(2), Gv[2], True); emit_slot(LROW(12), Hv[1], True)
    cmul_group([(Pw[5], Pw[4], Pw[1]), (Pw[6], Pw[4], Pw[2]), (Pw[7], Pw[4], Pw[3]), (Gv[3], Gv[2], E1), (Hv[0], Hv[1], E256)])
    emit_slot(5, Pw[5], False); emit_slot(6, Pw[6], False); emit_slot(7, Pw[7], False); emit_slot(LROW(3), Gv[3], True); emit_slot(LROW(14), Hv[0], True)
    prods = deque([(i1, i0) for i1 in (1, 2, 3) for i0 in range(1, 8)])
    hcur = 0; hrows = deque([16, 17, 18, 19, 20]); gnext = 4; icur = None; irows = deque([10, 13, 15]); extra = deque([(2, 9), (6, 11)])
    while prods or hrows or gnext < 8 or irows or extra:
        items = []; outs = []; tp = 0
        if gnext < 8:
            items.append((Gv[gnext], Gv[gnext - 1], E1)); outs.append((LROW(gnext), Gv[gnext], True)); gnext += 1
        if hrows:
            items.append((Hv[1 - hcur], Hv[hcur], E256)); outs.append((LROW(hrows.popleft()), Hv[1 - hcur], True)); hcur = 1 - hcur
        if irows and gnext > 5:
            src = Gv[4] if icur is None else Iv[icur]; ni = 0 if icur is None else 1 - icur
            items.append((Iv[ni], src, E256)); outs.append((LROW(irows.popleft()), Iv[ni], True)); icur = ni
        if extra and gnext > extra[0][0] + 1:
            j, row = extra.popleft(); items.append((TP[tp], Gv[j], E256)); outs.append((LROW(row), TP[tp], True)); tp += 1
        while prods and tp < 4 and len(items) < 5:
            i1, i0 = prods.popleft(); items.append((TP[tp], Pw[i0], Qw[i1])); outs.append((8 * i1 + i0, TP[tp], False)); tp += 1
        cmul_group(items)
        for o in outs: emit_slot(*o)
    while cfg.warm == 1 and warm: warm.popleft()()
    for d in list(Pw.values()) + list(Qw.values()) + list(Gv.values()) + Hv + Iv + TP + [E1, E256]: V.free(d, 2)
    for w_ in later: p(w_)
    V.free(CV, NCV); V.free(a2); V.free(b2); V.free(P, 16)
    XG = a(16, 4)
    def gather():
        for i in range(4):
            p(f"s_add_u32 s60, s74, {i << 18}")
            p(f"buffer_load_dwordx4 {vr(XG+4*i,4)}, v{vXo}, s[4:7], s60 offen sc1")
    gather()
    p("s_waitcnt lgkmcnt(0)\n s_barrier"); lg.done = len(lg.ops)
    stamp(p, 3)
    ACC = a(8, 4); FR = a(96, 4)
    for ks_ in range(8):
        p(f"ds_read_b128 {vr(FR+12*ks_,4)}, v{vEr} offset:{EI + ks_*64}")
        p(f"ds_read_b128 {vr(FR+12*ks_+4,4)}, v{vEr+1} offset:{EI + 32*ERS + ks_*64}")
        p(f"ds_read_b128 {vr(FR+12*ks_+8,4)}, v{vEr+1} offset:{EI + 48*ERS + ks_*64}")
        for _ in range(3): lg.issue(('e', ks_))
        if ks_ >= 3:
            k2 = ks_ - 3
            lg.wait(('e', k2))
            for tl in range(2):
                c = vr(ACC + 4 * tl, 4) if k2 else '0'
                p(f"v_mfma_f32_16x16x32_f16 {vr(ACC+4*tl,4)}, {vr(FR+12*k2+4+4*tl,4)}, {vr(FR+12*k2,4)}, {c}")
    for k2 in range(5, 8):
        lg.wait(('e', k2))
        for tl in range(2):
            p(f"v_mfma_f32_16x16x32_f16 {vr(ACC+4*tl,4)}, {vr(FR+12*k2+4+4*tl,4)}, {vr(FR+12*k2,4)}, {vr(ACC+4*tl,4)}")
    p(f"""v_cvt_pk_f16_f32 v{FR}, v{ACC}, v{ACC+1}
    v_cvt_pk_f16_f32 v{FR+1}, v{ACC+2}, v{ACC+3}
    v_cvt_pk_f16_f32 v{FR+2}, v{ACC+4}, v{ACC+5}
    v_cvt_pk_f16_f32 v{FR+3}, v{ACC+6}, v{ACC+7}
    ds_write_b32 v{aT}, v{FR} offset:{TT}
    ds_write_b32 v{aT+1}, v{FR+1} offset:{TT}
    ds_write_b16 v{aT+2}, v{FR+2} offset:{TT}
    s_mov_b64 exec, 0xffff
    ds_write_b16_d16_hi v{aT+3}, v{FR+2} offset:{TT+64}
    ds_write_b16 v{aT+3}, v{FR+3} offset:{TT+128}
    ds_write_b16_d16_hi v{aT+3}, v{FR+3} offset:{TT+192}
    s_mov_b64 exec, -1
    s_waitcnt lgkmcnt(0)
    s_barrier""")
    lg.done = len(lg.ops)
    V.free(ACC, 8); V.free(FR, 96); V.free(aT, 4)
    WS_ = [[a(8, 2), a(9, 2), a(8, 2), a(9, 2)] for _ in range(2)]; EL = [a(15), a(15)]
    for ch in range(2):
        for e in range(15):
            p(f"ds_read_u16 v{EL[ch] + e}, v{GA+e} offset:{TT + ch*TCH}"); lg.issue(('el', ch))
    p(f"""v_mul_u32_u24 v{t0}, {KCS}, v{vi}
    ds_write_b128 v{t0}, {vr(ZR,4)} offset:{KC}""")
    lg.issue('z2')
    for ch in range(2):
        el = EL[ch]; W0, W1, S0, S1 = WS_[ch]
        lg.wait(('el', ch))
        def wr(s_):
            if s_ & 1: o = (7 - s_) // 2; e_, o_ = W0, W1
            else: o = (6 - s_) // 2; e_, o_ = S0, S1
            src = e_ + o if o % 2 == 0 else o_ + 1 + o
            p(f"ds_write_b128 v{vKW+ch}, {vr(src,4)} offset:{KC + s_*KCS + 16}"); lg.issue('kw')
            if warm: warm.popleft()()
        for q in range(6): p(f"v_lshl_or_b32 v{W0+q}, v{el+2*q+1}, 16, v{el+2*q}")
        wr(7); wr(3)
        for q in range(6): p(f"v_lshl_or_b32 v{S0+q}, v{el+2*q+2}, 16, v{el+2*q+1}")
        wr(6); wr(2)
        for q in range(1, 7): p(f"v_lshl_or_b32 v{W1+1+q}, v{el+2*q+1}, 16, v{el+2*q}")
        wr(5); wr(1)
        for q in range(1, 7): p(f"v_lshl_or_b32 v{S1+1+q}, v{el+2*q+2}, 16, v{el+2*q+1}")
        wr(4); wr(0)
    for ch in range(2):
        for r, n in zip(WS_[ch], (8, 9, 8, 9)): V.free(r, n)
        V.free(EL[ch], 15)
    V.free(GA, 15)
    stamp(p, 4)
    p(f"""s_mov_b32 s62, 0
L_b_poll:
    s_waitcnt vmcnt(0)
    v_xor_b32 v{t0}, s{S_TAGA}, v{XG+2}
    v_xor_b32 v{t1}, s{S_TAGB}, v{XG+3}
    v_or_b32 v{t0}, v{t0}, v{t1}""")
    for i in range(1, 4):
        p(f"""v_xor_b32 v{t1}, s{S_TAGA}, v{XG+4*i+2}
        v_xor_b32 v{t2}, s{S_TAGB}, v{XG+4*i+3}
        v_or3_b32 v{t0}, v{t0}, v{t1}, v{t2}""")
    p(f"""v_cmp_ne_u32 vcc, 0, v{t0}
    s_add_u32 s62, s62, 1
    s_cmp_eq_u64 vcc, 0
    s_cbranch_scc1 L_b_got
    s_cmp_ge_u32 s62, {G.SPIN_MAX}
    s_cbranch_scc1 L_b_got
    s_sleep 1""")
    gather()
    p("s_branch L_b_poll\nL_b_got:")
    for i in range(4): p(f"ds_write_b64 v{vXw}, {vr(XG+4*i,2)} offset:{XBL + 512 + i*256}")
    V.free(XG, 16)
    if cfg.warm: V.free(DUM, 56)
    p("s_waitcnt lgkmcnt(0)\n s_barrier"); lg.done = len(lg.ops)
    stamp(p, 5)
    if cfg.dumpK:
        Dm = a(4, 4)
        for ch in range(2):
            p(f"""ds_read_b128 {vr(Dm,4)}, v{vKW+ch} offset:{KC + 7*KCS + 16}
            s_lshl_b32 s60, s59, 13
            s_add_u32 s60, s60, {G.DBG + ch*4096}
            s_waitcnt lgkmcnt(0)
            buffer_store_dwordx4 {vr(Dm,4)}, v{vKW}, s[4:7], s60 offen
            s_waitcnt vmcnt(0)""")
        p(f"""s_lshl_b32 s60, s63, 2
        s_add_u32 s60, s60, {G.DBG + 0x400000}
        v_mov_b32 v{Dm+1}, 0
        buffer_store_dword v{vdt}, v{Dm+1}, s[4:7], s60 offen
        s_waitcnt vmcnt(0)""")
        V.free(Dm, 4)
    CA = a(32, 4); FA = [a(32, 4), a(32, 4)]; FB = [a(32, 4), a(32, 4)]; XN = a(8, 2)
    def rds(rr):
        out = []
        for k in range(8):
            def fa(k=k): p(f"ds_read_b128 {vr(FA[rr&1]+4*k,4)}, v{vA} offset:{KC + rr*64 + k*512}"); lg.issue(('f', rr, k))
            def fb(k=k): p(f"ds_read_b128 {vr(FB[rr&1]+4*k,4)}, v{vB} offset:{192 - rr*64 + k*512}"); lg.issue(('f', rr, k))
            out += [fa, fb]
        return out
    pairs = sorted([(aa, bb) for aa in range(8) for bb in range(8 - aa)], key=lambda t: (max(t), t[0] + t[1]))
    q_ = deque(rds(0))
    for _ in range(8): q_.popleft()()
    seen = set()
    for rr in range(4):
        if rr < 3: nxt = deque(rds(rr + 1))
        else:
            nxt = deque()
            for k in range(4):
                def fx(k=k): p(f"ds_read_b64 {vr(XN+2*k,2)}, v{vXe} offset:{XBL + 512 + k*512}"); lg.issue('xn')
                nxt.append(fx)
        for n_, (aa, bb) in enumerate(pairs):
            m_ = max(aa, bb)
            while lg.ops.count(('f', rr, m_)) < 2: q_.popleft()()
            lg.wait(('f', rr, m_))
            J = aa + bb
            c = vr(CA + 4 * J, 4) if J in seen else '0'
            seen.add(J)
            p(f"v_mfma_f32_16x16x32_f16 {vr(CA+4*J,4)}, {vr(FA[rr&1]+4*aa,4)}, {vr(FB[rr&1]+4*bb,4)}, {c}")
            if q_: q_.popleft()()
            elif nxt and n_ % 2 == 1 and n_ >= 4: nxt.popleft()()
        q_ = nxt
    while q_: q_.popleft()()
    stamp(p, 6)
    p(f"""s_lshl_b32 s60, s{S_WAVE}, 12
    v_add_u32 v{t1}, s60, v{vL16}
    s_xor_b32 s60, s60, 4096
    v_add_u32 v{t2}, s60, v{vL16}
    s_cmp_eq_u32 s58, 0
    s_barrier
    s_cbranch_scc1 L_b_e0""")
    for k in range(4): p(f"ds_write_b128 v{t1}, {vr(CA+4*k,4)} offset:{KC+k*1024}")
    for k in range(16): p(f"v_mov_b32 v{CA+k}, v{CA+16+k}")
    p("s_branch L_b_e1\nL_b_e0:")
    for k in range(4): p(f"ds_write_b128 v{t1}, {vr(CA+16+4*k,4)} offset:{KC+k*1024}")
    p("L_b_e1:\n s_waitcnt lgkmcnt(4)")
    for k in range(4):
        for r in range(4):
            p(f"v_fma_mix_f32 v{FB[1]+4*k+r}, v{XN+2*k+(r>>1)}, v{vDk}, 0 op_sel:[{r&1},0,0] op_sel_hi:[1,0,0]")
    O = FA[0]; GG = FB[0]
    for k in range(4): p(f"v_mov_b32 v{GG+4*k+2}, s{S_TAGA}\n v_mov_b32 v{GG+4*k+3}, s{S_TAGB}")
    p("s_waitcnt lgkmcnt(0)\n s_barrier")
    for k in range(4): p(f"ds_read_b128 {vr(O+4*k,4)}, v{t2} offset:{KC+k*1024}")
    for k in range(4):
        p(f"s_waitcnt lgkmcnt({3-k})")
        for r in range(4): p(f"v_add_f32 v{CA+4*k+r}, v{CA+4*k+r}, v{O+4*k+r}")
        for r in range(4): p(f"v_fma_f32 v{CA+4*k+r}, v{CA+4*k+r}, v{vdt}, v{FB[1]+4*k+r}")
        for h in range(2): p(f"v_cvt_pk_bf16_f32 v{GG+4*k+h}, v{CA+4*k+2*h}, v{CA+4*k+2*h+1}")
        p(f"buffer_store_dwordx4 {vr(GG+4*k,4)}, v{vSo}, s[4:7], s56 offen offset:{k*1024} sc1")
    stamp(p, 7)
    p(f"""s_or_b32 s60, s2, s{S_WAVE}
    s_cmp_lg_u32 s60, 0
    s_cbranch_scc1 L_b_done""")
    if cfg.only != 'B':
        FL = FA[1]
        p(f"""v_lshlrev_b32 v{t3}, 8, v{lane}
        s_mov_b32 s62, 0
L_b_gpoll:""")
        for i in range(4):
            p(f"s_mov_b32 s60, {G.HFLAG + i*16384}\n buffer_load_dwordx2 {vr(FL+2*i,2)}, v{t3}, s[4:7], s60 offen sc1")
        p(f"s_waitcnt vmcnt(0)\n v_mov_b32 v{t0}, 0")
        for i in range(4):
            p(f"""v_xor_b32 v{t1}, s{S_TAGA}, v{FL+2*i}
            v_xor_b32 v{t2}, s{S_TAGB}, v{FL+2*i+1}
            v_or3_b32 v{t0}, v{t0}, v{t1}, v{t2}""")
        p(f"""v_cmp_ne_u32 vcc, 0, v{t0}
        s_add_u32 s62, s62, 1
        s_cmp_eq_u64 vcc, 0
        s_cbranch_scc1 L_b_gok
        s_cmp_ge_u32 s62, {G.SPIN_MAX}
        s_cbranch_scc1 L_b_gok
        s_sleep 8
        s_branch L_b_gpoll
L_b_gok:""")
    p(f"""v_mov_b32 v{t0}, s{S_TAGA}
    v_mov_b32 v{t1}, 0
    s_mov_b64 exec, 1
    buffer_store_dword v{t0}, v{t1}, s[4:7], 0 offen offset:{G.GEN}
    s_mov_b64 exec, -1
L_b_done:""")
    G.stamps_out(p, 8, CA)
    p("s_endpgm")
    return V.hi_used
```

```python
import sys, math, struct
from asmlib import *

NAME = "recurrent_scan__ssm_conv_s4__mixer_channel_mlp__prompt"
GEN = 0; HFLAG = 0x1000; HFLAG1 = 0x10000; AB = 0x30000; CF = 0x40000; WFLAG = 0x50000; XFLAG = 0x60000; SFLAG = 0x70000; W2P = 0x1200000; XNT = 0x100000; ST = 0x600000; HB = 0xA00000
DBG = 0x2000000; TSB = 0x3000000
LDS_BYTES = 81920
SPIN_MAX = 200000

def f32(x): return '0x%08x' % struct.unpack('<I', struct.pack('<f', x))[0]
LOG2E = 1.4426950408889634

class Cfg:
    ts = False
    dumpK = False
    only = None
    parlate = 0; wd = 1; mvg = 0; nm2 = 4; km2 = 4; nh1 = 4; g1lo = 10; emv = 0; gdm = 8; nosc = 0; nomf = 0; now2 = 0; noh = 0; rot2 = 1; nh0 = 4; fine2 = 0; touch1 = 0; touch = 1; w2late = 0; bcut = 0; bprio = 3; cpf = 1; wpi = 38; wpc = 44; defer = 1; warm = 0; nopk = 1; nxp = 3; prio = 2; fl0 = 52; p0i = 80; p0c = 50; kfl1 = 2; ks = 22; fine = 0; gstart = 36; glo = 12; kpoll = 9; exact = 0; rot = 1; nkr = 12; nodma = 0; nobounce = 0; nogelu = 0; nobar = 0; cyc = 0; dbgts = 0; ni = 0
cfg = Cfg()

S_WAVE = 3
S_WS = 4
PTR = lambda i: 16 + 2 * i
S_TAGA, S_TAGB = 50, 51

def srd(p, s, ptr_idx, nbytes):
    p(f"""s_mov_b32 s{s}, s{PTR(ptr_idx)}
    s_mov_b32 s{s+1}, s{PTR(ptr_idx)+1}
    s_mov_b32 s{s+2}, {nbytes}
    s_mov_b32 s{s+3}, 0x20000""")

ts_count = [0]
def stamp(p, k):
    if cfg.ts: p(f"{'s_memtime' if cfg.cyc else 's_memrealtime'} s[{80+2*k}:{81+2*k}]")
def stamps_out(p, n, vt):
    if not cfg.ts: return
    if cfg.dbgts:
        lab = 'L_dbg%d' % len(p.ins)
        p(f"""s_waitcnt lgkmcnt(0)
        s_and_b32 s76, s2, 255
        s_cmp_lg_u32 s76, {cfg.dbgts - 1}
        s_cbranch_scc1 {lab}
        s_mov_b32 s76, s46
        s_mov_b32 s77, s47
        s_mov_b32 s78, 256
        s_mov_b32 s79, 0x20000
        s_lshr_b32 s75, s2, 8
        s_lshl_b32 s75, s75, 5
        v_mov_b32 v{vt+4}, 0
        v_cmp_eq_u32 vcc, 0, v0
        s_and_saveexec_b64 s[72:73], vcc""")
        for k in range(0, 8, 4):
            for j in range(4): p(f"v_mov_b32 v{vt+j}, s{80+2*(k+j)}")
            p(f"buffer_store_dwordx4 {vr(vt,4)}, v{vt+4}, s[76:79], s75 offen offset:{k*4}\n s_nop 2")
        p(f"s_mov_b64 exec, s[72:73]\n{lab}:")
        return
    p(f"""s_waitcnt lgkmcnt(0)
    v_cmp_eq_u32 vcc, 0, v0
    s_and_saveexec_b64 s[76:77], vcc
    s_lshl_b32 s78, s2, 4
    v_mov_b32 v{vt+4}, s78""")
    for k in range(n - 1):
        p(f"""v_mov_b32 v{vt}, s{80+2*k}
        v_mov_b32 v{vt+1}, s{81+2*k}
        v_mov_b32 v{vt+2}, s{82+2*k}
        v_mov_b32 v{vt+3}, s{83+2*k}
        s_mov_b32 s78, {TSB + k*0x10000}
        buffer_store_dwordx4 {vr(vt,4)}, v{vt+4}, s[4:7], s78 offen
        s_nop 2""")
    p("s_mov_b64 exec, s[76:77]")

def make_tags(p, vgen):
    p(f"""v_readfirstlane_b32 s{S_TAGA}, v{vgen}
    s_mul_i32 s{S_TAGA}, s{S_TAGA}, 0x9E3779B1
    s_add_u32 s{S_TAGA}, s{S_TAGA}, 0x7F4A7C15
    s_xor_b32 s{S_TAGB}, s{S_TAGA}, 0x5bd1e995""")

def reduce4(p, A1, A2, Z2):
    p(f"""v_permlane16_swap_b32 v{A1}, v{A1+1}
    v_permlane16_swap_b32 v{A2}, v{A2+1}
    v_add_f32 v{A1}, v{A1}, v{A1+1}
    v_add_f32 v{A2}, v{A2}, v{A2+1}
    v_permlane32_swap_b32 v{A1}, v{A2}
    v_add_f32 v{A1}, v{A1}, v{A2}
    v_add_f32_dpp v{A1}, v{A1}, v{A1} quad_perm:[1,0,3,2] row_mask:0xf bank_mask:0xf
    v_add_f32_dpp v{A1}, v{A1}, v{A1} quad_perm:[2,3,0,1] row_mask:0xf bank_mask:0xf
    v_add_f32_dpp v{A1}, v{A1}, v{A1} row_half_mirror row_mask:0xf bank_mask:0xf
    v_add_f32_dpp v{A1}, v{A1}, v{A1} row_mirror row_mask:0xf bank_mask:0xf
    v_mov_b32 v{Z2}, v{A1}
    v_permlane32_swap_b32 v{A1}, v{Z2}""")

XBL = 0; XCH = 4608
TT = 9216 + 16; TCH = 1344
KC = 12288; KCS = 4160; KCH = 8 * KCS
LNB = KC
PT = KC + 8192
PX = KC + 16384

def role_B(p, vgen):
    V = Regs('v', 4, 256)
    lane = 1
    a = V.alloc
    vL16 = a(); XA = a(4, 2); XB = a(4, 2); PR = a(6); vLd = a(); vDk = a(); t0 = a(); t1 = a(); t2 = a(); t3 = a()
    srd(p, 8, 0, 2048 * 1024)
    p(f"""s_lshl_b32 s61, s2, 3
    s_lshl_b32 s62, s{S_WAVE}, 1
    s_add_u32 s61, s61, s62
    s_lshl_b32 s62, s61, 10
    v_lshlrev_b32 v{vL16}, 4, v{lane}
    buffer_load_dwordx4 {vr(XA,4)}, v{vL16}, s[8:11], s62 offen
    buffer_load_dwordx4 {vr(XB,4)}, v{vL16}, s[8:11], s62 offen offset:1024
    s_lshr_b32 s63, s{S_WAVE}, 1
    s_lshl_b32 s60, s2, 1
    s_add_u32 s63, s63, s60
    s_lshl_b32 s60, s63, 8
    v_lshl_add_u32 v{t0}, v{lane}, 2, s60
    s_lshl_b32 s60, s63, 1
    v_mov_b32 v{t1}, s60""")
    for k in range(6):
        p(f"global_load_dword v{PR+k}, v{t0}, {sr(PTR(1+k),2)}")
    p(f"global_load_ushort v{vLd}, v{t1}, {sr(PTR(7),2)}")
    p(f"global_load_ushort v{vDk}, v{t1}, {sr(PTR(8),2)}")
    vi = a(); vg = a(); tB = a(2, 2); tA = a(6, 2)
    p(f"""v_and_b32 v{vi}, 15, v{lane}
    v_lshrrev_b32 v{vg}, 4, v{lane}
    v_lshlrev_b32 v{t0}, 4, v{vi}
    v_cvt_f32_u32 v{tB}, v{t0}
    v_cvt_f32_u32 v{tA}, v{vi}
    v_lshlrev_b32 v{t0}, 1, v{vi}
    v_add_u32 v{t0}, 256, v{t0}
    v_bfe_u32 v{t1}, v{vi}, 2, 1
    v_lshlrev_b32 v{t1}, 8, v{t1}
    v_and_b32 v{t2}, 3, v{vi}
    v_lshl_add_u32 v{t1}, v{t2}, 2, v{t1}
    v_add_u32 v{t1}, 512, v{t1}
    v_cmp_gt_u32 vcc, 8, v{vi}
    v_cndmask_b32 v{t0}, v{t1}, v{t0}, vcc
    v_cvt_f32_u32 v{tA+2}, v{t0}
    v_lshrrev_b32 v{t0}, 1, v{vi}
    v_lshlrev_b32 v{t0}, 8, v{t0}
    v_and_b32 v{t1}, 1, v{vi}
    v_lshl_add_u32 v{t0}, v{t1}, 3, v{t0}
    v_add_u32 v{t0}, 1024, v{t0}
    v_min_u32 v{t0}, 2048, v{t0}
    v_cvt_f32_u32 v{tA+4}, v{t0}""")
    GA = a(16)
    p(f"v_lshlrev_b32 v{t3}, 3, v0")
    for e in range(0, 16, 2):
        for h in range(2):
            d = 7 - (e + h)
            p(f"v_add_u32 v{GA+e+h}, {d}, v{t3}")
            p(f"v_max_i32 v{t0+h}, 128, v{GA+e+h}")
            p(f"v_cvt_f32_i32 v{t0+h}, v{t0+h}")
        p(f"""v_cvt_pk_bf16_f32 v{t0}, v{t0}, v{t1}
        v_lshrrev_b32 v{t1}, 16, v{t0}
        v_and_b32 v{t0}, 0xffff, v{t0}""")
        for h in range(2):
            p(f"v_subrev_u32 v{t0+h}, 0x4280, v{t0+h}")
            p(f"v_min_i32 v{GA+e+h}, v{t0+h}, v{GA+e+h}")
            p(f"v_lshlrev_b32 v{GA+e+h}, 1, v{GA+e+h}")
            p(f"v_add_u32 v{GA+e+h}, {TT}, v{GA+e+h}")
    P = a(16, 2); D = a(16, 2); A1 = a(2, 2); A2 = a(2, 2); B1 = a(2, 2); B2 = a(2, 2); Z2 = a(); vC0 = a(); vM = a(); vR = a()
    p("s_waitcnt vmcnt(8)")
    stamp(p, 1)
    for q in range(4):
        p(f"""v_lshlrev_b32 v{P+4*q}, 16, v{XA+q}
        v_lshlrev_b32 v{P+4*q+1}, 16, v{XB+q}
        v_and_b32 v{P+4*q+2}, 0xffff0000, v{XA+q}
        v_and_b32 v{P+4*q+3}, 0xffff0000, v{XB+q}""")
    p(f"""v_readfirstlane_b32 s64, v{P}
    v_readfirstlane_b32 s65, v{P+1}
    s_mov_b32 s70, 0xffff0000
    s_mov_b32 s71, 0xffff0000""")
    make_tags(p, vgen)
    for c in range(8):
        p(f"v_pk_add_f32 {vr(D+2*c,2)}, {vr(P+2*c,2)}, s[64:65] neg_lo:[0,1] neg_hi:[0,1]")
    def sums(X):
        p(f"""v_pk_add_f32 {vr(A1,2)}, {vr(X,2)}, {vr(X+2,2)}
        v_pk_add_f32 {vr(B1,2)}, {vr(X+4,2)}, {vr(X+6,2)}
        v_pk_mul_f32 {vr(A2,2)}, {vr(X,2)}, {vr(X,2)}
        v_pk_mul_f32 {vr(B2,2)}, {vr(X+2,2)}, {vr(X+2,2)}""")
        for c in range(4, 8):
            acc = A1 if c % 2 == 0 else B1
            p(f"v_pk_add_f32 {vr(acc,2)}, {vr(acc,2)}, {vr(X+2*c,2)}")
        for c in range(2, 8):
            acc = A2 if c % 2 == 0 else B2
            p(f"v_pk_fma_f32 {vr(acc,2)}, {vr(X+2*c,2)}, {vr(X+2*c,2)}, {vr(acc,2)}")
        p(f"""v_pk_add_f32 {vr(A1,2)}, {vr(A1,2)}, {vr(B1,2)}
        v_pk_add_f32 {vr(A2,2)}, {vr(A2,2)}, {vr(B2,2)}""")
    sums(D)
    p(f"""v_mov_b32 v{vC0}, s64
    s_mov_b64 exec, s[70:71]
    v_mov_b32 v{vC0}, s65
    s_mov_b64 exec, -1""")
    reduce4(p, A1, A2, Z2)
    def stats(mean_add, vm, vsd_r, vsd):
        p(f"""v_mul_f32 v{A1}, {f32(1/512)}, v{A1}
        v_mul_f32 v{Z2}, {f32(1/512)}, v{Z2}
        v_fma_f32 v{Z2}, -v{A1}, v{A1}, v{Z2}
        v_max_f32 v{Z2}, 0, v{Z2}""")
        if mean_add is not None: p(f"v_add_f32 v{A1}, v{mean_add}, v{A1}")
        p(f"""v_cvt_pk_bf16_f32 v{t0}, v{A1}, v{Z2}
        v_lshlrev_b32 v{vm}, 16, v{t0}
        v_and_b32 v{t0}, 0xffff0000, v{t0}
        v_add_f32 v{t0}, {f32(1e-5)}, v{t0}
        v_cvt_pk_bf16_f32 v{t0}, v{t0}, v{t0}
        v_lshlrev_b32 v{t0}, 16, v{t0}
        v_sqrt_f32 v{t0}, v{t0}
        v_cvt_pk_bf16_f32 v{t0}, v{t0}, v{t0}
        v_lshlrev_b32 v{vsd}, 16, v{t0}""")
        if vsd_r is not None: p(f"v_rcp_f32 v{vsd_r}, v{vsd}")
    vSD = a()
    stats(vC0, vM, vR, vSD)
    p(f"""v_readlane_b32 s66, v{vM}, 0
    v_readlane_b32 s67, v{vM}, 16
    v_readlane_b32 s68, v{vR}, 0
    v_readlane_b32 s69, v{vR}, 16""")
    F = a(8, 2); K_ = a(8)
    for c in range(8): p(f"v_pk_add_f32 {vr(D+2*c,2)}, {vr(P+2*c,2)}, s[66:67] neg_lo:[0,1] neg_hi:[0,1]")
    for c in range(8): p(f"v_cvt_pk_bf16_f32 v{K_+c}, v{D+2*c}, v{D+2*c+1}")
    for c in range(8):
        p(f"v_lshlrev_b32 v{D+2*c}, 16, v{K_+c}\n v_and_b32 v{D+2*c+1}, 0xffff0000, v{K_+c}")
    for c in range(8): p(f"v_pk_mul_f32 {vr(D+2*c,2)}, {vr(D+2*c,2)}, s[68:69]")
    for c in range(8): p(f"v_cvt_pk_bf16_f32 v{K_+c}, v{D+2*c}, v{D+2*c+1}")
    for c in range(8):
        p(f"v_lshlrev_b32 v{D+2*c}, 16, v{K_+c}\n v_and_b32 v{D+2*c+1}, 0xffff0000, v{K_+c}")
    for c in range(8): p(f"v_cvt_pkrtz_f16_f32 v{F+c}, v{D+2*c}, v{D+2*c+1}")
    p(f"""s_lshl_b32 s60, s{S_WAVE}, 11
    v_lshl_add_u32 v{t1}, v{lane}, 5, s60
    ds_write_b128 v{t1}, {vr(F,4)} offset:{LNB}
    ds_write_b128 v{t1}, {vr(F+4,4)} offset:{LNB+16}""")
    sums(D)
    reduce4(p, A1, A2, Z2)
    G = a(16, 2)
    vM2 = a(); vR2 = a()
    stats(None, vM2, None, vR2)
    p(f"""v_fma_f32 v{t0}, -v{vM2}, v{vSD}, -v{vM}
    v_mul_f32 v{t1}, v{vSD}, v{vR2}
    v_cvt_pk_bf16_f32 v{G}, v{t0}, v{t0}
    v_cvt_pk_bf16_f32 v{t2}, v{t1}, v{t1}
    v_and_b32 v{t3}, 0xffff0000, v{G}
    v_sub_f32 v{t0}, v{t0}, v{t3}
    v_and_b32 v{t3}, 0xffff0000, v{t2}
    v_sub_f32 v{t2}, v{t1}, v{t3}
    v_cvt_pk_bf16_f32 v{G+1}, v{t0}, v{t1}
    v_cvt_pk_bf16_f32 v{G+2}, v{t2}, 0
    v_mov_b32 v{G+3}, s{S_TAGA}
    v_lshlrev_b32 v{t0}, 4, v{vg}
    s_lshl_b32 s60, s61, 4
    s_add_u32 s60, s60, {AB}
    s_mov_b64 exec, 0x10001
    buffer_store_dwordx4 {vr(G,4)}, v{t0}, s[4:7], s60 offen sc1
    s_mov_b64 exec, -1
    s_waitcnt lgkmcnt(0)
    s_barrier""")
    p(f"""v_lshrrev_b32 v{t0}, 1, v0
    v_lshlrev_b32 v{t0}, 2, v{t0}
    v_and_b32 v{t1}, 1, v0
    v_lshl_add_u32 v{t0}, v{t1}, 12, v{t0}""")
    for i in range(4):
        p(f"ds_read2st64_b32 {vr(G+4*i,2)}, v{t0} offset0:{(LNB + i*512)//256} offset1:{(LNB + i*512)//256 + 8}")
        p(f"v_mov_b32 v{G+4*i+2}, s{S_TAGA}\n v_mov_b32 v{G+4*i+3}, s{S_TAGB}")
    p(f"""v_lshlrev_b32 v{t0}, 4, v0
    s_lshl_b32 s60, s2, 14
    s_add_u32 s60, s60, {XNT}""")
    for i in range(4):
        p(f"s_waitcnt lgkmcnt({3-i})")
        p(f"buffer_store_dwordx4 {vr(G+4*i,4)}, v{t0}, s[4:7], s60 offen sc1")
        if i < 3: p("s_add_u32 s60, s60, 4096")
    stamp(p, 2)
    for r, n in ((P, 16), (D, 16), (A1, 2), (A2, 2), (B1, 2), (B2, 2), (Z2, 1), (vC0, 1), (vM, 1), (vR, 1), (F, 8), (K_, 8), (vM2, 1), (vR2, 1), (XA, 4), (XB, 4)): V.free(r, n)
    p("s_waitcnt vmcnt(5)")
    if cfg.warm:
        DUM = a(4, 4)
        srd(p, 12, 12, 1792 * 1024)
        p(f"""s_lshr_b32 s60, s2, 3
        s_lshl_b32 s60, s60, 2
        s_add_u32 s60, s60, s{S_WAVE}
        s_mul_i32 s60, s60, {14*1024}""")
        for i in range(14):
            if i and i % 4 == 0: p("s_add_u32 s60, s60, 4096")
            p(f"buffer_load_dwordx4 {vr(DUM,4)}, v{vL16}, s[12:15], s60 offen offset:{(i%4)*1024}")
    U = a(12, 2); E = a(8, 2); vdt = a()
    p(f"""v_lshlrev_b32 v{vdt}, 16, v{vLd}
    v_mul_f32 v{vdt}, {f32(LOG2E)}, v{vdt}
    v_exp_f32 v{vdt}, v{vdt}
    v_lshlrev_b32 v{vDk}, 16, v{vDk}
    v_cvt_pk_bf16_f32 v{vdt}, v{vdt}, v{vdt}
    v_lshlrev_b32 v{vdt}, 16, v{vdt}""")
    for k in range(6):
        p(f"v_lshlrev_b32 v{U+2*k}, 16, v{PR+k}\n v_and_b32 v{U+2*k+1}, 0xffff0000, v{PR+k}")
    for k in range(4):
        for h in range(2): p(f"v_mul_f32 v{U+2*k+h}, v{vdt}, v{U+2*k+h}")
    for h in range(2):
        p(f"""v_mul_f32 v{E+4*h}, {f32(LOG2E)}, v{U+h}
        v_mul_f32 v{E+4*h+1}, {f32(1/(2*math.pi))}, v{U+2+h}
        v_mul_f32 v{E+4*h+2}, v{U+8+h}, v{U+4+h}
        v_fma_f32 v{E+4*h+2}, -v{U+10+h}, v{U+6+h}, v{E+4*h+2}
        v_mul_f32 v{E+4*h+3}, v{U+8+h}, v{U+6+h}
        v_fma_f32 v{E+4*h+3}, v{U+10+h}, v{U+4+h}, v{E+4*h+3}""")
    p(f"""v_max_f32 v{t0}, |v{E+2}|, |v{E+3}|
    v_max3_f32 v{t0}, |v{E+6}|, |v{E+7}|, v{t0}
    v_max_f32_dpp v{t0}, v{t0}, v{t0} quad_perm:[1,0,3,2] row_mask:0xf bank_mask:0xf
    v_max_f32_dpp v{t0}, v{t0}, v{t0} quad_perm:[2,3,0,1] row_mask:0xf bank_mask:0xf
    v_max_f32_dpp v{t0}, v{t0}, v{t0} row_half_mirror row_mask:0xf bank_mask:0xf
    v_max_f32_dpp v{t0}, v{t0}, v{t0} row_mirror row_mask:0xf bank_mask:0xf
    v_max_f32_dpp v{t0}, v{t0}, v{t0} row_bcast:15 row_mask:0xa bank_mask:0xf
    v_max_f32_dpp v{t0}, v{t0}, v{t0} row_bcast:31 row_mask:0xc bank_mask:0xf
    v_frexp_exp_i32_f32 v{t0}, v{t0}
    v_readlane_b32 s72, v{t0}, 63
    s_sub_u32 s73, 0, s72
    s_and_b32 s60, s{S_WAVE}, 1
    s_cmp_eq_u32 s60, 1
    s_cselect_b64 vcc, -1, 0""")
    for k in range(4): p(f"v_cndmask_b32 v{E+k}, v{E+k}, v{E+4+k}, vcc")
    p(f"""v_ldexp_f32 v{E+2}, v{E+2}, s73
    v_ldexp_f32 v{E+3}, v{E+3}, s73
    s_lshl_b32 s60, s{S_WAVE}, 10
    v_add_u32 v{t1}, s60, v{vL16}
    ds_write_b128 v{t1}, {vr(E,4)} offset:{PT}
    v_lshl_add_u32 v{t1}, v{vg}, 6, s60
    s_waitcnt lgkmcnt(0)""")
    V.free(U, 12); V.free(E, 8); V.free(PR, 6)
    ACC = a(12, 4); Q = a(32, 4); FR = a(32, 4)
    W_ = a(24, 2)
    def rdq(kap):
        for q in range(4): p(f"ds_read_b128 {vr(Q + (kap&1)*16 + 4*q, 4)}, v{t1} offset:{PT + kap*256 + q*16}")
    rdq(0)
    for kap in range(4):
        if kap < 3: rdq(kap + 1); p("s_waitcnt lgkmcnt(4)")
        else: p("s_waitcnt lgkmcnt(0)")
        fr = FR + (kap & 1) * 16
        for q in range(4):
            pq = Q + (kap & 1) * 16 + 4 * q
            ts_ = [tA, tA + 2, tA + 4, tB]
            for k in range(4):
                w = W_ + 6 * k
                p(f"v_pk_mul_f32 {vr(w,2)}, {vr(pq,2)}, {vr(ts_[k],2)} op_sel_hi:[1,0]")
            for k in range(4): p(f"v_fract_f32 v{W_+6*k+1}, v{W_+6*k+1}")
            for k in range(4):
                w = W_ + 6 * k
                p(f"v_exp_f32 v{w}, v{w}\n v_cos_f32 v{w+2}, v{w+1}\n v_sin_f32 v{w+3}, v{w+1}")
            for k in range(4):
                w = W_ + 6 * k
                p(f"v_pk_mul_f32 {vr(w+2,2)}, {vr(w+2,2)}, {vr(w,2)} op_sel_hi:[1,0]")
            for k in range(3):
                w = W_ + 6 * k
                p(f"v_cvt_pk_f16_f32 v{fr+4*k+q}, v{w+2}, v{w+3}")
            w = W_ + 18
            p(f"""v_mul_f32 v{w+4}, v{pq+2}, v{w+2}
            v_mul_f32 v{w+5}, v{pq+2}, v{w+3}
            v_fma_f32 v{w+4}, -v{pq+3}, v{w+3}, v{w+4}
            v_fma_f32 v{w+5}, v{pq+3}, v{w+2}, v{w+5}
            v_cvt_pk_f16_f32 v{fr+12+q}, v{w+4}, -v{w+5}""")
        for k in range(3):
            c = vr(ACC + 4 * k, 4) if kap else '0'
            p(f"v_mfma_f32_16x16x32_f16 {vr(ACC+4*k,4)}, {vr(fr+4*k,4)}, {vr(fr+12,4)}, {c}")
    V.free(Q, 32); V.free(FR, 32); V.free(W_, 24)
    stamp(p, 3)
    XG = a(16, 4); vXo = a()
    p(f"""v_lshrrev_b32 v{vXo}, 2, v{lane}
    v_lshlrev_b32 v{vXo}, 14, v{vXo}
    v_and_b32 v{t0}, 3, v{lane}
    v_lshl_add_u32 v{vXo}, v{t0}, 4, v{vXo}
    s_lshl_b32 s74, s{S_WAVE}, 20
    s_lshl_b32 s60, s2, 6
    s_add_u32 s74, s74, s60
    s_add_u32 s74, s74, {XNT}""")
    def gather():
        for i in range(4):
            p(f"s_add_u32 s60, s74, {i << 18}")
            p(f"buffer_load_dwordx4 {vr(XG+4*i,4)}, v{vXo}, s[4:7], s60 offen sc1")
    gather()
    p(f"""s_lshr_b32 s60, s{S_WAVE}, 1
    s_mul_i32 s75, s60, 3072
    v_add_u32 v{t1}, s75, v{vL16}
    s_and_b32 s62, s{S_WAVE}, 1
    s_cmp_eq_u32 s62, 0
    s_cbranch_scc1 L_b_even1""")
    for k in range(3): p(f"ds_write_b128 v{t1}, {vr(ACC+4*k,4)} offset:{PX + k*1024}")
    ZR = a(4, 2)
    p(f"""v_mov_b32 v{ZR}, 0
    v_mov_b32 v{ZR+1}, 0
    s_mul_i32 s75, s60, {XCH}
    v_lshl_add_u32 v{t0}, v{lane}, 3, s75
    ds_write_b64 v{t0}, {vr(ZR,2)} offset:{XBL}
    s_mul_i32 s75, s60, {TCH}
    v_and_b32 v{t0}, 3, v{lane}
    v_lshl_add_u32 v{t0}, v{t0}, 2, s75
    ds_write_b32 v{t0}, v{ZR} offset:{TT-16}
    s_waitcnt lgkmcnt(0)
L_b_even1:
    s_barrier
    s_cbranch_scc0 L_b_odd2""")
    O = a(12, 4)
    for k in range(3): p(f"ds_read_b128 {vr(O+4*k,4)}, v{t1} offset:{PX + k*1024}")
    a0 = a(); a1 = a(); a2 = a()
    p(f"""s_mul_i32 s75, s60, {TCH}
    v_lshlrev_b32 v{a0}, 5, v{vi}
    v_lshl_add_u32 v{a0}, v{vg}, 3, v{a0}
    v_add_u32 v{a0}, s75, v{a0}
    v_lshlrev_b32 v{a1}, 4, v{vi}
    v_lshl_add_u32 v{a1}, v{vg}, 3, v{a1}
    v_add_u32 v{a1}, 512, v{a1}
    v_lshlrev_b32 v{t0}, 3, v{vi}
    v_lshl_add_u32 v{t0}, v{vg}, 7, v{t0}
    v_add_u32 v{t0}, {768-256}, v{t0}
    v_cmp_gt_u32 vcc, 2, v{vg}
    v_cndmask_b32 v{a1}, v{t0}, v{a1}, vcc
    v_add_u32 v{a1}, s75, v{a1}
    v_lshlrev_b32 v{a2}, 2, v{vi}
    v_lshl_add_u32 v{a2}, v{vg}, 7, v{a2}
    v_add_u32 v{a2}, s75, v{a2}
    s_waitcnt lgkmcnt(0)""")
    for k in range(12): p(f"v_add_f32 v{ACC+k}, v{ACC+k}, v{O+k}")
    for k in range(6): p(f"v_cvt_pk_f16_f32 v{O+k}, v{ACC+2*k}, v{ACC+2*k+1}")
    p(f"""ds_write_b64 v{a0}, {vr(O,2)} offset:{TT}
    ds_write_b64 v{a1}, {vr(O+2,2)} offset:{TT}
    s_mov_b32 s76, -1
    s_mov_b32 s77, 1
    s_mov_b64 exec, s[76:77]
    ds_write_b32 v{a2}, v{O+4} offset:{TT+1024}
    s_mov_b32 s77, 0
    s_mov_b64 exec, s[76:77]
    ds_write_b32 v{a2}, v{O+5} offset:{TT+1024+64}
    s_mov_b64 exec, -1
    s_waitcnt lgkmcnt(0)
L_b_odd2:
    s_barrier""")
    for r in (a0, a1, a2): V.free(r)
    V.free(O, 12); V.free(ACC, 12)
    vKW = a(2)
    p(f"v_lshlrev_b32 v{vKW}, 4, v0\n v_add_u32 v{vKW+1}, {KCH}, v{vKW}")
    W0 = a(8, 2); W1 = a(9, 2); S0 = a(8, 2); S1 = a(9, 2); EL = [a(15), a(15)]
    for ch in range(2):
        for e in range(15):
            p(f"ds_read_u16 v{EL[ch] + e}, v{GA+e} offset:{ch*TCH}")
    for ch in range(2):
        el = EL[ch]
        p(f"s_waitcnt lgkmcnt({15 if ch == 0 else 8})")
        for q in range(7):
            p(f"v_lshl_or_b32 v{W0+q}, v{el+2*q+1}, 16, v{el+2*q}")
            p(f"v_lshl_or_b32 v{S0+q}, v{el+2*q+2}, 16, v{el+2*q+1}")
        for q in range(1, 7):
            p(f"v_lshl_or_b32 v{W1+1+q}, v{el+2*q+1}, 16, v{el+2*q}")
            p(f"v_lshl_or_b32 v{S1+1+q}, v{el+2*q+2}, 16, v{el+2*q+1}")
        for s_ in range(8):
            if s_ & 1: o = (7 - s_) // 2; e_, o_ = W0, W1
            else: o = (6 - s_) // 2; e_, o_ = S0, S1
            src = e_ + o if o % 2 == 0 else o_ + 1 + o
            p(f"ds_write_b128 v{vKW+ch}, {vr(src,4)} offset:{KC + s_*KCS + 16}")
    p(f"""v_mov_b32 v{ZR}, 0
    v_mov_b32 v{ZR+1}, 0
    v_mov_b32 v{ZR+2}, 0
    v_mov_b32 v{ZR+3}, 0
    v_mul_u32_u24 v{t0}, {KCS}, v{vi}
    ds_write_b128 v{t0}, {vr(ZR,4)} offset:{KC}""")
    for r, n in ((W0, 8), (W1, 9), (S0, 8), (S1, 9), (GA, 16), (EL[0], 15), (EL[1], 15)): V.free(r, n)
    stamp(p, 4)
    p(f"""s_mov_b32 s62, 0
L_b_poll:
    s_waitcnt vmcnt(0)
    v_xor_b32 v{t0}, s{S_TAGA}, v{XG+2}
    v_xor_b32 v{t1}, s{S_TAGB}, v{XG+3}
    v_or_b32 v{t0}, v{t0}, v{t1}""")
    for i in range(1, 4):
        p(f"""v_xor_b32 v{t1}, s{S_TAGA}, v{XG+4*i+2}
        v_xor_b32 v{t2}, s{S_TAGB}, v{XG+4*i+3}
        v_or3_b32 v{t0}, v{t0}, v{t1}, v{t2}""")
    p(f"""v_cmp_ne_u32 vcc, 0, v{t0}
    s_add_u32 s62, s62, 1
    s_cmp_eq_u64 vcc, 0
    s_cbranch_scc1 L_b_got
    s_cmp_ge_u32 s62, {SPIN_MAX}
    s_cbranch_scc1 L_b_got
    s_sleep 1""")
    gather()
    p("s_branch L_b_poll\nL_b_got:")
    p(f"""v_lshrrev_b32 v{t0}, 2, v{lane}
    v_lshlrev_b32 v{t0}, 4, v{t0}
    v_and_b32 v{t1}, 1, v{lane}
    v_lshl_add_u32 v{t0}, v{t1}, 3, v{t0}
    v_bfe_u32 v{t1}, v{lane}, 1, 1
    v_mul_u32_u24 v{t1}, {XCH}, v{t1}
    s_lshl_b32 s60, s{S_WAVE}, 10
    v_add3_u32 v{t0}, v{t0}, v{t1}, s60""")
    for i in range(4): p(f"ds_write_b64 v{t0}, {vr(XG+4*i,2)} offset:{XBL + 512 + i*256}")
    V.free(XG, 16)
    vA = a(); vB = a()
    p(f"""s_lshr_b32 s60, s{S_WAVE}, 1
    s_and_b32 s62, s{S_WAVE}, 1
    s_lshl_b32 s62, s62, 8
    v_and_b32 v{vA}, 7, v{vi}
    v_mul_u32_u24 v{vA}, {KCS}, v{vA}
    v_lshrrev_b32 v{t0}, 3, v{vi}
    v_sub_u32 v{t0}, v{t0}, v{vg}
    v_add_u32 v{t0}, 3, v{t0}
    v_lshl_add_u32 v{vA}, v{t0}, 4, v{vA}
    s_mul_i32 s75, s60, {KCH}
    s_add_u32 s75, s75, s62
    v_add_u32 v{vA}, s75, v{vA}
    v_lshlrev_b32 v{vB}, 5, v{vi}
    v_lshl_add_u32 v{vB}, v{vg}, 4, v{vB}
    s_mul_i32 s75, s60, {XCH}
    s_sub_u32 s75, s75, s62
    s_add_u32 s75, s75, {XBL + 480 - 192}
    v_add_u32 v{vB}, s75, v{vB}
    s_waitcnt lgkmcnt(0)
    s_barrier""")
    stamp(p, 5)
    if cfg.dumpK:
        Dm = a(4, 4)
        for ch in range(2):
            p(f"""ds_read_b128 {vr(Dm,4)}, v{vKW+ch} offset:{KC + 7*KCS + 16}
            s_lshl_b32 s60, s2, 13
            s_add_u32 s60, s60, {DBG + ch*4096}
            s_waitcnt lgkmcnt(0)
            buffer_store_dwordx4 {vr(Dm,4)}, v{vKW}, s[4:7], s60 offen
            s_waitcnt vmcnt(0)""")
        p(f"""v_mov_b32 v{Dm}, s72
        s_lshl_b32 s60, s63, 2
        s_add_u32 s60, s60, {DBG + 0x400000}
        v_mov_b32 v{Dm+1}, 0
        buffer_store_dword v{Dm}, v{Dm+1}, s[4:7], s60 offen
        s_waitcnt vmcnt(0)""")
        V.free(Dm, 4)
    CA = a(32, 4); FA = [a(32, 4), a(32, 4)]; FB = [a(32, 4), a(32, 4)]
    def rd_res(rr):
        bsel = rr & 1
        for k in range(8):
            p(f"ds_read_b128 {vr(FA[bsel]+4*k,4)}, v{vA} offset:{KC + rr*64 + k*512}")
            p(f"ds_read_b128 {vr(FB[bsel]+4*k,4)}, v{vB} offset:{192 - rr*64 + k*512}")
    rd_res(0)
    for rr in range(4):
        bsel = rr & 1
        pairs = sorted([(aa, bb) for aa in range(8) for bb in range(8 - aa)], key=lambda t: (max(t), t[0] + t[1]))
        nxt = []
        if rr < 3:
            nb = (rr + 1) & 1
            for k in range(8):
                nxt.append(f"ds_read_b128 {vr(FA[nb]+4*k,4)}, v{vA} offset:{KC + (rr+1)*64 + k*512}")
                nxt.append(f"ds_read_b128 {vr(FB[nb]+4*k,4)}, v{vB} offset:{192 - (rr+1)*64 + k*512}")
        have = -1; issued = 0
        for n_, (aa, bb) in enumerate(pairs):
            m_ = max(aa, bb)
            if m_ > have:
                outstanding = 16 - 2 * (m_ + 1) + issued
                p(f"s_waitcnt lgkmcnt({min(outstanding, 15)})")
                have = m_
            J = aa + bb
            first = (rr == 0 and (aa, bb) == min((t for t in pairs if t[0] + t[1] == J), key=lambda t: pairs.index(t)))
            c = '0' if first else vr(CA + 4 * J, 4)
            p(f"v_mfma_f32_16x16x32_f16 {vr(CA+4*J,4)}, {vr(FA[bsel]+4*aa,4)}, {vr(FB[bsel]+4*bb,4)}, {c}")
            if have == 7 or True:
                if have == 7 and nxt:
                    for x in nxt: p(x)
                    nxt = []; issued = 16
    stamp(p, 6)
    for r in FA + FB: V.free(r, 32)
    p(f"""s_barrier
    s_lshl_b32 s60, s{S_WAVE}, 12
    v_add_u32 v{t1}, s60, v{vL16}
    s_xor_b32 s60, s60, 4096
    v_add_u32 v{t2}, s60, v{vL16}
    s_and_b32 s62, s{S_WAVE}, 1
    s_cmp_eq_u32 s62, 0
    s_cbranch_scc1 L_b_e0""")
    for k in range(4): p(f"ds_write_b128 v{t1}, {vr(CA+4*k,4)} offset:{KC+k*1024}")
    for k in range(16): p(f"v_mov_b32 v{CA+k}, v{CA+16+k}")
    p("s_branch L_b_e1\nL_b_e0:")
    for k in range(4): p(f"ds_write_b128 v{t1}, {vr(CA+16+4*k,4)} offset:{KC+k*1024}")
    p("L_b_e1:")
    XN = a(8, 2); O = CA + 16
    p(f"""s_lshr_b32 s60, s{S_WAVE}, 1
    s_mul_i32 s75, s60, {XCH}
    s_lshl_b32 s62, s62, 11
    s_add_u32 s75, s75, s62
    v_lshlrev_b32 v{t0}, 5, v{vi}
    v_lshl_add_u32 v{t0}, v{vg}, 3, v{t0}
    v_add_u32 v{t0}, s75, v{t0}""")
    for k in range(4): p(f"ds_read_b64 {vr(XN+2*k,2)}, v{t0} offset:{XBL + 512 + k*512}")
    p("s_waitcnt lgkmcnt(0)\n s_barrier")
    for k in range(4): p(f"ds_read_b128 {vr(O+4*k,4)}, v{t2} offset:{KC+k*1024}")
    p(f"""v_lshlrev_b32 v{t3}, 6, v{vi}
    v_lshl_add_u32 v{t3}, v{vg}, 4, v{t3}
    s_lshl_b32 s60, s63, 13
    s_lshl_b32 s62, s62, 1
    s_add_u32 s60, s60, s62
    s_add_u32 s60, s60, {ST}""")
    Y = a(4, 2); Xf = a(4, 2); GG = [a(4, 2), a(4, 2)]
    for k in range(4):
        g_ = GG[k & 1]
        p(f"s_waitcnt lgkmcnt({3-k})")
        for r in range(4):
            p(f"v_add_f32 v{Y+r}, v{CA+4*k+r}, v{O+4*k+r}")
            p(f"v_ldexp_f32 v{Y+r}, v{Y+r}, s72")
        for h in range(2):
            p(f"""v_cvt_f32_f16 v{Xf+2*h}, v{XN+2*k+h}
            v_cvt_f32_f16_sdwa v{Xf+2*h+1}, v{XN+2*k+h} dst_sel:DWORD dst_unused:UNUSED_PAD src0_sel:WORD_1""")
        for r in range(4): p(f"v_mul_f32 v{Xf+r}, v{Xf+r}, v{vDk}")
        for h in range(2):
            p(f"""v_cvt_pk_bf16_f32 v{t0}, v{Y+2*h}, v{Y+2*h+1}
            v_cvt_pk_bf16_f32 v{t1}, v{Xf+2*h}, v{Xf+2*h+1}
            v_lshlrev_b32 v{Y+2*h}, 16, v{t0}
            v_and_b32 v{Y+2*h+1}, 0xffff0000, v{t0}
            v_lshlrev_b32 v{Xf+2*h}, 16, v{t1}
            v_and_b32 v{Xf+2*h+1}, 0xffff0000, v{t1}
            v_pk_add_f32 {vr(Y+2*h,2)}, {vr(Y+2*h,2)}, {vr(Xf+2*h,2)}
            v_cvt_pk_bf16_f32 v{g_+h}, v{Y+2*h}, v{Y+2*h+1}""")
        if k < 2: p(f"v_mov_b32 v{g_+2}, s{S_TAGA}\n v_mov_b32 v{g_+3}, s{S_TAGB}")
        p(f"buffer_store_dwordx4 {vr(g_,4)}, v{t3}, s[4:7], s60 offen offset:{k*1024} sc1")
    stamp(p, 7)
    p(f"""s_or_b32 s60, s2, s{S_WAVE}
    s_cmp_lg_u32 s60, 0
    s_cbranch_scc1 L_b_done""")
    if cfg.only != 'B':
        FL = a(8, 2)
        p(f"""v_lshlrev_b32 v{t3}, 8, v{lane}
        s_mov_b32 s62, 0
L_b_gpoll:""")
        for i in range(4):
            p(f"s_mov_b32 s60, {HFLAG + i*16384}\n buffer_load_dwordx2 {vr(FL+2*i,2)}, v{t3}, s[4:7], s60 offen sc1")
        p(f"s_waitcnt vmcnt(0)\n v_mov_b32 v{t0}, 0")
        for i in range(4):
            p(f"""v_xor_b32 v{t1}, s{S_TAGA}, v{FL+2*i}
            v_xor_b32 v{t2}, s{S_TAGB}, v{FL+2*i+1}
            v_or3_b32 v{t0}, v{t0}, v{t1}, v{t2}""")
        p(f"""v_cmp_ne_u32 vcc, 0, v{t0}
        s_add_u32 s62, s62, 1
        s_cmp_eq_u64 vcc, 0
        s_cbranch_scc1 L_b_gok
        s_cmp_ge_u32 s62, {SPIN_MAX}
        s_cbranch_scc1 L_b_gok
        s_sleep 4
        s_branch L_b_gpoll
L_b_gok:""")
    p(f"""v_mov_b32 v{t0}, s{S_TAGA}
    v_mov_b32 v{t1}, 0
    s_mov_b64 exec, 1
    buffer_store_dword v{t0}, v{t1}, s[4:7], 0 offen offset:{GEN}
    s_mov_b64 exec, -1
L_b_done:""")
    stamps_out(p, 8, CA)
    p("s_endpgm")
    return V.hi_used

def build():
    p = Prog(); p.nopk = bool(cfg.nopk)
    name = NAME + "_kernel"
    p(f""".globl {name}
.p2align 8
.type {name},@function
{name}:
    s_cmp_ge_u32 s2, 512
    s_cbranch_scc1 L_exit
    s_load_dwordx16 s[16:31], s[0:1], 0
    s_load_dwordx16 s[32:47], s[0:1], 64
    s_load_dwordx2 s[48:49], s[0:1], 128""")
    if cfg.cpf:
        p(f"""s_getpc_b64 s[52:53]
        s_lshr_b32 s54, s2, 3
        s_and_b32 s54, s54, 15
        s_lshl_b32 s54, s54, 12
        v_lshl_add_u32 v4, v0, 4, s54
        v_min_u32 v4, CODE_END_OFF, v4
        global_load_dwordx4 v[252:255], v4, s[52:53]""")
    stamp(p, 0)
    p(f"""v_lshrrev_b32 v1, 6, v0
    v_readfirstlane_b32 s{S_WAVE}, v1
    v_and_b32 v1, 63, v0
    v_mov_b32 v3, 0
    s_waitcnt lgkmcnt(0)
    s_mov_b32 s4, s48
    s_mov_b32 s5, s49
    s_mov_b32 s6, 0x10000000
    s_mov_b32 s7, 0x20000
    buffer_load_dword v2, v3, s[4:7], 0 offen offset:{GEN} sc1
    s_cmp_ge_u32 s2, 256
    s_cbranch_scc1 L_role_A""")
    if cfg.only == 'A':
        p("s_endpgm"); hb = 0
    else:
        import roleB
        hb = roleB.role_B(p, 2, sys.modules[__name__])
    p("L_role_A:")
    ha = 0
    if cfg.only != 'B':
        import roleA
        ha = roleA.role_A(p, 2, sys.modules[__name__])
    p("L_exit:\n s_endpgm")
    n = p.fix_hazards()
    print("vgprs B %d A %d, nops inserted %d, instrs %d" % (hb, ha, n, len(p.ins)), file=sys.stderr)
    import subprocess, re as _re
    body = p.text()
    if cfg.cpf:
        tmp = '.amdgcn_target "amdgcn-amd-amdhsa--gfx950"\n.text\n' + body.replace('CODE_END_OFF', '0x12345')
        open('_sz.s', 'w').write(tmp)
        subprocess.run(['clang', '-x', 'assembler', '-target', 'amdgcn-amd-amdhsa', '-mcpu=gfx950', '-c', '_sz.s', '-o', '_sz.o'], check=True)
        o = subprocess.run(['llvm-objdump', '-h', '_sz.o'], capture_output=True, text=True).stdout
        sz = int(_re.search(r'\.text\s+([0-9a-f]+)', o).group(1), 16)
        print("code bytes", sz, file=sys.stderr)
        body = body.replace('CODE_END_OFF', str((sz - 64) & ~15))
    hdr = open('cdna_kernels/' + NAME + '.s.ref').read().split('; Override launch')[0]
    hdr += f"; @launch kernel={name} grid=(512,1,1) block=(256,1,1) lds={LDS_BYTES}\n"
    hdr += '.amdgcn_target "amdgcn-amd-amdhsa--gfx950"\n.text\n'
    return hdr + body + '.section .rodata,"a"\n.p2align 6\n' + kernel_desc(name, 256)

if __name__ == '__main__':
    import __main__
    out = sys.argv[1]
    for o in sys.argv[2:]:
        if o == 'ts': cfg.ts = True
        elif o == 'dumpK': cfg.dumpK = True
        elif o.startswith('only='): cfg.only = o[5:]
        elif o.startswith('spin='): SPIN_MAX = int(o[5:])
        elif '=' in o: setattr(cfg, o.split('=')[0], int(o.split('=')[1]))
    open(out, 'w').write(build())
```

```python
from asmlib import *
import math, sys
from collections import deque

class Cnt:
    def __init__(self, p, name, cap):
        self.p = p; self.name = name; self.cap = cap; self.ops = []; self.done = 0
    def issue(self, tag): self.ops.append(tag)
    def wait(self, tag):
        idx = max((i for i, t in enumerate(self.ops) if t == tag), default=-1)
        assert idx >= 0, ('wait for never-issued', tag)
        if idx < self.done: return
        n = min(len(self.ops) - 1 - idx, self.cap)
        self.p(f"s_waitcnt {self.name}({n})")
        self.done = len(self.ops) - n
    def wait_all(self):
        self.p(f"s_waitcnt {self.name}(0)"); self.done = len(self.ops)

def role_A(p, vgen, G):
    S_WAVE, S_TAGA, S_TAGB = G.S_WAVE, G.S_TAGA, G.S_TAGB
    f32 = G.f32; cfg = G.cfg; stamp = G.stamp; srd = G.srd; PTR = G.PTR
    REGS = 20480; NU = 10
    NXP = cfg.nxp
    V = Regs('v', 4, 256); a = V.alloc
    lane = 1
    vm = Cnt(p, 'vmcnt', 63); lg = Cnt(p, 'lgkmcnt', 15)
    vm.issue('cpf'); vm.issue('gen')
    t0 = a(); t1 = a(); t2 = a(); t3 = a()
    S2 = a(12, 4)
    CFR = S2; vA = S2 + 8
    TG = S2 + 2; FL = S2 + 4; vB2o = S2 + 6; vOo = S2 + 8; vSo = S2 + 9; vSw = S2 + 10; vSr = S2 + 11; vH = [S2, S2 + 1]
    vW2o = a(2); vHo = a(); vABo = a()
    X = a(128, 4)
    vXr = a(4, 2); vXo = a(4); vWo = a(2); AB_ = a(4, 4)
    vT = vXr; vFo = vXr + 2
    ACC = a(64, 4); FR = a(24, 4)
    if cfg.prio: p(f"s_setprio {cfg.prio}")
    p(f"""s_sub_u32 s60, s2, 256
    s_and_b32 s61, s60, 7
    s_lshr_b32 s62, s60, 3""")
    srd(p, 8, 0, 2048 * 1024)
    srd(p, 12, 10, 512 * 3584)
    p(f"""s_mul_i32 s71, s{S_WAVE}, {REGS}
    v_lshrrev_b32 v{t0}, 3, v{lane}
    v_and_b32 v{t1}, 7, v{lane}
    v_mul_u32_u24 v{vWo}, 3584, v{t0}
    v_bfe_u32 v{t2}, v{lane}, 4, 1
    v_lshlrev_b32 v{t2}, 2, v{t2}
    v_xor_b32 v{t2}, v{t1}, v{t2}
    v_lshl_add_u32 v{vWo}, v{t2}, 4, v{vWo}
    v_add_u32 v{vWo+1}, {8*3584 - 1024}, v{vWo}
    s_cmp_ge_u32 s62, 28
    s_cbranch_scc1 L_a_nog1""")
    p(f"""s_mul_i32 s63, s62, 37
    s_lshr_b32 s63, s63, 8
    s_mul_i32 s64, s63, 7
    s_sub_u32 s64, s62, s64
    s_lshr_b32 s65, s61, 1
    s_lshl_b32 s65, s65, 2
    s_add_u32 s63, s63, s65
    s_and_b32 s65, s61, 1
    s_mul_i32 s65, s65, 7
    s_add_u32 s64, s64, s65
    v_lshrrev_b32 v{t2}, 4, v{lane}
    v_xor_b32 v{t2}, v{t1}, v{t2}
    v_lshlrev_b32 v{t2}, 4, v{t2}
    v_lshl_add_u32 v{vXo}, v{t0}, 10, v{t2}
    v_xor_b32 v{vXo+1}, 64, v{vXo}
    v_add_u32 v{vXo+1}, {7168}, v{vXo+1}
    v_add_u32 v{vXo+2}, {2*7168}, v{vXo}
    v_add_u32 v{vXo+3}, {2*7168}, v{vXo+1}
    s_lshl_b32 s68, s63, 17
    s_lshl_b32 s65, s{S_WAVE}, 15
    s_add_u32 s68, s68, s65
    s_add_u32 s69, s62, s61
    s_and_b32 s69, s69, {7 if cfg.rot else 0}
    s_lshl_b32 s65, s69, 7
    s_add_u32 s77, s68, s65
    s_mul_i32 s70, s{S_WAVE}, {16*3584}
    s_lshl_b32 s65, s64, 8
    s_add_u32 s70, s70, s65""")
    def xr(kc, sg): return X + (kc * 4 + sg) * 4
    SK = 18
    hi = deque(); lo = deque()
    def pump(n, nlo=0):
        k = 0
        while k < n and hi: hi.popleft()(); k += 1
        while nlo > 0 and lo: lo.popleft()(); nlo -= 1
    def drain_q():
        while hi: hi.popleft()()
        while lo: lo.popleft()()
    unit_of = {}
    free_units = deque(range(2 * NXP, NU))
    pend = deque([('w1', t) for t in range(16)] + [('w2', k) for k in range(28)])
    def g2_phys(k): return 2 * k if k < 14 else 2 * (k - 14) + 1
    sk_done = set(); wseq = [0]; hseq = [0]
    def dma_item(item, u, cnt):
        kind, t = item
        unit_of[item] = u
        kc = t & 7
        def f():
            p(f"s_add_u32 m0, s71, {u*2048}")
            if kind == 'w1':
                if kc not in sk_done:
                    sk_done.add(kc)
                    p(f"""s_xor_b32 s65, s69, {kc}
                    s_mul_i32 s65, s65, {64*3584}
                    s_add_u32 s{SK+kc}, s65, s70""")
                else:
                    p(f"s_add_u32 s{SK+kc}, s{SK+kc}, 128")
                p(f"buffer_load_dwordx4 v{vWo}, s[12:15], s{SK+kc} offen lds")
            else:
                p(f"""s_add_u32 s35, s73, {64*g2_phys(t)*1024}
                buffer_load_dwordx4 v{vW2o}, s[52:55], s35 offen lds""")
            cnt.issue(item)
        def g():
            if kind == 'w1': p(f"buffer_load_dwordx4 v{vWo+1}, s[12:15], s{SK+kc} offen offset:1024 lds")
            else: p(f"buffer_load_dwordx4 v{vW2o+1}, s[52:55], s35 offen offset:1024 lds")
            cnt.issue(item)
        return [f, g]
    def refill(q, cnt):
        while free_units and pend:
            for f in dma_item(pend.popleft(), free_units.popleft(), cnt): q.append(f)
    def dma_x(t):
        out = []
        for i in range(4):
            def f(i=i):
                if i == 0:
                    p(f"s_add_u32 m0, s71, {(t % NXP)*4096}")
                    p(f"s_xor_b32 s35, s77, {t*128}")
                p(f"buffer_load_dwordx4 v{vXo+i}, s[8:11], s35 offen offset:{i*1024} lds")
                vm.issue(('x', t))
            out.append(f)
        return out
    for t in range(NXP):
        for f in dma_x(t): f()
        for f in dma_item(pend.popleft(), free_units.popleft(), vm): f()
    refill(hi, vm)
    for _ in range(cfg.ni): hi.popleft()()
    def g2_setup():
        srd(p, 52, 12, 1792 * 1024)
        srd(p, 56, 14, 2048 * 1024)
        p(f"""s_lshl_b32 s78, s61, 2
        s_lshr_b32 s65, s62, 3
        s_add_u32 s78, s78, s65
        s_and_b32 s79, s62, 7
        s_lshr_b32 s66, s{S_WAVE}, 1
        s_and_b32 s67, s{S_WAVE}, 1
        v_lshrrev_b32 v{t0}, 3, v{lane}
        v_lshlrev_b32 v{vW2o}, 10, v{t0}
        v_and_b32 v{t0}, 7, v{lane}
        v_bfe_u32 v{t1}, v{lane}, 4, 1
        v_lshlrev_b32 v{t1}, 1, v{t1}
        v_xor_b32 v{t0}, v{t0}, v{t1}
        v_lshl_add_u32 v{vW2o}, v{t0}, 4, v{vW2o}
        v_add_u32 v{vW2o+1}, 7168, v{vW2o}
        s_lshl_b32 s73, s{S_WAVE}, 14
        s_lshl_b32 s65, s79, 7
        s_add_u32 s73, s73, s65
        v_lshlrev_b32 v{vHo}, 4, v{lane}""")
    def va_setup(dst):
        p(f"""v_lshrrev_b32 v{t0}, 5, v{lane}
        v_lshlrev_b32 v{t0}, 10, v{t0}
        v_bfe_u32 v{t1}, v{lane}, 2, 2
        v_lshl_add_u32 v{t0}, v{t1}, 7, v{t0}
        v_bfe_u32 v{t1}, v{lane}, 4, 1
        v_lshl_add_u32 v{t0}, v{t1}, 5, v{t0}
        v_and_b32 v{t1}, 3, v{lane}
        v_lshl_add_u32 v{t0}, v{t1}, 3, v{t0}
        v_bfe_u32 v{t1}, v{lane}, 3, 1
        v_lshl_add_u32 v{dst}, v{t1}, 6, v{t0}""")
    g2_setup()
    va_setup(vA)
    p(f"""v_xor_b32 v{vA+1}, 64, v{vA}
    v_add_u32 v{vA+2}, {REGS}, v{vA}
    v_add_u32 v{vA+3}, {REGS}, v{vA+1}
    v_and_b32 v{t0}, 31, v{lane}
    v_lshlrev_b32 v{vABo}, 4, v{t0}
    v_bfe_u32 v{t1}, v{lane}, 1, 3
    v_lshrrev_b32 v{t2}, 5, v{lane}
    v_xor_b32 v{t1}, v{t1}, v{t2}
    v_lshlrev_b32 v{t1}, 4, v{t1}
    v_lshl_add_u32 v{t1}, v{t0}, 7, v{t1}
    v_add_u32 v{vXr}, s71, v{t1}
    v_xor_b32 v{vXr+1}, 32, v{vXr}
    v_xor_b32 v{vXr+2}, 64, v{vXr}
    v_xor_b32 v{vXr+3}, 96, v{vXr}
    s_lshr_b32 s72, s68, 6
    s_add_u32 s72, s72, {G.AB}
    s_lshl_b32 s76, s64, 12
    s_add_u32 s76, s76, {G.CF}""")
    def acc(phi, mu): return ACC + (phi * 2 + mu) * 16
    PF = 2
    def rd_frag(n, mus=(0, 1)):
        t, sg = n >> 2, n & 3
        b = FR + (n % 3) * 8
        u = unit_of[('w1', t)]
        for mu in mus:
            for rho in range(2):
                p(f"ds_read_b64_tr_b16 {vr(b + mu*4 + rho*2, 2)}, v{vA + (sg&1)*2 + mu} offset:{(sg>>1)*2*REGS + u*2048 + rho*512}")
                lg.issue(('fr', n))
    def x_drain(t):
        out = []
        for h in range(2):
            def r(h=h):
                if h == 0:
                    assert vm.ops.count(('x', t)) == 4
                    vm.wait(('x', t))
                for sg in range(2 * h, 2 * h + 2):
                    p(f"ds_read_b128 {vr(xr(t,sg),4)}, v{vXr+sg} offset:{(t % NXP)*4096}")
                    lg.issue(('xr', t) if h else ('xr0', t))
            out.append(r)
        return out
    def x_next(t):
        def w():
            lg.wait(('xr', t))
            if t + NXP < 8:
                for f in dma_x(t + NXP): hi.append(f)
            else:
                free_units.append((t % NXP) * 2); free_units.append((t % NXP) * 2 + 1)
                refill(hi, vm)
        return w
    C1 = -2 * 0.7978845608028654 * G.LOG2E; C2 = C1 * 0.044715
    K1 = vXo; K2 = vXo + 1; IA = vXo + 2
    def ld_cf(phi, withab):
        if withab: p(f"buffer_load_dwordx4 {vr(AB_,4)}, v{vABo}, s[4:7], s72 offen sc1")
        for mu in range(2):
            p(f"buffer_load_dwordx4 {vr(CFR+4*mu,4)}, v{vHo}, s[4:7], s76 offen offset:{phi*2048 + mu*1024} sc1")
    def corr(phi):
        p(f"s_mov_b32 s69, 0\nL_a_cfpoll{phi}:")
        vm.wait(('cf', phi))
        p(f"""v_xor_b32 v{t0}, s{S_TAGA}, v{CFR+3}
        v_xor_b32 v{t1}, s{S_TAGA}, v{CFR+7}""")
        if phi == 0: p(f"v_xor_b32 v{t2}, s{S_TAGA}, v{AB_+3}\n v_or3_b32 v{t0}, v{t0}, v{t1}, v{t2}")
        else: p(f"v_or_b32 v{t0}, v{t0}, v{t1}")
        p(f"""v_cmp_ne_u32 vcc, 0, v{t0}
        s_add_u32 s69, s69, 1
        s_cmp_eq_u64 vcc, 0
        s_cbranch_scc1 L_a_cfok{phi}
        s_cmp_ge_u32 s69, {G.SPIN_MAX}
        s_cbranch_scc1 L_a_cfok{phi}
        s_sleep 1""")
        ld_cf(phi, phi == 0)
        p(f"""s_waitcnt vmcnt(0)
        s_branch L_a_cfpoll{phi}
L_a_cfok{phi}:
        v_mov_b32 v{CFR+3}, 0
        v_mov_b32 v{CFR+7}, 0""")
        if phi == 0:
            p(f"""v_and_b32 v{IA}, 0xffff0000, v{AB_+1}
            v_lshlrev_b32 v{t0}, 16, v{AB_+2}
            v_add_f32 v{IA}, v{IA}, v{t0}
            v_rcp_f32 v{t0}, v{IA}
            v_mov_b32 v{AB_+3}, 0
            v_mul_f32 v{K1}, {f32(C1)}, v{t0}
            v_mul_f32 v{t1}, v{t0}, v{t0}
            v_mul_f32 v{t1}, v{t1}, v{t0}
            v_mul_f32 v{K2}, {f32(C2)}, v{t1}
            s_lshl_b32 s72, s63, 2
            s_add_u32 s72, s72, s{S_WAVE}
            s_mul_i32 s72, s72, {112*1024}
            s_lshl_b32 s65, s64, 13
            s_add_u32 s72, s72, s65
            s_add_u32 s72, s72, {G.HB}""")
        else:
            p("s_add_u32 s72, s72, 4096")
        for mu in range(2):
            p(f"v_mfma_f32_32x32x16_bf16 {vr(acc(phi,mu),16)}, {vr(CFR+4*mu,4)}, {vr(AB_,4)}, {vr(acc(phi,mu),16)}")
    GT = X
    def gelu_ops(phi):
        ops = []
        quarters = [(mu, q) for mu in range(2) for q in range(4)]
        for k, (mu, q) in enumerate(quarters):
            tm = GT + (k & 1) * 4; ac = acc(phi, mu) + 4 * q; ho = GT + 8 + ((k >> 1) & 1) * 4
            L = []
            for j in range(4): L.append(f"v_mul_f32 v{tm+j}, v{ac+j}, v{ac+j}")
            for j in range(4): L.append(f"v_fma_f32 v{tm+j}, v{tm+j}, v{K2}, v{K1}")
            for j in range(4): L.append(f"v_mul_f32 v{tm+j}, v{tm+j}, v{ac+j}")
            for j in range(4): L.append(f"v_exp_f32 v{tm+j}, v{tm+j}")
            for j in range(4): L.append(f"v_fma_f32 v{tm+j}, v{tm+j}, v{IA}, v{IA}")
            for j in range(4): L.append(f"v_rcp_f32 v{tm+j}, v{tm+j}")
            for j in range(4): L.append(f"v_mul_f32 v{tm+j}, v{tm+j}, v{ac+j}")
            for j in range(2): L.append(f"v_cvt_pk_bf16_f32 v{ho + (q&1)*2 + j}, v{tm+2*j}, v{tm+2*j+1}")
            for l in L: ops.append(lambda l=l: p(l))
            if q & 1:
                def st(mu=mu, q=q, ho=ho):
                    p(f"buffer_store_dwordx4 {vr(ho,4)}, v{vHo}, s[4:7], s72 offen offset:{mu*2048 + (q>>1)*1024} sc1")
                    vm.issue(('hst', phi))
                ops.append(st)
        return ops
    def flag(phi, cnt, tg):
        p(f"""v_mov_b32 v{tg}, s{S_TAGA}
        v_mov_b32 v{tg+1}, s{S_TAGB}
        s_lshl_b32 s65, s60, 2
        s_add_u32 s65, s65, s{S_WAVE}
        s_lshl_b32 s65, s65, 6
        s_add_u32 s65, s65, {G.HFLAG + phi*G.HFLAG1}
        v_mov_b32 v{t0}, 0
        s_mov_b64 exec, 1
        buffer_store_dwordx2 {vr(tg,2)}, v{t0}, s[4:7], s65 offen sc1
        s_mov_b64 exec, -1""")
        cnt.issue(('flag', phi))
    def lines(txt): return [(lambda l=l: p(l)) for l in txt.strip().split('\n')]
    vt_txt = f"""v_lshrrev_b32 v{t2}, 5, v{lane}
        v_lshlrev_b32 v{t2}, 9, v{t2}
        v_bfe_u32 v{t3}, v{lane}, 2, 2
        v_lshl_add_u32 v{t2}, v{t3}, 7, v{t2}
        v_and_b32 v{t3}, 1, v{lane}
        v_lshl_add_u32 v{t2}, v{t3}, 6, v{t2}
        v_bfe_u32 v{t3}, v{lane}, 4, 1
        v_lshl_add_u32 v{t2}, v{t3}, 4, v{t2}
        v_bfe_u32 v{t3}, v{lane}, 1, 1
        v_lshl_add_u32 v{t2}, v{t3}, 3, v{t2}
        v_bfe_u32 v{t3}, v{lane}, 3, 1
        v_xor_b32 v{t3}, s67, v{t3}
        v_lshl_add_u32 v{t2}, v{t3}, 5, v{t2}
        v_add_u32 v{vT}, s71, v{t2}
        v_xor_b32 v{vT+1}, 32, v{vT}
        v_min_u32 v{t3}, 27, v{lane}
        v_lshrrev_b32 v{t2}, 1, v{t3}
        v_mul_u32_u24 v{vFo}, 37, v{t2}
        v_lshrrev_b32 v{vFo}, 8, v{vFo}
        v_mul_u32_u24 v{vFo+1}, 7, v{vFo}
        v_sub_u32 v{t2}, v{t2}, v{vFo+1}
        s_lshr_b32 s28, s78, 1
        s_and_b32 s29, s28, 3
        s_mul_i32 s29, s29, 7
        v_add_u32 v{t2}, s29, v{t2}
        s_lshr_b32 s28, s28, 2
        s_lshl_b32 s28, s28, 1
        v_add_u32 v{vFo}, s28, v{vFo}
        v_lshl_add_u32 v{t2}, v{t2}, 3, v{vFo}
        s_and_b32 s28, s78, 1
        s_lshl_b32 s28, s28, 1
        v_and_b32 v{t3}, 1, v{t3}
        v_add_u32 v{t3}, s28, v{t3}
        v_lshl_add_u32 v{t2}, v{t2}, 2, v{t3}
        v_lshlrev_b32 v{vFo}, 6, v{t2}
        s_mul_i32 s30, s78, {2*112*1024}
        s_lshl_b32 s28, s{S_WAVE}, 10
        s_add_u32 s30, s30, s28
        s_add_u32 s30, s30, {G.HB}
        s_mul_i32 s31, s66, {112*1024}
        s_sub_u32 s32, {112*1024}, s31"""
    NK_R = cfg.nkr
    BLK = lambda i: X + 8 * i
    wblk = {k: BLK(2 + k) for k in range(NK_R)}
    def rd_w2(k, dst, lgc, mds=(0, 1)):
        u = unit_of[('w2', k)]
        for md in mds:
            for rho in range(2):
                p(f"ds_read_b64_tr_b16 {vr(dst + md*4 + rho*2, 2)}, v{vT+md} offset:{u*2048 + rho*1024}")
                lgc.issue(('w2r', k))
    def mv(k):
        def f():
            while vm.ops.count(('w2', k)) < 2: hi.popleft()()
            vm.wait(('w2', k)); rd_w2(k, wblk[k], lg)
        def g():
            lg.wait(('w2r', k)); free_units.append(unit_of[('w2', k)]); refill(hi, vm)
        return f, g
    FB_ = {0: (G.HFLAG, vFo), 1: (G.HFLAG + G.HFLAG1, vFo), 2: (G.SFLAG, vFo + 1)}
    def poll_issue(phi, cnt):
        p(f"s_mov_b32 s65, {FB_[phi][0]}\n buffer_load_dwordx2 {vr(FL,2)}, v{FB_[phi][1]}, s[4:7], s65 offen sc1")
        cnt.issue(('poll', phi))
    def poll_check(phi, cnt, sfx=''):
        p(f"s_mov_b32 s69, 0\nL_a_hpoll{phi}{sfx}:")
        cnt.wait(('poll', phi))
        p(f"""v_xor_b32 v{t0}, s{S_TAGA}, v{FL}
        v_xor_b32 v{t1}, s{S_TAGB}, v{FL+1}
        v_or_b32 v{t0}, v{t0}, v{t1}
        v_cmp_ne_u32 vcc, 0, v{t0}
        s_add_u32 s69, s69, 1
        s_cmp_eq_u64 vcc, 0
        s_cbranch_scc1 L_a_hok{phi}{sfx}
        s_cmp_ge_u32 s69, {G.SPIN_MAX}
        s_cbranch_scc1 L_a_hok{phi}{sfx}
        s_mov_b32 s65, {FB_[phi][0]}
        s_sleep 1
        buffer_load_dwordx2 {vr(FL,2)}, v{FB_[phi][1]}, s[4:7], s65 offen sc1
        s_waitcnt vmcnt(0)
        s_branch L_a_hpoll{phi}{sfx}
L_a_hok{phi}{sfx}:""")
    hblk = {}; nh = [0]; lim = [14]
    hfree = deque([FR, FR + 8, FR + 16] + [BLK(i) for i in range(2 + NK_R, 16)])
    WF = [hfree.pop(), hfree.pop()]
    def ld_h1(k, r, cnt, nt):
        if nt == 0: p(f"s_add_u32 s36, s30, {g2_phys(k)*4096}")
        p(f"buffer_load_dwordx4 {vr(r + nt*4, 4)}, v{vH[nt]}, s[4:7], s36 offen sc1")
        cnt.issue(('h', k))
    def ld_h(k, r, cnt):
        ld_h1(k, r, cnt, 0); ld_h1(k, r, cnt, 1)
    def ld_h_all():
        while hfree and nh[0] < lim[0]:
            k = nh[0]; nh[0] += 1
            r = hfree.popleft(); hblk[k] = r
            hi.append(lambda k=k, r=r: ld_h1(k, r, vm, 0))
            hi.append(lambda k=k, r=r: ld_h1(k, r, vm, 1))
    vh_txt = f"""v_add_u32 v{vH[0]}, s31, v{vHo}
        v_add_u32 v{vH[1]}, s32, v{vHo}"""
    vm.wait('gen')
    G.make_tags(p, vgen)
    for f in x_drain(0): f()
    stamp(p, 1)
    vm.wait(('w1', 0))
    p("s_barrier")
    for n in range(PF): rd_frag(n)
    x_next(0)()
    flagged = [False]; mvd = [0]; issued_at = {}; delayed = deque()
    for n in range(64):
        t, sg = n >> 2, n & 3
        phi, kc = t >> 3, t & 7
        if sg == 0 and t + 1 < 8:
            for f in x_drain(t + 1): hi.append(f)
        if sg == 2 and t + 1 < 8: hi.append(x_next(t + 1))
        if n == cfg.gstart - 8:
            def l0():
                ld_cf(0, True)
                for _ in range(3): vm.issue(('cf', 0))
            hi.append(l0)
        if n == 29:
            for f in lines(vt_txt): lo.append(f)
        if n == cfg.gstart:
            while lo: lo.popleft()()
            lo.append(lambda: corr(0))
            def l1():
                ld_cf(1, False)
                for _ in range(2): vm.issue(('cf', 1))
            for _ in range(4): lo.append(lambda: None)
            lo.append(l1)
            for f in gelu_ops(0): lo.append(f)
        if phi == 1 and cfg.emv:
            while mvd[0] < NK_R and 2 + mvd[0] < 2 * kc and issued_at.get(mvd[0], 99) + cfg.emv <= n:
                f, g = mv(mvd[0]); mvd[0] += 1
                hi.append(f); delayed.append((n + 2, g))
                break
            while delayed and delayed[0][0] <= n: hi.append(delayed.popleft()[1])
        for k_ in range(28):
            if k_ not in issued_at and vm.ops.count(('w2', k_)) == 2: issued_at[k_] = n
        m = n + PF
        if m < 64 and (m & 3) == 0:
            tn = m >> 2
            while vm.ops.count(('w1', tn)) < 2: pump(1)
            vm.wait(('w1', tn))
            p("s_barrier")
            if tn >= 2:
                free_units.append(unit_of[('w1', tn - 2)]); refill(hi, vm)
        if phi == 0 and sg == 0:
            while ('xr', t) not in lg.ops: pump(1)
            lg.wait(('xr', t))
        lg.wait(('fr', n))
        b = FR + (n % 3) * 8
        first = (kc == 0 and sg == 0)
        for mu in range(2):
            cc = '0' if first else vr(acc(phi, mu), 16)
            p(f"v_mfma_f32_32x32x16_bf16 {vr(acc(phi,mu),16)}, {vr(b+mu*4,4)}, {vr(xr(kc, sg),4)}, {cc}")
            if m < 64: rd_frag(m, (mu,))
            if hi: pump(1, max(0, cfg.glo - 2))
            else: pump(0, cfg.glo)
        if n >= cfg.fl0 and not lo and not flagged[0]:
            vm.wait(('hst', 0)); flag(0, vm, GT); flagged[0] = True
        if cfg.fine and sg == 3 and t % 2 == 1 and t < 15: stamp(p, 2 + t // 2)
    while lo: lo.popleft()()
    if cfg.fine:
        stamp(p, 9)
        stamp = lambda p, k: None
    corr(1)
    if not flagged[0]:
        vm.wait(('hst', 0)); flag(0, vm, FR)
    p("s_barrier")
    stamp(p, 2)
    for tt in (14, 15): free_units.append(unit_of[('w1', tt)])
    refill(hi, vm)
    p(vh_txt)
    g1 = gelu_ops(1)
    order = []
    while delayed: hi.append(delayed.popleft()[1])
    fg = {k: mv(k) for k in range(mvd[0], NK_R)}
    for k in range(mvd[0], NK_R + 1):
        if k < NK_R: order.append(fg[k][0])
        if k - 1 in fg: order.append(fg[k - 1][1])
    print("moved early", mvd[0], "issued", len(issued_at), file=sys.stderr)
    for gi, g in enumerate(g1):
        g()
        if hi and gi % cfg.gdm == 0: hi.popleft()()
    if cfg.fine2: stamp(p, 3)
    poll_issue(0, vm)
    for oi, o in enumerate(order): o()
    if cfg.fine2: stamp(p, 4)
    vm.wait(('hst', 1)); flag(1, vm, TG)
    if cfg.fine2: stamp(p, 5)
    hfree.append(BLK(0)); hfree.append(BLK(1))
    poll_check(0, vm)
    if cfg.fine2: stamp(p, 6)
    dm = list(hi); hi.clear()
    ld_h_all()
    hl = list(hi); hi.clear()
    for f in hl[:2*cfg.nh0]: f()
    hl = hl[2*cfg.nh0:]
    assert all(vm.ops.count(o) == 2 for o in vm.ops if isinstance(o, tuple) and o[0] in ('w2', 'h')), 'half-issued item at join'
    while hl or dm:
        if hl: hi.append(hl.pop(0))
        if hl: hi.append(hl.pop(0))
        if dm: hi.append(dm.pop(0))
    emitted = set(vm.ops)
    if cfg.fine2:
        stamp(p, 7)
        stamp = lambda p, k: None
    stamp(p, 3)
    p("s_branch L_a_g2")
    p("L_a_nog1:")
    vm2 = Cnt(p, 'vmcnt', 63); lg2 = Cnt(p, 'lgkmcnt', 15)
    p(f"""s_sub_u32 s63, s62, 28
    s_lshl_b32 s63, s63, 3
    s_add_u32 s63, s63, s61
    s_cmp_ge_u32 s63, 28
    s_cbranch_scc1 L_a_nocf
    s_lshr_b32 s64, s63, 1
    s_and_b32 s66, s63, 1
    s_lshl_b32 s70, s66, 2
    s_add_u32 s70, s70, s{S_WAVE}
    s_mul_i32 s70, s70, {64*3584}
    s_lshl_b32 s65, s64, 8
    s_add_u32 s70, s70, s65""")
    for u in range(8):
        p(f"""s_add_u32 m0, s71, {u*2048}
        s_add_u32 s28, s70, {(u & 3)*16*3584 + (u >> 2)*128}
        buffer_load_dwordx4 v{vWo}, s[12:15], s28 offen lds
        buffer_load_dwordx4 v{vWo+1}, s[12:15], s28 offen offset:1024 lds""")
        vm2.issue(('c', u)); vm2.issue(('c', u))
        if u == 3:
            vb = X + 12
            p(f"""v_lshl_add_u32 v{t0}, v{lane}, 1, s65
            global_load_ushort v{vb}, v{t0}, {sr(PTR(11),2)}
            global_load_ushort v{vb+1}, v{t0}, {sr(PTR(11),2)} offset:128""")
            vm2.issue('b1'); vm2.issue('b1')
    SEL = X; ONE = X + 4; CB = X + 24; vj = X + 14; vq = X + 15; vcw = X + 16; vcr = X + 17; vco = X + 19
    va_setup(vA)
    p(f"""v_add_u32 v{vA}, s71, v{vA}
    v_xor_b32 v{vA+1}, 64, v{vA}
    v_and_b32 v{vj}, 15, v{lane}
    v_lshrrev_b32 v{vq}, 4, v{lane}
    v_xor_b32 v{t0}, v{vq}, v{vj}
    v_and_b32 v{t0}, 1, v{t0}
    v_cmp_eq_u32 vcc, 0, v{t0}
    v_mov_b32 v{t1}, 0x3f803f80
    v_cndmask_b32 v{SEL}, 0, v{t1}, vcc
    v_mov_b32 v{SEL+1}, v{SEL}
    v_mov_b32 v{SEL+2}, v{SEL}
    v_mov_b32 v{SEL+3}, v{SEL}
    v_lshlrev_b32 v{vcw}, 6, v{vj}
    v_lshl_add_u32 v{vcw}, v{vq}, 4, v{vcw}
    v_add_u32 v{vcw}, s71, v{vcw}
    v_lshlrev_b32 v{vcr}, 2, v{lane}
    v_add_u32 v{vcr+1}, {2*REGS}, v{vcr}
    v_and_b32 v{t0}, 31, v{lane}
    v_lshlrev_b32 v{vco}, 4, v{t0}
    v_lshrrev_b32 v{t0}, 5, v{lane}
    v_lshl_add_u32 v{vco}, v{t0}, 10, v{vco}
    s_lshl_b32 s29, s64, 12
    s_lshl_b32 s28, s66, 9
    s_add_u32 s29, s29, s28
    s_add_u32 s29, s29, {G.CF}
    s_mov_b32 s74, 0x00030003
    s_mov_b32 s75, 0x00030003
    s_sub_u32 s28, s66, 1""")
    for ph in range(2):
        for u in range(4 * ph, 4 * ph + 4):
            vm2.wait(('c', u))
            for mu in range(2):
                for rho in range(2):
                    p(f"ds_read_b64_tr_b16 {vr(CB + (u&3)*8 + mu*4 + rho*2, 2)}, v{vA+mu} offset:{u*2048 + rho*512}")
                    lg2.issue(('cr', u))
        for u in range(4 * ph, 4 * ph + 4):
            lg2.wait(('cr', u))
            for mu in range(2):
                cc = '0' if (u & 3) == 0 else vr(ONE + 4 * mu, 4)
                p(f"v_mfma_f32_16x16x32_bf16 {vr(ONE+4*mu,4)}, {vr(CB + (u&3)*8 + mu*4,4)}, {vr(SEL,4)}, {cc}")
        if ph == 0:
            vm2.wait('b1'); G.make_tags(p, vgen)
        off = (8 + ph) * 2048
        p(f"""s_mov_b64 exec, s[74:75]
        ds_write_b128 v{vcw}, {vr(ONE,4)} offset:{off}
        ds_write_b128 v{vcw}, {vr(ONE+4,4)} offset:{off+128}
        s_mov_b64 exec, -1
        v_and_b32 v{vb+ph}, s28, v{vb+ph}
        s_waitcnt lgkmcnt(0)
        s_barrier
        ds_read_b32 v{CB}, v{vcr} offset:{off}
        ds_read_b32 v{CB+1}, v{vcr} offset:{off + REGS}
        ds_read_b32 v{CB+2}, v{vcr+1} offset:{off}
        ds_read_b32 v{CB+3}, v{vcr+1} offset:{off + REGS}
        s_waitcnt lgkmcnt(0)
        v_add_f32 v{CB}, v{CB}, v{CB+1}
        v_add_f32 v{CB+2}, v{CB+2}, v{CB+3}
        v_add_f32 v{CB}, v{CB}, v{CB+2}
        v_cvt_pk_bf16_f32 v{CB+1}, v{CB}, v{CB}
        v_and_b32 v{CB+2}, 0xffff0000, v{CB+1}
        v_sub_f32 v{CB+3}, v{CB}, v{CB+2}
        v_cvt_pk_bf16_f32 v{CB+36}, v{CB}, v{CB+3}
        v_and_b32 v{CB+1}, 0xffff, v{CB+1}
        v_lshl_or_b32 v{CB+37}, v{vb+ph}, 16, v{CB+1}
        v_mov_b32 v{CB+38}, v{vb+ph}
        v_mov_b32 v{CB+39}, s{S_TAGA}
        s_cmp_lg_u32 s{S_WAVE}, {ph}
        s_cbranch_scc1 L_a_nocf2{ph}
        buffer_store_dwordx4 {vr(CB+36,4)}, v{vco}, s[4:7], s29 offen offset:{ph*2048} sc1
L_a_nocf2{ph}:""")
        lg2.done = len(lg2.ops)
        stamp(p, 1 + ph)
    p(f"""s_barrier
L_a_nocf:
    s_waitcnt vmcnt(0)
    s_barrier""")
    G.make_tags(p, vgen)
    g2_setup()
    p(vt_txt); p(vh_txt)
    vm2 = Cnt(p, 'vmcnt', 63); lg2 = Cnt(p, 'lgkmcnt', 15)
    save_units = dict(unit_of)
    flag(0, vm2, TG); flag(1, vm2, TG)
    for k0 in range(0, NK_R, 7):
        ks_ = range(k0, min(k0 + 7, NK_R))
        for k in ks_:
            for f in dma_item(('w2', k), k - k0, vm2): f()
        vm2.wait_all()
        for k in ks_: rd_w2(k, wblk[k], lg2)
        lg2.wait_all()
    unit_of.update(save_units)
    for (kind, k), u in sorted(save_units.items()):
        if kind == 'w2' and k >= NK_R and ('w2', k) in emitted:
            for f in dma_item(('w2', k), u, vm2): f()
    poll_issue(0, vm2); poll_check(0, vm2, 'i')
    for k in sorted(hblk):
        if ('h', k) in emitted: ld_h(k, hblk[k], vm2)
    vm2.wait_all()
    p("L_a_g2:")
    ACC2 = ACC
    for r, n in ((vXo, 4), (vWo, 2), (AB_, 4)): V.free(r, n)
    fin_txt = f"""v_and_b32 v{t2}, 31, v{lane}
    v_lshlrev_b32 v{vOo}, 10, v{t2}
    v_lshrrev_b32 v{t2}, 5, v{lane}
    v_lshl_add_u32 v{vOo}, v{t2}, 6, v{vOo}
    s_lshl_b32 s26, s78, 16
    s_lshl_b32 s28, s66, 15
    s_add_u32 s26, s26, s28
    s_lshl_b32 s29, s79, 7
    s_lshl_b32 s28, s67, 5
    s_add_u32 s29, s29, s28
    s_add_u32 s26, s26, s29
    v_lshl_add_u32 v{vB2o}, v{t2}, 6, s29
    v_lshrrev_b32 v{t2}, 2, v{lane}
    v_lshlrev_b32 v{vSo}, 12, v{t2}
    v_and_b32 v{t2}, 3, v{lane}
    v_lshl_add_u32 v{vSo}, v{t2}, 4, v{vSo}
    s_lshl_b32 s27, s79, 18
    s_lshl_b32 s28, s67, 16
    s_add_u32 s27, s27, s28
    s_lshl_b32 s28, s78, 7
    s_add_u32 s27, s27, s28
    s_lshl_b32 s28, s66, 6
    s_add_u32 s27, s27, s28
    s_add_u32 s27, s27, {G.ST}
    v_add_u32 v{vSw}, s71, v{vHo}
    v_and_b32 v{t2}, 15, v{lane}
    v_bfe_u32 v{t3}, v{lane}, 4, 1
    v_lshl_add_u32 v{t2}, v{t3}, 5, v{t2}
    s_lshl_b32 s28, s79, 6
    s_lshl_b32 s29, s67, 4
    s_add_u32 s28, s28, s29
    v_add_u32 v{t2}, s28, v{t2}
    s_lshr_b32 s28, s78, 4
    s_lshl_b32 s28, s28, 6
    v_lshl_add_u32 v{vFo+1}, v{t2}, 7, s28
    v_lshrrev_b32 v{t2}, 5, v{lane}
    v_lshlrev_b32 v{t2}, 10, v{t2}
    v_bfe_u32 v{t3}, v{lane}, 2, 2
    v_lshl_add_u32 v{t2}, v{t3}, 6, v{t2}
    v_bfe_u32 v{t3}, v{lane}, 4, 1
    v_lshl_add_u32 v{t2}, v{t3}, 5, v{t2}
    v_and_b32 v{t3}, 3, v{lane}
    v_lshl_add_u32 v{t2}, v{t3}, 3, v{t2}
    v_add_u32 v{vSr}, s71, v{t2}"""
    for f in lines(fin_txt): lo.append(f)
    def ld_s(dst):
        for i in range(2):
            p(f"s_add_u32 s65, s27, {i*32*4096}\n buffer_load_dwordx4 {vr(dst+4*i,4)}, v{vSo}, s[4:7], s65 offen sc1")
            vm.issue('s')
    def a2(md, nt): return ACC2 + (nt * 2 + md) * 16
    def wsrc(k): return wblk[k] if k < NK_R else WF[k & 1]
    def unpack_l(dst, src, n):
        out = []
        for q in range(n):
            out.append(f"v_lshlrev_b32 v{dst(2*q)}, 16, v{src+q}"); out.append(f"v_and_b32 v{dst(2*q+1)}, 0xffff0000, v{src+q}")
        return out
    KP = cfg.kpoll
    for k in range(28):
        if k == cfg.kfl1:
            stamp(p, 4)
        if k == KP:
            while hi: hi.popleft()()
            poll_issue(1, vm)
        if k == KP + 2:
            while hi: hi.popleft()()
            poll_check(1, vm); lim[0] = 28; ld_h_all()
            stamp(p, 5)
        pre = NK_R <= k + 1 < 28
        if pre:
            while vm.ops.count(('w2', k + 1)) < 2: hi.popleft()()
            vm.wait(('w2', k + 1))
        while vm.ops.count(('h', k)) < 2: hi.popleft()()
        vm.wait(('h', k))
        if k >= NK_R:
            lg.wait(('w2r', k))
            free_units.append(unit_of[('w2', k)]); refill(hi, vm)
        j = 0
        for nt in (1, 0):
            for md in (1, 0):
                cc = '0' if k == 0 else vr(a2(md, nt), 16)
                if not cfg.nomf: p(f"v_mfma_f32_32x32x16_bf16 {vr(a2(md,nt),16)}, {vr(wsrc(k)+md*4,4)}, {vr(hblk[k] + nt*4, 4)}, {cc}")
                if pre and j < 2: rd_w2(k + 1, wsrc(k + 1), lg, (j,))
                if hi: pump(1, 1)
                else: pump(0, 4)
                j += 1
        hfree.append(hblk[k])
        if k < NK_R: hfree.append(wblk[k])
        ld_h_all()
        if k == cfg.ks:
            drain_q()
            assert nh[0] == 28 and len(hfree) >= 4, (nh, hfree)
            SG = hfree.popleft(); XE = hfree.popleft(); B2E = hfree.popleft()
            p(f"""buffer_load_dwordx4 {vr(XE,4)}, v{vOo}, s[8:11], s26 offen
            buffer_load_dwordx4 {vr(XE+4,4)}, v{vOo}, s[8:11], s26 offen offset:16
            global_load_dwordx4 {vr(B2E,4)}, v{vB2o}, {sr(PTR(13),2)}
            global_load_dwordx4 {vr(B2E+4,4)}, v{vB2o}, {sr(PTR(13),2)} offset:16""")
            for _ in range(4): vm.issue('xe')
            poll_issue(2, vm)
        if k == cfg.ks + 3:
            drain_q(); poll_check(2, vm); ld_s(SG)
        if k == 25:
            assert len(hfree) >= 4
            XF = [hfree.popleft(), hfree.popleft()]; BF = [hfree.popleft(), hfree.popleft()]
            xf = lambda i: XF[i >> 3] + (i & 7); bfr = lambda i: BF[i >> 3] + (i & 7)
            lo.append(lambda: vm.wait('xe'))
            for l in unpack_l(xf, XE, 8) + unpack_l(bfr, B2E, 8): lo.append(lambda l=l: p(l))
    drain_q()
    stamp(p, 6)
    SV = hfree.popleft(); OUT = hfree.popleft()
    TMb = [hfree.popleft(), hfree.popleft()]; tm = lambda i: TMb[i >> 3] + (i & 7)
    SFb = [hfree.popleft(), hfree.popleft()]; sf = lambda i: SFb[i >> 3] + (i & 7)
    OWN = ACC2
    p(f"v_add_u32 v{t1}, s71, v{vHo}")
    for T in (3, 2, 1):
        for q in range(4): p(f"ds_write_b128 v{t1}, {vr(ACC2 + T*16 + 4*q, 4)} offset:{T*4096 + q*1024}")
    vm.wait('s')
    for i in range(2): p(f"ds_write_b128 v{vSw}, {vr(SG+4*i,4)} offset:{i*1024}")
    for q in range(4): p(f"ds_read_b64_tr_b16 {vr(SV+2*q,2)}, v{vSr} offset:{q*256}")
    for q in range(16): p(f"v_add_f32 v{OWN+q}, v{OWN+q}, v{bfr(q)}")
    for k in range(1, 4):
        p(f"""s_xor_b32 s65, s{S_WAVE}, {k}
        s_mul_i32 s65, s65, {REGS}
        v_add_u32 v{t0+k}, s65, v{vHo}""")
    p("s_waitcnt lgkmcnt(0)\n s_barrier")
    for k in range(1, 4):
        for q in range(4): p(f"ds_read_b128 {vr(ACC2 + k*16 + 4*q, 4)}, v{t0+k} offset:{k*4096 + q*1024}")
    for l in unpack_l(sf, SV, 8): p(l)
    for k in range(1, 4):
        p(f"s_waitcnt lgkmcnt({12 - 4*k})")
        for q in range(16): p(f"v_add_f32 v{OWN+q}, v{OWN+q}, v{ACC2+k*16+q}")
    for q in range(16): p(f"v_mul_f32 v{tm(q)}, {f32(-G.LOG2E)}, v{OWN+q}")
    for q in range(16): p(f"v_exp_f32 v{tm(q)}, v{tm(q)}")
    for q in range(16): p(f"v_mul_f32 v{OWN+q}, v{OWN+q}, v{sf(q)}")
    for q in range(16): p(f"v_add_f32 v{tm(q)}, 1.0, v{tm(q)}")
    for q in range(16): p(f"v_rcp_f32 v{tm(q)}, v{tm(q)}")
    for h in range(2):
        for q in range(8 * h, 8 * h + 8): p(f"v_fma_f32 v{OWN+q}, v{OWN+q}, v{tm(q)}, v{xf(q)}")
        for q in range(4 * h, 4 * h + 4): p(f"v_cvt_pk_bf16_f32 v{OUT+q}, v{OWN+2*q}, v{OWN+2*q+1}")
        p(f"buffer_store_dwordx4 {vr(OUT+4*h,4)}, v{vOo}, s[56:59], s26 offen offset:{16*h}")
    stamp(p, 7)
    G.stamps_out(p, 10 if cfg.fine else 8, ACC2 + 16)
    p("s_endpgm")
    return V.hi_used
```

```python
from asmlib import *
import math
from collections import deque
from roleA import Cnt

XBL = 0; XCH = 4608
TT = 9216 + 16; TCH = 1344
KC = 12288; KCS = 4160; KCH = 8 * KCS
LNB = 81920 - 8192
EI = KC; ERS = 528; ECH = 53 * ERS + 48
assert EI + 2 * ECH <= LNB

def role_B(p, vgen, G):
    S_WAVE, S_TAGA, S_TAGB = G.S_WAVE, G.S_TAGA, G.S_TAGB
    f32 = G.f32; cfg = G.cfg; stamp = G.stamp; srd = G.srd; PTR = G.PTR; LOG2E = G.LOG2E
    V = Regs('v', 4, 240); a = V.alloc
    DUMH = 240
    lane = 1
    vm = Cnt(p, 'vmcnt', 63); lg = Cnt(p, 'lgkmcnt', 15)
    vm.issue('cpf'); vm.issue('gen')
    t0 = a(); t1 = a(); t2 = a(); t3 = a()
    vL16 = a(); vLd = a(); vDk = a(); vi = a(); vg = a(); vXo = a(); vKW = a(2); vA = a(); vB = a()
    XA = a(4, 2); XB = a(4, 2); PR = a(6); PQ = a(4)
    srd(p, 8, 0, 2048 * 1024)
    p(f"""s_and_b32 s53, s2, 7
    s_lshl_b32 s53, s53, 5
    s_lshr_b32 s60, s2, 3
    s_add_u32 s53, s53, s60
    s_lshl_b32 s61, s53, 3
    s_lshl_b32 s62, s{S_WAVE}, 1
    s_add_u32 s61, s61, s62
    s_lshl_b32 s62, s61, 10
    v_lshlrev_b32 v{vL16}, 4, v{lane}
    buffer_load_dwordx4 {vr(XA,4)}, v{vL16}, s[8:11], s62 offen
    buffer_load_dwordx4 {vr(XB,4)}, v{vL16}, s[8:11], s62 offen offset:1024
    s_and_b32 s59, s2, 7
    s_lshl_b32 s59, s59, 5
    s_lshr_b32 s60, s2, 3
    s_add_u32 s59, s59, s60
    s_lshr_b32 s57, s{S_WAVE}, 1
    s_and_b32 s58, s{S_WAVE}, 1
    s_lshl_b32 s63, s59, 1
    s_add_u32 s63, s63, s57
    s_lshl_b32 s60, s63, 8
    s_lshl_b32 s62, s58, 7
    s_add_u32 s62, s62, s60
    v_lshl_add_u32 v{t0}, v{lane}, 1, s62
    v_xor_b32 v{t2}, 128, v{t0}
    s_lshl_b32 s60, s63, 1
    v_mov_b32 v{t1}, s60""")
    vm.issue('x'); vm.issue('x')
    if cfg.touch1:
        DUM1 = DUMH + 8
        srd(p, 12, 10, 512 * 3584)
        p(f"""s_mul_i32 s54, s2, 7168
        s_lshl_b32 s55, s{S_WAVE}, 11
        s_add_u32 s54, s54, s55
        buffer_load_dwordx4 {vr(DUM1,4)}, v{vL16}, s[12:15], s54 offen
        buffer_load_dwordx4 {vr(DUM1+4,4)}, v{vL16}, s[12:15], s54 offen offset:1024""")
        vm.issue('touch'); vm.issue('touch')
    for k in range(6):
        p(f"global_load_ushort v{PR+k}, v{t0}, {sr(PTR(1+k),2)}"); vm.issue('par')
    for k in range(4):
        p(f"global_load_ushort v{PQ+k}, v{t2}, {sr(PTR(3+k),2)}"); vm.issue('par')
    p(f"global_load_ushort v{vLd}, v{t1}, {sr(PTR(7),2)}"); vm.issue('par')
    p(f"global_load_ushort v{vDk}, v{t1}, {sr(PTR(8),2)}"); vm.issue('par')
    def touch2():
        if True:
            DUM = DUMH
            srd(p, 12, 12, 1792 * 1024)
            p(f"""s_mul_i32 s60, s2, 7168
            s_lshl_b32 s62, s{S_WAVE}, 11
            s_add_u32 s60, s60, s62
            buffer_load_dwordx4 {vr(DUM,4)}, v{vL16}, s[12:15], s60 offen
            buffer_load_dwordx4 {vr(DUM+4,4)}, v{vL16}, s[12:15], s60 offen offset:1024""")
            vm.issue('touch'); vm.issue('touch')
    if cfg.touch == 1: touch2()
    GA = a(15); aT = a(4); vEw = a(); vEr = a(2); vXw = a(); vXe = a(); vSo = a(); vLr = a(); vLw = a(); ZR = a(4, 2)
    p(f"""v_and_b32 v{vi}, 15, v{lane}
    v_lshrrev_b32 v{vg}, 4, v{lane}
    v_lshlrev_b32 v{vKW}, 4, v0
    s_lshl_b32 s60, s{S_WAVE}, 11
    s_add_u32 s60, s60, {LNB}
    v_lshl_add_u32 v{vLw}, v{lane}, 5, s60
    v_lshlrev_b32 v{vLr}, 2, v0
    v_add_u32 v{vLr}, {LNB}, v{vLr}
    s_mov_b32 s70, 0xffff0000
    s_mov_b32 s71, 0xffff0000""")
    def late_consts():
        p(f"v_lshlrev_b32 v{t3}, 3, v0")
        for e in range(0, 16, 2):
            hs = [h for h in range(2) if e + h < 15]
            for h in hs:
                p(f"v_add_u32 v{GA+e+h}, {7 - (e + h)}, v{t3}")
                p(f"v_max_i32 v{t0+h}, 128, v{GA+e+h}")
                p(f"v_cvt_f32_i32 v{t0+h}, v{t0+h}")
            p(f"""v_cvt_pk_bf16_f32 v{t0}, v{t0}, v{t1}
            v_lshrrev_b32 v{t1}, 16, v{t0}
            v_and_b32 v{t0}, 0xffff, v{t0}""")
            for h in hs:
                p(f"v_subrev_u32 v{t0+h}, 0x4280, v{t0+h}")
                p(f"v_min_i32 v{GA+e+h}, v{t0+h}, v{GA+e+h}")
                p(f"v_lshlrev_b32 v{GA+e+h}, 1, v{GA+e+h}")
        p(f"""s_lshl_b32 s60, s58, 4
        v_add_u32 v{t3}, s60, v{vi}
        s_mul_i32 s60, s57, {TCH}
        v_lshlrev_b32 v{t0}, 4, v{t3}
        v_lshl_add_u32 v{aT}, v{vg}, 3, v{t0}
        v_lshlrev_b32 v{t0}, 3, v{t3}
        v_add_u32 v{t0}, 512, v{t0}
        v_cmp_eq_u32 vcc, 2, v{vg}
        v_cndmask_b32 v{aT}, v{aT}, v{t0}, vcc
        v_lshlrev_b32 v{t0}, 2, v{t3}
        v_add_u32 v{t0}, 768, v{t0}
        v_cmp_eq_u32 vcc, 3, v{vg}
        v_cndmask_b32 v{aT}, v{aT}, v{t0}, vcc
        v_add_u32 v{aT}, s60, v{aT}
        v_mov_b32 v{t1}, 128
        v_cndmask_b32 v{t1}, 4, v{t1}, vcc
        v_add_u32 v{aT+1}, v{aT}, v{t1}
        v_lshlrev_b32 v{t0}, 1, v{t3}
        v_add_u32 v{t0}, 1024, v{t0}
        v_mov_b32 v{t1}, {2*648 - 192}
        v_cmp_eq_u32 vcc, 0, v{vg}
        v_cndmask_b32 v{aT+3}, v{t1}, v{t0}, vcc
        v_mov_b32 v{t1}, {2*648}
        v_cndmask_b32 v{aT+2}, v{t1}, v{t0}, vcc
        v_lshl_add_u32 v{t0}, v{t3}, 2, v{vg}
        v_mov_b32 v{t1}, 1280
        v_cmp_eq_u32 vcc, 1, v{t0}
        v_cndmask_b32 v{aT+2}, v{aT+2}, v{t1}, vcc
        v_add_u32 v{aT+2}, s60, v{aT+2}
        v_add_u32 v{aT+3}, s60, v{aT+3}
        s_mul_i32 s60, s57, {ECH}
        s_lshl_b32 s62, s58, 8
        s_add_u32 s62, s62, s60
        v_lshl_add_u32 v{vEw}, v{lane}, 2, s62
        v_mul_u32_u24 v{t0}, {ERS}, v{vi}
        v_lshl_add_u32 v{t0}, v{vg}, 4, v{t0}
        v_add_u32 v{vEr+1}, s60, v{t0}
        s_mul_i32 s62, s58, {16*ERS}
        v_add_u32 v{vEr}, s62, v{vEr+1}
        v_add_u32 v{vKW+1}, {KCH}, v{vKW}
        v_lshrrev_b32 v{vXo}, 1, v{lane}
        v_lshlrev_b32 v{vXw}, 4, v{vXo}
        v_lshlrev_b32 v{vXo}, 13, v{vXo}
        v_and_b32 v{t0}, 1, v{lane}
        v_lshl_add_u32 v{vXo}, v{t0}, 4, v{vXo}
        v_mul_u32_u24 v{t1}, {XCH}, v{t0}
        s_lshl_b32 s60, s{S_WAVE}, 10
        v_add3_u32 v{vXw}, v{vXw}, v{t1}, s60
        s_lshl_b32 s74, s{S_WAVE}, 19
        s_lshl_b32 s60, s59, 5
        s_add_u32 s74, s74, s60
        s_add_u32 s74, s74, {G.XNT}
        s_lshr_b32 s55, s59, 5
        s_and_b32 s55, s55, 3
        s_lshl_b32 s55, s55, 14
        s_add_u32 s55, s55, {G.XFLAG}
        v_lshlrev_b32 v{vLr}, 6, v0
        s_lshl_b32 s62, s58, 8
        v_and_b32 v{vA}, 7, v{vi}
        v_mul_u32_u24 v{vA}, {KCS}, v{vA}
        v_lshrrev_b32 v{t0}, 3, v{vi}
        v_sub_u32 v{t0}, v{t0}, v{vg}
        v_add_u32 v{t0}, 3, v{t0}
        v_lshl_add_u32 v{vA}, v{t0}, 4, v{vA}
        s_mul_i32 s75, s57, {KCH}
        s_add_u32 s75, s75, s62
        v_add_u32 v{vA}, s75, v{vA}
        v_lshlrev_b32 v{vB}, 5, v{vi}
        v_lshl_add_u32 v{vXe}, v{vg}, 3, v{vB}
        v_lshl_add_u32 v{vB}, v{vg}, 4, v{vB}
        s_mul_i32 s75, s57, {XCH}
        s_lshl_b32 s60, s58, 11
        s_add_u32 s60, s60, s75
        v_add_u32 v{vXe}, s60, v{vXe}
        s_sub_u32 s75, s75, s62
        s_add_u32 s75, s75, {XBL + 480 - 192}
        v_add_u32 v{vB}, s75, v{vB}
        v_lshlrev_b32 v{vSo}, 5, v{vi}
        v_lshrrev_b32 v{t0}, 1, v{vg}
        v_lshl_add_u32 v{vSo}, v{t0}, 4, v{vSo}
        v_and_b32 v{t0}, 1, v{vg}
        v_lshl_add_u32 v{vSo}, v{t0}, 9, v{vSo}
        s_lshl_b32 s56, s63, 12
        s_lshl_b32 s60, s58, 11
        s_add_u32 s56, s56, s60
        s_add_u32 s56, s56, {G.ST}""")
        p(f"""v_mov_b32 v{ZR}, 0
        v_mov_b32 v{ZR+1}, 0
        v_mov_b32 v{ZR+2}, 0
        v_mov_b32 v{ZR+3}, 0
        s_mul_i32 s75, s57, {XCH}
        v_lshl_add_u32 v{t0}, v{lane}, 3, s75
        ds_write_b64 v{t0}, {vr(ZR,2)} offset:{XBL}
        s_mul_i32 s75, s57, {TCH}
        v_mov_b32 v{t0}, s75
        ds_write_b128 v{t0}, {vr(ZR,4)} offset:{TT-16}""")
        lg.issue('z'); lg.issue('z')
    P = a(16, 2); D = a(16, 2); A1 = a(2, 2); A2 = a(2, 2); B1 = a(2, 2); B2 = a(2, 2); Z2 = a(); vC0 = a(); vM = a(); vR = a(); vSD = a()
    F = a(8, 2); Gr = a(16, 2)
    if cfg.bprio: p(f"s_setprio {cfg.bprio}")
    vm.wait('x')
    stamp(p, 1)
    for q in range(4):
        p(f"""v_lshlrev_b32 v{P+4*q}, 16, v{XA+q}
        v_lshlrev_b32 v{P+4*q+1}, 16, v{XB+q}
        v_and_b32 v{P+4*q+2}, 0xffff0000, v{XA+q}
        v_and_b32 v{P+4*q+3}, 0xffff0000, v{XB+q}""")
        if q == 0: p(f"v_readfirstlane_b32 s64, v{P}\n v_readfirstlane_b32 s65, v{P+1}")
    G.make_tags(p, vgen)
    for c in range(16): p(f"v_subrev_f32 v{D+c}, s{64 + (c & 1)}, v{P+c}")
    for h in range(2):
        p(f"""v_add_f32 v{A1+h}, v{D+h}, v{D+2+h}
        v_add_f32 v{B1+h}, v{D+4+h}, v{D+6+h}
        v_mul_f32 v{A2+h}, v{D+h}, v{D+h}
        v_mul_f32 v{B2+h}, v{D+2+h}, v{D+2+h}""")
    for c in range(2, 8):
        for h in range(2):
            if c >= 4: p(f"v_add_f32 v{(A1 if c % 2 == 0 else B1)+h}, v{(A1 if c % 2 == 0 else B1)+h}, v{D+2*c+h}")
            p(f"v_fmac_f32 v{(A2 if c % 2 == 0 else B2)+h}, v{D+2*c+h}, v{D+2*c+h}")
    for h in range(2):
        p(f"v_add_f32 v{A1+h}, v{A1+h}, v{B1+h}\n v_add_f32 v{A2+h}, v{A2+h}, v{B2+h}")
    p(f"""v_mov_b32 v{vC0}, s64
    s_mov_b64 exec, s[70:71]
    v_mov_b32 v{vC0}, s65
    s_mov_b64 exec, -1""")
    G.reduce4(p, A1, A2, Z2)
    def sd_of(vvar_bf, vsd):
        p(f"""v_add_f32 v{t0}, {f32(1e-5)}, v{vvar_bf}
        v_cvt_pk_bf16_f32 v{t0}, v{t0}, v{t0}
        v_lshlrev_b32 v{t0}, 16, v{t0}
        v_sqrt_f32 v{t0}, v{t0}
        v_cvt_pk_bf16_f32 v{t0}, v{t0}, v{t0}
        v_lshlrev_b32 v{vsd}, 16, v{t0}""")
    p(f"""v_mul_f32 v{A1}, {f32(1/512)}, v{A1}
    v_mul_f32 v{Z2}, {f32(1/512)}, v{Z2}
    v_fma_f32 v{Z2}, -v{A1}, v{A1}, v{Z2}
    v_max_f32 v{Z2}, 0, v{Z2}
    v_add_f32 v{A1}, v{vC0}, v{A1}
    v_cvt_pk_bf16_f32 v{t1}, v{A1}, v{Z2}
    v_lshlrev_b32 v{vM}, 16, v{t1}
    v_and_b32 v{t1}, 0xffff0000, v{t1}""")
    sd_of(t1, vSD)
    p(f"""v_rcp_f32 v{vR}, v{vSD}
    v_sub_f32 v{t2}, v{A1}, v{vM}
    v_mul_f32 v{t3}, v{vM}, -v{vR}
    v_readlane_b32 s68, v{vR}, 0
    v_readlane_b32 s69, v{vR}, 16
    v_readlane_b32 s66, v{t3}, 0
    v_readlane_b32 s67, v{t3}, 16
    v_mul_f32 v{t2}, v{t2}, v{vR}
    v_mul_f32 v{Z2}, v{Z2}, v{vR}
    v_mul_f32 v{Z2}, v{Z2}, v{vR}
    v_mov_b32 v{B1}, s66
    v_mov_b32 v{B1+1}, s67""")
    for c in range(16): p(f"v_fma_f32 v{D+c}, v{P+c}, s{68 + (c & 1)}, v{B1 + (c & 1)}")
    for c in range(8): p(f"v_cvt_pk_f16_f32 v{F+c}, v{D+2*c}, v{D+2*c+1}")
    p(f"""ds_write_b128 v{vLw}, {vr(F,4)}
    ds_write_b128 v{vLw}, {vr(F+4,4)} offset:16
    v_cvt_pk_bf16_f32 v{t1}, v{t2}, v{Z2}
    v_lshlrev_b32 v{B2}, 16, v{t1}
    v_and_b32 v{t1}, 0xffff0000, v{t1}""")
    sd_of(t1, B2 + 1)
    p(f"""v_fma_f32 v{t0}, -v{B2}, v{vSD}, -v{vM}
    v_mul_f32 v{t1}, v{vSD}, v{B2+1}
    v_cvt_pk_bf16_f32 v{Gr}, v{t0}, v{t0}
    v_cvt_pk_bf16_f32 v{t2}, v{t1}, v{t1}
    v_and_b32 v{t3}, 0xffff0000, v{Gr}
    v_sub_f32 v{t0}, v{t0}, v{t3}
    v_and_b32 v{t3}, 0xffff0000, v{t2}
    v_sub_f32 v{t2}, v{t1}, v{t3}
    v_cvt_pk_bf16_f32 v{Gr+1}, v{t0}, v{t1}
    v_cvt_pk_bf16_f32 v{Gr+2}, v{t2}, 0
    v_mov_b32 v{Gr+3}, s{S_TAGA}
    v_lshlrev_b32 v{t0}, 4, v{vg}
    s_lshl_b32 s60, s61, 4
    s_add_u32 s60, s60, {G.AB}
    s_mov_b64 exec, 0x10001
    buffer_store_dwordx4 {vr(Gr,4)}, v{t0}, s[4:7], s60 offen sc1
    s_mov_b64 exec, -1
    s_waitcnt lgkmcnt(0)
    s_barrier""")
    vm.issue('st'); lg.done = len(lg.ops)
    if cfg.bcut == 1:
        p("s_endpgm"); return V.hi_used
    G2 = P
    for i in range(2):
        p(f"ds_read2st64_b32 {vr(G2+4*i,2)}, v{vLr} offset0:{i*4} offset1:{i*4 + 8}")
        p(f"ds_read2st64_b32 {vr(G2+4*i+2,2)}, v{vLr} offset0:{i*4 + 16} offset1:{i*4 + 24}")
    p(f"""s_lshl_b32 s60, s53, 13
    s_add_u32 s60, s60, {G.XNT}
    s_add_u32 s62, s60, 4096""")
    for i in range(2):
        p(f"s_waitcnt lgkmcnt({2-2*i})")
        p(f"buffer_store_dwordx4 {vr(G2+4*i,4)}, v{vKW}, s[4:7], s{60+2*i} offen sc1"); vm.issue('st')
    stamp(p, 2)
    for r, n in ((D, 16), (A1, 2), (A2, 2), (B1, 2), (B2, 2), (Z2, 1), (vC0, 1), (vM, 1), (vR, 1), (vSD, 1), (F, 8), (Gr, 16), (XA, 4), (XB, 4)): V.free(r, n)
    if cfg.bcut == 2:
        p("s_endpgm"); return V.hi_used
    vm.wait('par')
    if cfg.touch == 2: touch2()
    if cfg.bprio: p('s_setprio 0')
    warm = deque()
    if cfg.warm:
        DUM = DUMH
        srd(p, 12, 12, 1792 * 1024)
        p(f"""s_lshr_b32 s54, s2, 3
        s_lshl_b32 s54, s54, 2
        s_add_u32 s54, s54, s{S_WAVE}
        s_mul_i32 s54, s54, {14*1024}""")
        for i in range(14):
            def f(i=i):
                if i and i % 4 == 0: p("s_add_u32 s54, s54, 4096")
                p(f"buffer_load_dwordx4 {vr(DUM+4*(i&3),4)}, v{vL16}, s[12:15], s54 offen offset:{(i%4)*1024}"); vm.issue('warm')
            warm.append(f)
    if cfg.bcut == 3:
        p("s_endpgm"); return V.hi_used
    vdt = a(); a2 = a(); b2 = a(); C = a(2)
    p(f"""v_lshlrev_b32 v{vdt}, 16, v{vLd}
    v_mul_f32 v{vdt}, {f32(LOG2E)}, v{vdt}
    v_exp_f32 v{vdt}, v{vdt}
    v_lshlrev_b32 v{vDk}, 16, v{vDk}""")
    for k in range(6): p(f"v_lshlrev_b32 v{PR+k}, 16, v{PR+k}")
    for k in range(4): p(f"v_lshlrev_b32 v{PQ+k}, 16, v{PQ+k}")
    p(f"""v_cvt_pk_bf16_f32 v{vdt}, v{vdt}, v{vdt}
    v_lshlrev_b32 v{vdt}, 16, v{vdt}
    v_mul_f32 v{C}, v{PR+4}, v{PR+2}
    v_mul_f32 v{C+1}, v{PR+4}, v{PR+3}
    v_mul_f32 v{t0}, v{PQ+2}, v{PQ}
    v_mul_f32 v{t1}, v{PQ+2}, v{PQ+1}
    v_fma_f32 v{C}, -v{PR+5}, v{PR+3}, v{C}
    v_fma_f32 v{C+1}, v{PR+5}, v{PR+2}, v{C+1}
    v_fma_f32 v{t0}, -v{PQ+3}, v{PQ+1}, v{t0}
    v_fma_f32 v{t1}, v{PQ+3}, v{PQ}, v{t1}
    v_mul_f32 v{a2}, v{vdt}, v{PR}
    v_mul_f32 v{b2}, v{vdt}, v{PR+1}
    v_max_f32 v{t0}, |v{t0}|, |v{t1}|
    v_max3_f32 v{t0}, |v{C}|, |v{C+1}|, v{t0}
    v_mul_f32 v{a2}, {f32(LOG2E)}, v{a2}
    v_mul_f32 v{b2}, {f32(1/(2*math.pi))}, v{b2}
    v_max_f32_dpp v{t0}, v{t0}, v{t0} quad_perm:[1,0,3,2] row_mask:0xf bank_mask:0xf""")
    AN = {1: a(2), 8: a(2), 64: a(2), 256: a(2)}
    red = deque([f"v_max_f32_dpp v{t0}, v{t0}, v{t0} quad_perm:[2,3,0,1] row_mask:0xf bank_mask:0xf",
           f"v_max_f32_dpp v{t0}, v{t0}, v{t0} row_half_mirror row_mask:0xf bank_mask:0xf",
           f"v_max_f32_dpp v{t0}, v{t0}, v{t0} row_mirror row_mask:0xf bank_mask:0xf",
           f"v_max_f32_dpp v{t0}, v{t0}, v{t0} row_bcast:15 row_mask:0xa bank_mask:0xf",
           f"v_max_f32_dpp v{t0}, v{t0}, v{t0} row_bcast:31 row_mask:0xc bank_mask:0xf",
           f"v_frexp_exp_i32_f32 v{t0}, v{t0}",
           f"v_readlane_b32 s72, v{t0}, 63\n s_sub_u32 s73, 0, s72"])
    W_ = a(8)
    ks = [8, 64, 1, 256]
    for j, tt in enumerate(ks):
        p(f"v_mul_f32 v{W_+2*j}, {f32(float(tt))}, v{a2}\n v_mul_f32 v{W_+2*j+1}, {f32(float(tt))}, v{b2}"); p(red.popleft())
    for j, tt in enumerate(ks): p(f"v_fract_f32 v{W_+2*j+1}, v{W_+2*j+1}")
    p(red.popleft())
    for j, tt in enumerate(ks):
        p(f"v_exp_f32 v{W_+2*j}, v{W_+2*j}\n v_cos_f32 v{AN[tt]}, v{W_+2*j+1}\n v_sin_f32 v{AN[tt]+1}, v{W_+2*j+1}")
        if red: p(red.popleft())
    for j, tt in enumerate(ks):
        p(f"v_mul_f32 v{AN[tt]}, v{AN[tt]}, v{W_+2*j}\n v_mul_f32 v{AN[tt]+1}, v{AN[tt]+1}, v{W_+2*j}")
    assert not red
    p(f"""v_ldexp_f32 v{C}, v{C}, s73
    v_ldexp_f32 v{C+1}, v{C+1}, s73
    v_ldexp_f32 v{vdt}, v{vdt}, s72
""")
    V.free(W_, 8); V.free(PR, 6); V.free(PQ, 4)
    def xflag():
        vm.wait('st')
        p(f"""v_mov_b32 v{t2}, s{S_TAGA}
        v_mov_b32 v{t3}, s{S_TAGB}
        s_lshl_b32 s60, s{S_WAVE}, 8
        s_add_u32 s60, s60, s53
        s_lshl_b32 s60, s60, 6
        s_add_u32 s60, s60, {G.XFLAG}
        v_mov_b32 v{t1}, 0
        s_mov_b64 exec, 1
        buffer_store_dwordx2 {vr(t2,2)}, v{t1}, s[4:7], s60 offen sc1
        s_mov_b64 exec, -1""")
    NCV = 52 if cfg.defer else 4
    CV = a(NCV); cvi = [0]; later = []
    def emit_slot(row, r, conj):
        c = CV + (cvi[0] % NCV); cvi[0] += 1
        p(f"v_cvt_pk_f16_f32 v{c}, v{r}, {'-' if conj else ''}v{r+1}")
        w_ = f"ds_write_b32 v{vEw}, v{c} offset:{EI + row*ERS}"
        if cfg.defer: later.append(w_)
        else: p(w_)
        if cfg.warm == 1 and warm and cvi[0] % 3 == 0: warm.popleft()()
    def cmul_group(items):
        for d, x, y in items: p(f"v_mul_f32 v{d}, v{x}, v{y}\n v_mul_f32 v{d+1}, v{x}, v{y+1}")
        for d, x, y in items: p(f"v_fma_f32 v{d}, -v{x+1}, v{y+1}, v{d}\n v_fma_f32 v{d+1}, v{x+1}, v{y}, v{d+1}")
    Pw = {1: AN[8]}; Qw = {1: AN[64]}
    for i in range(2, 8): Pw[i] = a(2)
    for i in (2, 3): Qw[i] = a(2)
    Gv = {0: C}
    for j in range(1, 8): Gv[j] = a(2)
    Hv = [a(2), a(2)]; Iv = [a(2), a(2)]; TP = [a(2) for _ in range(4)]
    LROW = lambda idx: 32 + idx
    E1, E256 = AN[1], AN[256]
    emit_slot(1, Pw[1], False); emit_slot(8, Qw[1], False); emit_slot(LROW(0), C, True)
    cmul_group([(Pw[2], Pw[1], Pw[1]), (Qw[2], Qw[1], Qw[1]), (Gv[1], C, E1), (Hv[0], C, E256)])
    emit_slot(2, Pw[2], False); emit_slot(16, Qw[2], False); emit_slot(LROW(1), Gv[1], True); emit_slot(LROW(8), Hv[0], True)
    cmul_group([(Pw[3], Pw[2], Pw[1]), (Pw[4], Pw[2], Pw[2]), (Qw[3], Qw[2], Qw[1]), (Gv[2], Gv[1], E1), (Hv[1], Hv[0], E256)])
    emit_slot(3, Pw[3], False); emit_slot(4, Pw[4], False); emit_slot(24, Qw[3], False); emit_slot(LROW(2), Gv[2], True); emit_slot(LROW(12), Hv[1], True)
    cmul_group([(Pw[5], Pw[4], Pw[1]), (Pw[6], Pw[4], Pw[2]), (Pw[7], Pw[4], Pw[3]), (Gv[3], Gv[2], E1), (Hv[0], Hv[1], E256)])
    emit_slot(5, Pw[5], False); emit_slot(6, Pw[6], False); emit_slot(7, Pw[7], False); emit_slot(LROW(3), Gv[3], True); emit_slot(LROW(14), Hv[0], True)
    xflag()
    prods = deque([(i1, i0) for i1 in (1, 2, 3) for i0 in range(1, 8)])
    hcur = 0; hrows = deque([16, 17, 18, 19, 20]); gnext = 4; icur = None; irows = deque([10, 13, 15]); extra = deque([(2, 9), (6, 11)])
    while prods or hrows or gnext < 8 or irows or extra:
        items = []; outs = []; tp = 0
        if gnext < 8:
            items.append((Gv[gnext], Gv[gnext - 1], E1)); outs.append((LROW(gnext), Gv[gnext], True)); gnext += 1
        if hrows:
            items.append((Hv[1 - hcur], Hv[hcur], E256)); outs.append((LROW(hrows.popleft()), Hv[1 - hcur], True)); hcur = 1 - hcur
        if irows and gnext > 5:
            src = Gv[4] if icur is None else Iv[icur]; ni = 0 if icur is None else 1 - icur
            items.append((Iv[ni], src, E256)); outs.append((LROW(irows.popleft()), Iv[ni], True)); icur = ni
        if extra and gnext > extra[0][0] + 1:
            j, row = extra.popleft(); items.append((TP[tp], Gv[j], E256)); outs.append((LROW(row), TP[tp], True)); tp += 1
        while prods and tp < 4 and len(items) < 5:
            i1, i0 = prods.popleft(); items.append((TP[tp], Pw[i0], Qw[i1])); outs.append((8 * i1 + i0, TP[tp], False)); tp += 1
        cmul_group(items)
        for o in outs: emit_slot(*o)
    while cfg.warm == 1 and warm: warm.popleft()()
    for d in list(Pw.values()) + list(Qw.values()) + list(Gv.values()) + Hv + Iv + TP + [E1, E256]: V.free(d, 2)
    if cfg.bcut == 4:
        p("s_endpgm"); return V.hi_used
    late_consts()
    p(f"v_mov_b32 v{t0}, 0x3c00\n ds_write_b32 v{vEw}, v{t0} offset:{EI}")
    for wi, w_ in enumerate(later):
        p(w_)
        if cfg.warm == 3 and warm and wi % 3 == 0: warm.popleft()()
    V.free(CV, NCV); V.free(a2); V.free(b2); V.free(P, 16)
    if cfg.bcut == 5:
        p("s_endpgm"); return V.hi_used
    XG = a(8, 4); XFL = a(2, 2)
    p(f"buffer_load_dwordx2 {vr(XFL,2)}, v{vLr}, s[4:7], s55 offen sc1")
    def xcheck():
        p(f"""s_mov_b32 s62, 0
L_b_poll:
        s_waitcnt vmcnt(0)
        v_xor_b32 v{t0}, s{S_TAGA}, v{XFL}
        v_xor_b32 v{t1}, s{S_TAGB}, v{XFL+1}
        v_or_b32 v{t0}, v{t0}, v{t1}
        v_cmp_ne_u32 vcc, 0, v{t0}
        s_add_u32 s62, s62, 1
        s_cmp_eq_u64 vcc, 0
        s_cbranch_scc1 L_b_got
        s_cmp_ge_u32 s62, {G.SPIN_MAX}
        s_cbranch_scc1 L_b_got
        s_sleep 1
        buffer_load_dwordx2 {vr(XFL,2)}, v{vLr}, s[4:7], s55 offen sc1
        s_branch L_b_poll
L_b_got:
        s_add_u32 s60, s74, {1 << 18}
        buffer_load_dwordx4 {vr(XG,4)}, v{vXo}, s[4:7], s74 offen sc1
        buffer_load_dwordx4 {vr(XG+4,4)}, v{vXo}, s[4:7], s60 offen sc1""")
    p("s_waitcnt lgkmcnt(0)\n s_barrier"); lg.done = len(lg.ops)
    stamp(p, 3)
    ACC = a(8, 4); FR = a(96, 4)
    for ks_ in range(8):
        p(f"ds_read_b128 {vr(FR+12*ks_,4)}, v{vEr} offset:{EI + ks_*64}")
        p(f"ds_read_b128 {vr(FR+12*ks_+4,4)}, v{vEr+1} offset:{EI + 32*ERS + ks_*64}")
        p(f"ds_read_b128 {vr(FR+12*ks_+8,4)}, v{vEr+1} offset:{EI + 48*ERS + ks_*64}")
        for _ in range(3): lg.issue(('e', ks_))
        if ks_ >= 3:
            k2 = ks_ - 3
            lg.wait(('e', k2))
            for tl in range(2):
                c = vr(ACC + 4 * tl, 4) if k2 else '0'
                p(f"v_mfma_f32_16x16x32_f16 {vr(ACC+4*tl,4)}, {vr(FR+12*k2+4+4*tl,4)}, {vr(FR+12*k2,4)}, {c}")
    for k2 in range(5, 8):
        lg.wait(('e', k2))
        for tl in range(2):
            p(f"v_mfma_f32_16x16x32_f16 {vr(ACC+4*tl,4)}, {vr(FR+12*k2+4+4*tl,4)}, {vr(FR+12*k2,4)}, {vr(ACC+4*tl,4)}")
    p(f"""v_cvt_pk_f16_f32 v{FR}, v{ACC}, v{ACC+1}
    v_cvt_pk_f16_f32 v{FR+1}, v{ACC+2}, v{ACC+3}
    v_cvt_pk_f16_f32 v{FR+2}, v{ACC+4}, v{ACC+5}
    v_cvt_pk_f16_f32 v{FR+3}, v{ACC+6}, v{ACC+7}
    ds_write_b32 v{aT}, v{FR} offset:{TT}
    ds_write_b32 v{aT+1}, v{FR+1} offset:{TT}
    ds_write_b16 v{aT+2}, v{FR+2} offset:{TT}
    s_mov_b64 exec, 0xffff
    ds_write_b16_d16_hi v{aT+3}, v{FR+2} offset:{TT+64}
    ds_write_b16 v{aT+3}, v{FR+3} offset:{TT+128}
    ds_write_b16_d16_hi v{aT+3}, v{FR+3} offset:{TT+192}
    s_mov_b64 exec, -1
    s_waitcnt lgkmcnt(0)
    s_barrier""")
    lg.done = len(lg.ops)
    V.free(ACC, 8); V.free(FR, 96); V.free(aT, 4)
    xcheck()
    WS_ = [[a(8, 2), a(9, 2), a(8, 2), a(9, 2)] for _ in range(2)]; EL = [a(15), a(15)]
    for ch in range(2):
        for e in range(15):
            p(f"ds_read_u16 v{EL[ch] + e}, v{GA+e} offset:{TT + ch*TCH}"); lg.issue(('el', ch))
    p(f"""v_mul_u32_u24 v{t0}, {KCS}, v{vi}
    ds_write_b128 v{t0}, {vr(ZR,4)} offset:{KC}""")
    lg.issue('z2')
    for ch in range(2):
        el = EL[ch]; W0, W1, S0, S1 = WS_[ch]
        lg.wait(('el', ch))
        def wr(s_):
            if s_ & 1: o = (7 - s_) // 2; e_, o_ = W0, W1
            else: o = (6 - s_) // 2; e_, o_ = S0, S1
            src = e_ + o if o % 2 == 0 else o_ + 1 + o
            p(f"ds_write_b128 v{vKW+ch}, {vr(src,4)} offset:{KC + s_*KCS + 16}"); lg.issue('kw')
            if cfg.warm == 2 and warm: warm.popleft()()
        for q in range(6): p(f"v_lshl_or_b32 v{W0+q}, v{el+2*q+1}, 16, v{el+2*q}")
        wr(7); wr(3)
        for q in range(6): p(f"v_lshl_or_b32 v{S0+q}, v{el+2*q+2}, 16, v{el+2*q+1}")
        wr(6); wr(2)
        for q in range(1, 7): p(f"v_lshl_or_b32 v{W1+1+q}, v{el+2*q+1}, 16, v{el+2*q}")
        wr(5); wr(1)
        for q in range(1, 7): p(f"v_lshl_or_b32 v{S1+1+q}, v{el+2*q+2}, 16, v{el+2*q+1}")
        wr(4); wr(0)
    for ch in range(2):
        for r, n in zip(WS_[ch], (8, 9, 8, 9)): V.free(r, n)
        V.free(EL[ch], 15)
    V.free(GA, 15)
    stamp(p, 4)
    if cfg.bcut == 6:
        p("s_endpgm"); return V.hi_used
    p("s_waitcnt vmcnt(0)")
    for i in range(2): p(f"ds_write_b128 v{vXw}, {vr(XG+4*i,4)} offset:{XBL + 512 + i*512}")
    V.free(XG, 8)
    p("s_waitcnt lgkmcnt(0)\n s_barrier"); lg.done = len(lg.ops)
    stamp(p, 5)
    if cfg.dumpK:
        Dm = a(4, 4)
        for ch in range(2):
            p(f"""ds_read_b128 {vr(Dm,4)}, v{vKW+ch} offset:{KC + 7*KCS + 16}
            s_lshl_b32 s60, s59, 13
            s_add_u32 s60, s60, {G.DBG + ch*4096}
            s_waitcnt lgkmcnt(0)
            buffer_store_dwordx4 {vr(Dm,4)}, v{vKW}, s[4:7], s60 offen
            s_waitcnt vmcnt(0)""")
        p(f"""s_lshl_b32 s60, s63, 2
        s_add_u32 s60, s60, {G.DBG + 0x400000}
        v_mov_b32 v{Dm+1}, 0
        buffer_store_dword v{vdt}, v{Dm+1}, s[4:7], s60 offen
        s_waitcnt vmcnt(0)""")
        V.free(Dm, 4)
    CA = a(32, 4); FA = [a(32, 4), a(32, 4)]; FB = [a(32, 4), a(32, 4)]; XN = a(8, 2)
    def rds(rr):
        out = []
        for k in range(8):
            def fa(k=k): p(f"ds_read_b128 {vr(FA[rr&1]+4*k,4)}, v{vA} offset:{KC + rr*64 + k*512}"); lg.issue(('f', rr, k))
            def fb(k=k): p(f"ds_read_b128 {vr(FB[rr&1]+4*k,4)}, v{vB} offset:{192 - rr*64 + k*512}"); lg.issue(('f', rr, k))
            out += [fa, fb]
        return out
    pairs = sorted([(aa, bb) for aa in range(8) for bb in range(8 - aa)], key=lambda t: (max(t), t[0] + t[1]))
    q_ = deque(rds(0))
    for _ in range(8): q_.popleft()()
    seen = set()
    for rr in range(4):
        if rr < 3: nxt = deque(rds(rr + 1))
        else:
            nxt = deque()
            for k in range(4):
                def fx(k=k): p(f"ds_read_b64 {vr(XN+2*k,2)}, v{vXe} offset:{XBL + 512 + k*512}"); lg.issue('xn')
                nxt.append(fx)
        for n_, (aa, bb) in enumerate(pairs):
            m_ = max(aa, bb)
            while lg.ops.count(('f', rr, m_)) < 2: q_.popleft()()
            lg.wait(('f', rr, m_))
            J = aa + bb
            c = vr(CA + 4 * J, 4) if J in seen else '0'
            seen.add(J)
            p(f"v_mfma_f32_16x16x32_f16 {vr(CA+4*J,4)}, {vr(FA[rr&1]+4*aa,4)}, {vr(FB[rr&1]+4*bb,4)}, {c}")
            if cfg.warm == 4 and warm and n_ % 3 == 0: warm.popleft()()
            if q_: q_.popleft()()
            elif nxt and n_ % 2 == 1 and n_ >= 4: nxt.popleft()()
        q_ = nxt
    while q_: q_.popleft()()
    stamp(p, 6)
    p(f"""s_lshl_b32 s60, s{S_WAVE}, 12
    v_add_u32 v{t1}, s60, v{vL16}
    s_xor_b32 s60, s60, 4096
    v_add_u32 v{t2}, s60, v{vL16}
    s_cmp_eq_u32 s58, 0
    s_barrier
    s_cbranch_scc1 L_b_e0""")
    for k in range(4): p(f"ds_write_b128 v{t1}, {vr(CA+4*k,4)} offset:{KC+k*1024}")
    for k in range(16): p(f"v_mov_b32 v{CA+k}, v{CA+16+k}")
    p("s_branch L_b_e1\nL_b_e0:")
    for k in range(4): p(f"ds_write_b128 v{t1}, {vr(CA+16+4*k,4)} offset:{KC+k*1024}")
    p("L_b_e1:\n s_waitcnt lgkmcnt(4)")
    for k in range(4):
        for r in range(4):
            p(f"v_fma_mix_f32 v{FB[1]+4*k+r}, v{XN+2*k+(r>>1)}, v{vDk}, 0 op_sel:[{r&1},0,0] op_sel_hi:[1,0,0]")
    O = FA[0]; GG = FB[0]
    p("s_waitcnt lgkmcnt(0)\n s_barrier")
    for k in range(4): p(f"ds_read_b128 {vr(O+4*k,4)}, v{t2} offset:{KC+k*1024}")
    for k in range(4):
        p(f"s_waitcnt lgkmcnt({3-k})")
        for r in range(4): p(f"v_add_f32 v{CA+4*k+r}, v{CA+4*k+r}, v{O+4*k+r}")
        for r in range(4): p(f"v_fma_f32 v{CA+4*k+r}, v{CA+4*k+r}, v{vdt}, v{FB[1]+4*k+r}")
        for h in range(2): p(f"v_cvt_pk_bf16_f32 v{GG+2*k+h}, v{CA+4*k+2*h}, v{CA+4*k+2*h+1}")
        if k & 1:
            g_ = GG + 2 * (k - 1)
            p(f"v_permlane16_swap_b32 v{g_}, v{g_+2}\n v_permlane16_swap_b32 v{g_+1}, v{g_+3}")
            p(f"buffer_store_dwordx4 {vr(g_,4)}, v{vSo}, s[4:7], s56 offen offset:{(k>>1)*1024} sc1")
    p(f"""v_mov_b32 v{t2}, s{S_TAGA}
    v_mov_b32 v{t3}, s{S_TAGB}
    s_lshl_b32 s60, s63, 1
    s_add_u32 s60, s60, s58
    s_lshl_b32 s60, s60, 6
    s_add_u32 s60, s60, {G.SFLAG}
    v_mov_b32 v{t1}, 0
    s_waitcnt vmcnt(0)
    s_mov_b64 exec, 1
    buffer_store_dwordx2 {vr(t2,2)}, v{t1}, s[4:7], s60 offen sc1
    s_mov_b64 exec, -1""")
    stamp(p, 7)
    p(f"""s_or_b32 s60, s2, s{S_WAVE}
    s_cmp_lg_u32 s60, 0
    s_cbranch_scc1 L_b_done""")
    if cfg.only != 'B':
        FL = FA[1]
        p(f"""v_lshlrev_b32 v{t3}, 8, v{lane}
        s_mov_b32 s62, 0
L_b_gpoll:""")
        for i in range(4):
            p(f"s_mov_b32 s60, {G.HFLAG + i*16384}\n buffer_load_dwordx2 {vr(FL+2*i,2)}, v{t3}, s[4:7], s60 offen sc1")
        p(f"s_waitcnt vmcnt(0)\n v_mov_b32 v{t0}, 0")
        for i in range(4):
            p(f"""v_xor_b32 v{t1}, s{S_TAGA}, v{FL+2*i}
            v_xor_b32 v{t2}, s{S_TAGB}, v{FL+2*i+1}
            v_or3_b32 v{t0}, v{t0}, v{t1}, v{t2}""")
        p(f"""v_cmp_ne_u32 vcc, 0, v{t0}
        s_add_u32 s62, s62, 1
        s_cmp_eq_u64 vcc, 0
        s_cbranch_scc1 L_b_gok
        s_cmp_ge_u32 s62, {G.SPIN_MAX}
        s_cbranch_scc1 L_b_gok
        s_sleep 8
        s_branch L_b_gpoll
L_b_gok:""")
    p(f"""v_mov_b32 v{t0}, s{S_TAGA}
    v_mov_b32 v{t1}, 0
    s_mov_b64 exec, 1
    buffer_store_dword v{t0}, v{t1}, s[4:7], 0 offen offset:{G.GEN}
    s_mov_b64 exec, -1
L_b_done:""")
    G.stamps_out(p, 8, CA)
    p("s_endpgm")
    return V.hi_used
```

```python
from asmlib import *
import math, sys
from collections import deque

class Cnt:
    def __init__(self, p, name, cap):
        self.p = p; self.name = name; self.cap = cap; self.ops = []; self.done = 0
    def issue(self, tag): self.ops.append(tag)
    def wait(self, tag):
        idx = max((i for i, t in enumerate(self.ops) if t == tag), default=-1)
        assert idx >= 0, ('wait for never-issued', tag)
        if idx < self.done: return
        n = min(len(self.ops) - 1 - idx, self.cap)
        self.p(f"s_waitcnt {self.name}({n})")
        self.done = len(self.ops) - n
    def wait_all(self):
        self.p(f"s_waitcnt {self.name}(0)"); self.done = len(self.ops)

def role_A(p, vgen, G):
    S_WAVE, S_TAGA, S_TAGB = G.S_WAVE, G.S_TAGA, G.S_TAGB
    f32 = G.f32; cfg = G.cfg; stamp = G.stamp; srd = G.srd; PTR = G.PTR
    REGS = 20480; NU = 10
    NXP = cfg.nxp
    V = Regs('v', 4, 256); a = V.alloc
    lane = 1
    vm = Cnt(p, 'vmcnt', 63); lg = Cnt(p, 'lgkmcnt', 15)
    vm.issue('cpf'); vm.issue('gen')
    if cfg.tlb:
        for _ in range(4): vm.issue('tlb')
    t0 = a(); t1 = a(); t2 = a(); t3 = a()
    S2 = a(12, 4)
    CFR = S2; vA = S2 + 8
    TG = S2 + 2; FL = S2 + 4; vB2o = S2 + 6; vOo = S2 + 8; vSo = S2 + 9; vSw = S2 + 10; vSr = S2 + 11; vH = [S2, S2 + 1]
    vW2o = a(2); vHo = a(); vABo = a()
    X = a(128, 4)
    vXr = a(4, 2); vXo = a(4); vWo = a(2); AB_ = a(4, 4)
    vT = vXr; vFo = vXr + 2
    ACC = a(64, 4); FR = a(24, 4)
    if cfg.prio: p(f"s_setprio {cfg.prio}")
    p(f"""s_sub_u32 s60, s2, 256
    s_and_b32 s61, s60, 7
    s_lshr_b32 s62, s60, 3""")
    srd(p, 8, 0, 2048 * 1024)
    srd(p, 12, 10, 512 * 3584)
    p(f"""s_mul_i32 s71, s{S_WAVE}, {REGS}
    v_lshrrev_b32 v{t0}, 3, v{lane}
    v_and_b32 v{t1}, 7, v{lane}
    v_mul_u32_u24 v{vWo}, 3584, v{t0}
    v_bfe_u32 v{t2}, v{lane}, 4, 1
    v_lshlrev_b32 v{t2}, 2, v{t2}
    v_xor_b32 v{t2}, v{t1}, v{t2}
    v_lshl_add_u32 v{vWo}, v{t2}, 4, v{vWo}
    v_add_u32 v{vWo+1}, {8*3584 - 1024}, v{vWo}
    s_cmp_ge_u32 s62, 28
    s_cbranch_scc1 L_a_nog1""")
    p(f"""s_mul_i32 s63, s62, 37
    s_lshr_b32 s63, s63, 8
    s_mul_i32 s64, s63, 7
    s_sub_u32 s64, s62, s64
    s_lshr_b32 s65, s61, 1
    s_lshl_b32 s65, s65, 2
    s_add_u32 s63, s63, s65
    s_and_b32 s65, s61, 1
    s_mul_i32 s65, s65, 7
    s_add_u32 s64, s64, s65
    v_lshrrev_b32 v{t2}, 4, v{lane}
    v_xor_b32 v{t2}, v{t1}, v{t2}
    v_lshlrev_b32 v{t2}, 4, v{t2}
    v_lshl_add_u32 v{vXo}, v{t0}, 10, v{t2}
    v_xor_b32 v{vXo+1}, 64, v{vXo}
    v_add_u32 v{vXo+1}, {7168}, v{vXo+1}
    v_add_u32 v{vXo+2}, {2*7168}, v{vXo}
    v_add_u32 v{vXo+3}, {2*7168}, v{vXo+1}
    s_lshl_b32 s68, s63, 17
    s_lshl_b32 s65, s{S_WAVE}, 15
    s_add_u32 s68, s68, s65
    s_add_u32 s69, s62, s61
    s_and_b32 s69, s69, {7 if cfg.rot else 0}
    s_lshl_b32 s65, s69, 7
    s_add_u32 s77, s68, s65
    s_mul_i32 s70, s{S_WAVE}, {16*3584}
    s_lshl_b32 s65, s64, 8
    s_add_u32 s70, s70, s65""")
    def xr(kc, sg): return X + (kc * 4 + sg) * 4
    SK = 18
    hi = deque(); lo = deque()
    def pump(n, nlo=0):
        k = 0
        while k < n and hi: hi.popleft()(); k += 1
        while nlo > 0 and lo: lo.popleft()(); nlo -= 1
    def drain_q():
        while hi: hi.popleft()()
        while lo: lo.popleft()()
    unit_of = {}
    free_units = deque(range(2 * NXP, NU))
    pend = deque([('w1', t) for t in range(16)] + [('w2', k) for k in range(cfg.nkr, cfg.nkr + 10)])
    def g2_phys(k): return 2 * k if k < 14 else 2 * (k - 14) + 1
    sk_done = set(); wseq = [0]; hseq = [0]
    def dma_item(item, u, cnt):
        kind, t = item
        unit_of[item] = u
        kc = t & 7
        def f():
            p(f"s_add_u32 m0, s71, {u*2048}")
            if kind == 'w1':
                if kc not in sk_done:
                    sk_done.add(kc)
                    p(f"""s_xor_b32 s65, s69, {kc}
                    s_mul_i32 s65, s65, {64*3584}
                    s_add_u32 s{SK+kc}, s65, s70""")
                else:
                    p(f"s_add_u32 s{SK+kc}, s{SK+kc}, 128")
                p(f"buffer_load_dwordx4 v{vWo}, s[12:15], s{SK+kc} offen lds")
            else:
                p(f"""s_add_u32 s35, s73, {64*g2_phys(t)*1024}
                buffer_load_dwordx4 v{vW2o}, s[52:55], s35 offen lds""")
            cnt.issue(item)
        def g():
            if kind == 'w1': p(f"buffer_load_dwordx4 v{vWo+1}, s[12:15], s{SK+kc} offen offset:1024 lds")
            else: p(f"buffer_load_dwordx4 v{vW2o+1}, s[52:55], s35 offen offset:1024 lds")
            cnt.issue(item)
        return [f, g]
    def refill(q, cnt):
        while free_units and pend:
            for f in dma_item(pend.popleft(), free_units.popleft(), cnt): q.append(f)
    def dma_x(t):
        out = []
        for i in range(4):
            def f(i=i):
                if i == 0:
                    p(f"s_add_u32 m0, s71, {(t % NXP)*4096}")
                    p(f"s_xor_b32 s35, s77, {t*128}")
                p(f"buffer_load_dwordx4 v{vXo+i}, s[8:11], s35 offen offset:{i*1024} lds")
                vm.issue(('x', t))
            out.append(f)
        return out
    for t in range(NXP):
        for f in dma_x(t): f()
        for f in dma_item(pend.popleft(), free_units.popleft(), vm): f()
    refill(hi, vm)
    for _ in range(cfg.ni): hi.popleft()()
    def g2_setup():
        srd(p, 52, 12, 1792 * 1024)
        srd(p, 56, 14, 2048 * 1024)
        p(f"""s_lshl_b32 s78, s61, 2
        s_lshr_b32 s65, s62, 3
        s_add_u32 s78, s78, s65
        s_and_b32 s79, s62, 7
        s_lshr_b32 s66, s{S_WAVE}, 1
        s_and_b32 s67, s{S_WAVE}, 1
        v_lshrrev_b32 v{t0}, 3, v{lane}
        v_lshlrev_b32 v{vW2o}, 10, v{t0}
        v_and_b32 v{t0}, 7, v{lane}
        v_bfe_u32 v{t1}, v{lane}, 4, 1
        v_lshlrev_b32 v{t1}, 1, v{t1}
        v_xor_b32 v{t0}, v{t0}, v{t1}
        v_lshl_add_u32 v{vW2o}, v{t0}, 4, v{vW2o}
        v_add_u32 v{vW2o+1}, 7168, v{vW2o}
        s_lshl_b32 s73, s{S_WAVE}, 14
        s_lshl_b32 s65, s79, 7
        s_add_u32 s73, s73, s65
        v_lshlrev_b32 v{vHo}, 4, v{lane}""")
    def va_setup(dst):
        p(f"""v_lshrrev_b32 v{t0}, 5, v{lane}
        v_lshlrev_b32 v{t0}, 10, v{t0}
        v_bfe_u32 v{t1}, v{lane}, 2, 2
        v_lshl_add_u32 v{t0}, v{t1}, 7, v{t0}
        v_bfe_u32 v{t1}, v{lane}, 4, 1
        v_lshl_add_u32 v{t0}, v{t1}, 5, v{t0}
        v_and_b32 v{t1}, 3, v{lane}
        v_lshl_add_u32 v{t0}, v{t1}, 3, v{t0}
        v_bfe_u32 v{t1}, v{lane}, 3, 1
        v_lshl_add_u32 v{dst}, v{t1}, 6, v{t0}""")
    g2_setup()
    va_setup(vA)
    p(f"""v_xor_b32 v{vA+1}, 64, v{vA}
    v_add_u32 v{vA+2}, {REGS}, v{vA}
    v_add_u32 v{vA+3}, {REGS}, v{vA+1}
    v_and_b32 v{t0}, 31, v{lane}
    v_lshlrev_b32 v{vABo}, 4, v{t0}
    v_bfe_u32 v{t1}, v{lane}, 1, 3
    v_lshrrev_b32 v{t2}, 5, v{lane}
    v_xor_b32 v{t1}, v{t1}, v{t2}
    v_lshlrev_b32 v{t1}, 4, v{t1}
    v_lshl_add_u32 v{t1}, v{t0}, 7, v{t1}
    v_add_u32 v{vXr}, s71, v{t1}
    v_xor_b32 v{vXr+1}, 32, v{vXr}
    v_xor_b32 v{vXr+2}, 64, v{vXr}
    v_xor_b32 v{vXr+3}, 96, v{vXr}
    s_lshr_b32 s72, s68, 6
    s_add_u32 s72, s72, {G.AB}
    s_lshl_b32 s76, s64, 12
    s_add_u32 s76, s76, {G.CF}""")
    def acc(phi, mu): return ACC + (phi * 2 + mu) * 16
    PF = 2
    def rd_frag(n, mus=(0, 1)):
        t, sg = n >> 2, n & 3
        b = FR + (n % 3) * 8
        u = unit_of[('w1', t)]
        for mu in mus:
            for rho in range(2):
                p(f"ds_read_b64_tr_b16 {vr(b + mu*4 + rho*2, 2)}, v{vA + (sg&1)*2 + mu} offset:{(sg>>1)*2*REGS + u*2048 + rho*512}")
                lg.issue(('fr', n))
    def x_drain(t):
        out = []
        for h in range(2):
            def r(h=h):
                if h == 0:
                    assert vm.ops.count(('x', t)) == 4
                    vm.wait(('x', t))
                for sg in range(2 * h, 2 * h + 2):
                    p(f"ds_read_b128 {vr(xr(t,sg),4)}, v{vXr+sg} offset:{(t % NXP)*4096}")
                    lg.issue(('xr', t) if h else ('xr0', t))
            out.append(r)
        return out
    def x_next(t):
        def w():
            lg.wait(('xr', t))
            if t + NXP < 8:
                for f in dma_x(t + NXP): hi.append(f)
            else:
                free_units.append((t % NXP) * 2); free_units.append((t % NXP) * 2 + 1)
                refill(hi, vm)
        return w
    C1 = -2 * 0.7978845608028654 * G.LOG2E; C2 = C1 * 0.044715
    K1 = vXo; K2 = vXo + 1; IA = vXo + 2
    def ld_cf(phi, withab):
        if withab: p(f"buffer_load_dwordx4 {vr(AB_,4)}, v{vABo}, s[4:7], s72 offen sc1")
        for mu in range(2):
            p(f"buffer_load_dwordx4 {vr(CFR+4*mu,4)}, v{vHo}, s[4:7], s76 offen offset:{phi*2048 + mu*1024} sc1")
    def corr(phi):
        p(f"s_mov_b32 s69, 0\nL_a_cfpoll{phi}:")
        vm.wait(('cf', phi))
        p(f"""v_xor_b32 v{t0}, s{S_TAGA}, v{CFR+3}
        v_xor_b32 v{t1}, s{S_TAGA}, v{CFR+7}""")
        if phi == 0: p(f"v_xor_b32 v{t2}, s{S_TAGA}, v{AB_+3}\n v_or3_b32 v{t0}, v{t0}, v{t1}, v{t2}")
        else: p(f"v_or_b32 v{t0}, v{t0}, v{t1}")
        p(f"""v_cmp_ne_u32 vcc, 0, v{t0}
        s_add_u32 s69, s69, 1
        s_cmp_eq_u64 vcc, 0
        s_cbranch_scc1 L_a_cfok{phi}
        s_cmp_ge_u32 s69, {G.SPIN_MAX}
        s_cbranch_scc1 L_a_cfok{phi}
        s_sleep 1""")
        ld_cf(phi, phi == 0)
        p(f"""s_waitcnt vmcnt(0)
        s_branch L_a_cfpoll{phi}
L_a_cfok{phi}:
        v_mov_b32 v{CFR+3}, 0
        v_mov_b32 v{CFR+7}, 0""")
        if phi == 0:
            p(f"""v_and_b32 v{IA}, 0xffff0000, v{AB_+1}
            v_lshlrev_b32 v{t0}, 16, v{AB_+2}
            v_add_f32 v{IA}, v{IA}, v{t0}
            v_rcp_f32 v{t0}, v{IA}
            v_mov_b32 v{AB_+3}, 0
            v_mul_f32 v{K1}, {f32(C1)}, v{t0}
            v_mul_f32 v{t1}, v{t0}, v{t0}
            v_mul_f32 v{t1}, v{t1}, v{t0}
            v_mul_f32 v{K2}, {f32(C2)}, v{t1}
            s_lshl_b32 s72, s63, 2
            s_add_u32 s72, s72, s{S_WAVE}
            s_mul_i32 s72, s72, {112*1024}
            s_lshl_b32 s65, s64, 13
            s_add_u32 s72, s72, s65
            s_add_u32 s72, s72, {G.HB}""")
        else:
            p("s_add_u32 s72, s72, 4096")
        for mu in range(2):
            p(f"v_mfma_f32_32x32x16_bf16 {vr(acc(phi,mu),16)}, {vr(CFR+4*mu,4)}, {vr(AB_,4)}, {vr(acc(phi,mu),16)}")
    GT = X
    def gelu_ops(phi):
        ops = []
        quarters = [(mu, q) for mu in range(2) for q in range(4)]
        for k, (mu, q) in enumerate(quarters):
            tm = GT + (k & 1) * 4; ac = acc(phi, mu) + 4 * q; ho = GT + 8 + ((k >> 1) & 1) * 4
            L = []
            for j in range(4): L.append(f"v_mul_f32 v{tm+j}, v{ac+j}, v{ac+j}")
            for j in range(4): L.append(f"v_fma_f32 v{tm+j}, v{tm+j}, v{K2}, v{K1}")
            for j in range(4): L.append(f"v_mul_f32 v{tm+j}, v{tm+j}, v{ac+j}")
            for j in range(4): L.append(f"v_exp_f32 v{tm+j}, v{tm+j}")
            for j in range(4): L.append(f"v_fma_f32 v{tm+j}, v{tm+j}, v{IA}, v{IA}")
            for j in range(4): L.append(f"v_rcp_f32 v{tm+j}, v{tm+j}")
            for j in range(4): L.append(f"v_mul_f32 v{tm+j}, v{tm+j}, v{ac+j}")
            for j in range(2): L.append(f"v_cvt_pk_bf16_f32 v{ho + (q&1)*2 + j}, v{tm+2*j}, v{tm+2*j+1}")
            for l in L: ops.append(lambda l=l: p(l))
            if q & 1:
                def st(mu=mu, q=q, ho=ho):
                    p(f"buffer_store_dwordx4 {vr(ho,4)}, v{vHo}, s[4:7], s72 offen offset:{mu*2048 + (q>>1)*1024} sc1")
                    vm.issue(('hst', phi))
                ops.append(st)
        return ops
    def flag(phi, cnt, tg):
        p(f"""v_mov_b32 v{tg}, s{S_TAGA}
        v_mov_b32 v{tg+1}, s{S_TAGB}
        s_lshl_b32 s65, s60, 2
        s_add_u32 s65, s65, s{S_WAVE}
        s_lshl_b32 s65, s65, 6
        s_add_u32 s65, s65, {G.HFLAG + phi*G.HFLAG1}
        v_mov_b32 v{t0}, 0
        s_mov_b64 exec, 1
        buffer_store_dwordx2 {vr(tg,2)}, v{t0}, s[4:7], s65 offen sc1
        s_mov_b64 exec, -1""")
        cnt.issue(('flag', phi))
    def lines(txt): return [(lambda l=l: p(l)) for l in txt.strip().split('\n')]
    vt_txt = f"""v_lshrrev_b32 v{t2}, 5, v{lane}
        v_lshlrev_b32 v{t2}, 9, v{t2}
        v_bfe_u32 v{t3}, v{lane}, 2, 2
        v_lshl_add_u32 v{t2}, v{t3}, 7, v{t2}
        v_and_b32 v{t3}, 1, v{lane}
        v_lshl_add_u32 v{t2}, v{t3}, 6, v{t2}
        v_bfe_u32 v{t3}, v{lane}, 4, 1
        v_lshl_add_u32 v{t2}, v{t3}, 4, v{t2}
        v_bfe_u32 v{t3}, v{lane}, 1, 1
        v_lshl_add_u32 v{t2}, v{t3}, 3, v{t2}
        v_bfe_u32 v{t3}, v{lane}, 3, 1
        v_xor_b32 v{t3}, s67, v{t3}
        v_lshl_add_u32 v{t2}, v{t3}, 5, v{t2}
        v_add_u32 v{vT}, s71, v{t2}
        v_xor_b32 v{vT+1}, 32, v{vT}
        v_min_u32 v{t3}, 27, v{lane}
        v_lshrrev_b32 v{t2}, 1, v{t3}
        v_mul_u32_u24 v{vFo}, 37, v{t2}
        v_lshrrev_b32 v{vFo}, 8, v{vFo}
        v_mul_u32_u24 v{vFo+1}, 7, v{vFo}
        v_sub_u32 v{t2}, v{t2}, v{vFo+1}
        s_lshr_b32 s28, s78, 1
        s_and_b32 s29, s28, 3
        s_mul_i32 s29, s29, 7
        v_add_u32 v{t2}, s29, v{t2}
        s_lshr_b32 s28, s28, 2
        s_lshl_b32 s28, s28, 1
        v_add_u32 v{vFo}, s28, v{vFo}
        v_lshl_add_u32 v{t2}, v{t2}, 3, v{vFo}
        s_and_b32 s28, s78, 1
        s_lshl_b32 s28, s28, 1
        v_and_b32 v{t3}, 1, v{t3}
        v_add_u32 v{t3}, s28, v{t3}
        v_lshl_add_u32 v{t2}, v{t2}, 2, v{t3}
        v_lshlrev_b32 v{vFo}, 6, v{t2}
        s_mul_i32 s30, s78, {2*112*1024}
        s_lshl_b32 s28, s{S_WAVE}, 10
        s_add_u32 s30, s30, s28
        s_add_u32 s30, s30, {G.HB}
        s_mul_i32 s31, s66, {112*1024}
        s_sub_u32 s32, {112*1024}, s31"""
    NK_R = cfg.nkr
    BLK = lambda i: X + 8 * i
    wblk = {k: BLK(2 + k) for k in range(NK_R)}
    def rd_w2(k, dst, lgc, mds=(0, 1)):
        u = unit_of[('w2', k)]
        for md in mds:
            for rho in range(2):
                p(f"ds_read_b64_tr_b16 {vr(dst + md*4 + rho*2, 2)}, v{vT+md} offset:{u*2048 + rho*1024}")
                lgc.issue(('w2r', k))
    isL = lambda k: NK_R <= k < NK_R + 10
    def ld_raw(k, cnt):
        def f():
            p(f"""s_add_u32 s37, s73, {64*g2_phys(k)*1024}
            buffer_load_dwordx4 {vr(wblk[k],4)}, v{vW2o}, s[52:55], s37 offen""")
            cnt.issue(('w2', k))
        def g():
            p(f"buffer_load_dwordx4 {vr(wblk[k]+4,4)}, v{vW2o+1}, s[52:55], s37 offen offset:1024")
            cnt.issue(('w2', k))
        return [f, g]
    SCR = []
    def bounce_w(k):
        u = SCR[k & 1]; unit_of[('w2', k)] = u
        for i in range(2):
            p(f"ds_write_b128 v{vBw}, {vr(wblk[k]+4*i,4)} offset:{u*2048 + i*1024}"); lg.issue(('w2w', k))
    def mv(k):
        def f():
            while vm.ops.count(('w2', k)) < 2: hi.popleft()()
            vm.wait(('w2', k)); rd_w2(k, wblk[k], lg)
        def g():
            lg.wait(('w2r', k)); free_units.append(unit_of[('w2', k)]); refill(hi, vm)
        return f, g
    FB_ = {0: (G.HFLAG, vFo), 1: (G.HFLAG + G.HFLAG1, vFo), 2: (G.SFLAG, vFo + 1)}
    def poll_issue(phi, cnt):
        p(f"s_mov_b32 s65, {FB_[phi][0]}\n buffer_load_dwordx2 {vr(FL,2)}, v{FB_[phi][1]}, s[4:7], s65 offen sc1")
        cnt.issue(('poll', phi))
    def poll_check(phi, cnt, sfx=''):
        p(f"s_mov_b32 s69, 0\nL_a_hpoll{phi}{sfx}:")
        cnt.wait(('poll', phi))
        p(f"""v_xor_b32 v{t0}, s{S_TAGA}, v{FL}
        v_xor_b32 v{t1}, s{S_TAGB}, v{FL+1}
        v_or_b32 v{t0}, v{t0}, v{t1}
        v_cmp_ne_u32 vcc, 0, v{t0}
        s_add_u32 s69, s69, 1
        s_cmp_eq_u64 vcc, 0
        s_cbranch_scc1 L_a_hok{phi}{sfx}
        s_cmp_ge_u32 s69, {G.SPIN_MAX}
        s_cbranch_scc1 L_a_hok{phi}{sfx}
        s_mov_b32 s65, {FB_[phi][0]}
        s_sleep 1
        buffer_load_dwordx2 {vr(FL,2)}, v{FB_[phi][1]}, s[4:7], s65 offen sc1
        s_waitcnt vmcnt(0)
        s_branch L_a_hpoll{phi}{sfx}
L_a_hok{phi}{sfx}:""")
    hblk = {}; nh = [0]; lim = [14]
    hfree = deque([FR, FR + 8, FR + 16] + [BLK(i) for i in range(2 + NK_R, 16)])
    WF = [hfree.pop() for _ in range(cfg.wd + 1)]
    def ld_h1(k, r, cnt, nt):
        if nt == 0: p(f"s_add_u32 s36, s30, {g2_phys(k)*4096}")
        p(f"buffer_load_dwordx4 {vr(r + nt*4, 4)}, v{vH[nt]}, s[4:7], s36 offen sc1")
        cnt.issue(('h', k))
    def ld_h(k, r, cnt):
        ld_h1(k, r, cnt, 0); ld_h1(k, r, cnt, 1)
    def ld_h_all():
        while hfree and nh[0] < lim[0]:
            k = nh[0]; nh[0] += 1
            r = hfree.popleft(); hblk[k] = r
            hi.append(lambda k=k, r=r: ld_h1(k, r, vm, 0))
            hi.append(lambda k=k, r=r: ld_h1(k, r, vm, 1))
    vBw = S2 + 7
    vh_txt = f"""v_add_u32 v{vBw}, s71, v{vHo}
        v_add_u32 v{vH[0]}, s31, v{vHo}
        v_add_u32 v{vH[1]}, s32, v{vHo}"""
    vm.wait('gen')
    G.make_tags(p, vgen)
    for f in x_drain(0): f()
    stamp(p, 1)
    vm.wait(('w1', 0))
    p("s_barrier")
    for n in range(PF): rd_frag(n)
    x_next(0)()
    flagged = [False]; mvd = [0]; issued_at = {}; delayed = deque()
    for n in range(64):
        t, sg = n >> 2, n & 3
        phi, kc = t >> 3, t & 7
        if sg == 0 and t + 1 < 8:
            for f in x_drain(t + 1): hi.append(f)
        if sg == 2 and t + 1 < 8: hi.append(x_next(t + 1))
        if n == cfg.gstart - 8:
            def l0():
                ld_cf(0, True)
                for _ in range(3): vm.issue(('cf', 0))
            hi.append(l0)
        if n == 29:
            for f in lines(vt_txt): lo.append(f)
        if n == cfg.gstart:
            while lo: lo.popleft()()
            lo.append(lambda: corr(0))
            def l1():
                ld_cf(1, False)
                for _ in range(2): vm.issue(('cf', 1))
            for _ in range(4): lo.append(lambda: None)
            lo.append(l1)
            for f in gelu_ops(0): lo.append(f)
        if phi == 1:
            while mvd[0] < NK_R and 2 + mvd[0] < 2 * kc:
                for f in ld_raw(mvd[0], vm): hi.append(f)
                mvd[0] += 1
        m = n + PF
        if m < 64 and (m & 3) == 0:
            tn = m >> 2
            while vm.ops.count(('w1', tn)) < 2: pump(1)
            vm.wait(('w1', tn))
            p("s_barrier")
            if tn >= 2:
                free_units.append(unit_of[('w1', tn - 2)]); refill(hi, vm)
        if phi == 0 and sg == 0:
            while ('xr', t) not in lg.ops: pump(1)
            lg.wait(('xr', t))
        lg.wait(('fr', n))
        b = FR + (n % 3) * 8
        first = (kc == 0 and sg == 0)
        for mu in range(2):
            cc = '0' if first else vr(acc(phi, mu), 16)
            p(f"v_mfma_f32_32x32x16_bf16 {vr(acc(phi,mu),16)}, {vr(b+mu*4,4)}, {vr(xr(kc, sg),4)}, {cc}")
            if m < 64: rd_frag(m, (mu,))
            if hi: pump(1, max(0, cfg.glo - 2))
            else: pump(0, cfg.glo)
        if n >= cfg.fl0 and not lo and not flagged[0]:
            vm.wait(('hst', 0)); flag(0, vm, GT); flagged[0] = True
        if cfg.fine and sg == 3 and t % 2 == 1 and t < 15: stamp(p, 2 + t // 2)
    while lo: lo.popleft()()
    if cfg.fine:
        stamp(p, 9)
        stamp = lambda p, k: None
    corr(1)
    if not flagged[0]:
        vm.wait(('hst', 0)); flag(0, vm, FR)
    p("s_barrier")
    stamp(p, 2)
    SCR += [unit_of[('w1', 14)], unit_of[('w1', 15)]]
    while mvd[0] < NK_R:
        for f in ld_raw(mvd[0], vm): hi.append(f)
        mvd[0] += 1
    p(vh_txt)
    g1 = gelu_ops(1)
    pc = len(g1) * cfg.p0c // 100
    poll_issue(0, vm)
    for gi, g in enumerate(g1):
        if gi == pc:
            poll_check(0, vm)
            dm = list(hi); hi.clear(); ld_h_all()
            for f in dm: hi.append(f)
        g()
        if hi and gi % cfg.gdm == 0: hi.popleft()()
    while any(vm.ops.count(o) == 1 for o in vm.ops if isinstance(o, tuple) and o[0] in ('w2', 'h')): hi.popleft()()
    for _ in range(2 * cfg.nh0):
        if hi: hi.popleft()()
    vm.wait(('hst', 1)); flag(1, vm, TG)
    hfree.append(BLK(0)); hfree.append(BLK(1))
    ld_h_all()
    emitted = set(vm.ops)
    if cfg.fine2:
        stamp(p, 7)
        stamp = lambda p, k: None
    stamp(p, 3)
    p("s_branch L_a_g2")
    p("L_a_nog1:")
    vm2 = Cnt(p, 'vmcnt', 63); lg2 = Cnt(p, 'lgkmcnt', 15)
    p(f"""s_sub_u32 s63, s62, 28
    s_lshl_b32 s63, s63, 3
    s_add_u32 s63, s63, s61
    s_cmp_ge_u32 s63, 28
    s_cbranch_scc1 L_a_nocf
    s_lshr_b32 s64, s63, 1
    s_and_b32 s66, s63, 1
    s_lshl_b32 s70, s66, 2
    s_add_u32 s70, s70, s{S_WAVE}
    s_mul_i32 s70, s70, {64*3584}
    s_lshl_b32 s65, s64, 8
    s_add_u32 s70, s70, s65""")
    for u in range(8):
        p(f"""s_add_u32 m0, s71, {u*2048}
        s_add_u32 s28, s70, {(u & 3)*16*3584 + (u >> 2)*128}
        buffer_load_dwordx4 v{vWo}, s[12:15], s28 offen lds
        buffer_load_dwordx4 v{vWo+1}, s[12:15], s28 offen offset:1024 lds""")
        vm2.issue(('c', u)); vm2.issue(('c', u))
        if u == 3:
            vb = X + 12
            p(f"""v_lshl_add_u32 v{t0}, v{lane}, 1, s65
            global_load_ushort v{vb}, v{t0}, {sr(PTR(11),2)}
            global_load_ushort v{vb+1}, v{t0}, {sr(PTR(11),2)} offset:128""")
            vm2.issue('b1'); vm2.issue('b1')
    SEL = X; ONE = X + 4; CB = X + 24; vj = X + 14; vq = X + 15; vcw = X + 16; vcr = X + 17; vco = X + 19
    va_setup(vA)
    p(f"""v_add_u32 v{vA}, s71, v{vA}
    v_xor_b32 v{vA+1}, 64, v{vA}
    v_and_b32 v{vj}, 15, v{lane}
    v_lshrrev_b32 v{vq}, 4, v{lane}
    v_xor_b32 v{t0}, v{vq}, v{vj}
    v_and_b32 v{t0}, 1, v{t0}
    v_cmp_eq_u32 vcc, 0, v{t0}
    v_mov_b32 v{t1}, 0x3f803f80
    v_cndmask_b32 v{SEL}, 0, v{t1}, vcc
    v_mov_b32 v{SEL+1}, v{SEL}
    v_mov_b32 v{SEL+2}, v{SEL}
    v_mov_b32 v{SEL+3}, v{SEL}
    v_lshlrev_b32 v{vcw}, 6, v{vj}
    v_lshl_add_u32 v{vcw}, v{vq}, 4, v{vcw}
    v_add_u32 v{vcw}, s71, v{vcw}
    v_lshlrev_b32 v{vcr}, 2, v{lane}
    v_add_u32 v{vcr+1}, {2*REGS}, v{vcr}
    v_and_b32 v{t0}, 31, v{lane}
    v_lshlrev_b32 v{vco}, 4, v{t0}
    v_lshrrev_b32 v{t0}, 5, v{lane}
    v_lshl_add_u32 v{vco}, v{t0}, 10, v{vco}
    s_lshl_b32 s29, s64, 12
    s_lshl_b32 s28, s66, 9
    s_add_u32 s29, s29, s28
    s_add_u32 s29, s29, {G.CF}
    s_mov_b32 s74, 0x00030003
    s_mov_b32 s75, 0x00030003
    s_sub_u32 s28, s66, 1""")
    for ph in range(2):
        for u in range(4 * ph, 4 * ph + 4):
            vm2.wait(('c', u))
            for mu in range(2):
                for rho in range(2):
                    p(f"ds_read_b64_tr_b16 {vr(CB + (u&3)*8 + mu*4 + rho*2, 2)}, v{vA+mu} offset:{u*2048 + rho*512}")
                    lg2.issue(('cr', u))
        for u in range(4 * ph, 4 * ph + 4):
            lg2.wait(('cr', u))
            for mu in range(2):
                cc = '0' if (u & 3) == 0 else vr(ONE + 4 * mu, 4)
                p(f"v_mfma_f32_16x16x32_bf16 {vr(ONE+4*mu,4)}, {vr(CB + (u&3)*8 + mu*4,4)}, {vr(SEL,4)}, {cc}")
        if ph == 0:
            vm2.wait('b1'); G.make_tags(p, vgen)
        off = (8 + ph) * 2048
        p(f"""s_mov_b64 exec, s[74:75]
        ds_write_b128 v{vcw}, {vr(ONE,4)} offset:{off}
        ds_write_b128 v{vcw}, {vr(ONE+4,4)} offset:{off+128}
        s_mov_b64 exec, -1
        v_and_b32 v{vb+ph}, s28, v{vb+ph}
        s_waitcnt lgkmcnt(0)
        s_barrier
        ds_read_b32 v{CB}, v{vcr} offset:{off}
        ds_read_b32 v{CB+1}, v{vcr} offset:{off + REGS}
        ds_read_b32 v{CB+2}, v{vcr+1} offset:{off}
        ds_read_b32 v{CB+3}, v{vcr+1} offset:{off + REGS}
        s_waitcnt lgkmcnt(0)
        v_add_f32 v{CB}, v{CB}, v{CB+1}
        v_add_f32 v{CB+2}, v{CB+2}, v{CB+3}
        v_add_f32 v{CB}, v{CB}, v{CB+2}
        v_cvt_pk_bf16_f32 v{CB+1}, v{CB}, v{CB}
        v_and_b32 v{CB+2}, 0xffff0000, v{CB+1}
        v_sub_f32 v{CB+3}, v{CB}, v{CB+2}
        v_cvt_pk_bf16_f32 v{CB+36}, v{CB}, v{CB+3}
        v_and_b32 v{CB+1}, 0xffff, v{CB+1}
        v_lshl_or_b32 v{CB+37}, v{vb+ph}, 16, v{CB+1}
        v_mov_b32 v{CB+38}, v{vb+ph}
        v_mov_b32 v{CB+39}, s{S_TAGA}
        s_cmp_lg_u32 s{S_WAVE}, {ph}
        s_cbranch_scc1 L_a_nocf2{ph}
        buffer_store_dwordx4 {vr(CB+36,4)}, v{vco}, s[4:7], s29 offen offset:{ph*2048} sc1
L_a_nocf2{ph}:""")
        lg2.done = len(lg2.ops)
        stamp(p, 1 + ph)
    p(f"""s_barrier
L_a_nocf:
    s_waitcnt vmcnt(0)
    s_barrier""")
    G.make_tags(p, vgen)
    g2_setup()
    p(vt_txt); p(vh_txt)
    vm2 = Cnt(p, 'vmcnt', 63); lg2 = Cnt(p, 'lgkmcnt', 15)
    save_units = dict(unit_of)
    flag(0, vm2, TG); flag(1, vm2, TG)
    for k in range(NK_R):
        if ('w2', k) in emitted:
            for f in ld_raw(k, vm2): f()
    unit_of.update(save_units)
    for (kind, k), u in sorted(save_units.items()):
        if kind == 'w2' and k >= NK_R and ('w2', k) in emitted:
            for f in dma_item(('w2', k), u, vm2): f()
    poll_issue(0, vm2); poll_check(0, vm2, 'i')
    for k in sorted(hblk):
        if ('h', k) in emitted: ld_h(k, hblk[k], vm2)
    vm2.wait_all()
    p("L_a_g2:")
    ACC2 = ACC
    for r, n in ((vXo, 4), (vWo, 2), (AB_, 4)): V.free(r, n)
    fin_txt = f"""v_and_b32 v{t2}, 31, v{lane}
    v_lshlrev_b32 v{vOo}, 10, v{t2}
    v_lshrrev_b32 v{t2}, 5, v{lane}
    v_lshl_add_u32 v{vOo}, v{t2}, 6, v{vOo}
    s_lshl_b32 s26, s78, 16
    s_lshl_b32 s28, s66, 15
    s_add_u32 s26, s26, s28
    s_lshl_b32 s29, s79, 7
    s_lshl_b32 s28, s67, 5
    s_add_u32 s29, s29, s28
    s_add_u32 s26, s26, s29
    v_lshl_add_u32 v{vB2o}, v{t2}, 6, s29
    v_lshrrev_b32 v{t2}, 2, v{lane}
    v_lshlrev_b32 v{vSo}, 12, v{t2}
    v_and_b32 v{t2}, 3, v{lane}
    v_lshl_add_u32 v{vSo}, v{t2}, 4, v{vSo}
    s_lshl_b32 s27, s79, 18
    s_lshl_b32 s28, s67, 16
    s_add_u32 s27, s27, s28
    s_lshl_b32 s28, s78, 7
    s_add_u32 s27, s27, s28
    s_lshl_b32 s28, s66, 6
    s_add_u32 s27, s27, s28
    s_add_u32 s27, s27, {G.ST}
    v_add_u32 v{vSw}, s71, v{vHo}
    v_and_b32 v{t2}, 15, v{lane}
    v_bfe_u32 v{t3}, v{lane}, 4, 1
    v_lshl_add_u32 v{t2}, v{t3}, 5, v{t2}
    s_lshl_b32 s28, s79, 6
    s_lshl_b32 s29, s67, 4
    s_add_u32 s28, s28, s29
    v_add_u32 v{t2}, s28, v{t2}
    s_lshr_b32 s28, s78, 4
    s_lshl_b32 s28, s28, 6
    v_lshl_add_u32 v{vFo+1}, v{t2}, 7, s28
    v_lshrrev_b32 v{t2}, 5, v{lane}
    v_lshlrev_b32 v{t2}, 10, v{t2}
    v_bfe_u32 v{t3}, v{lane}, 2, 2
    v_lshl_add_u32 v{t2}, v{t3}, 6, v{t2}
    v_bfe_u32 v{t3}, v{lane}, 4, 1
    v_lshl_add_u32 v{t2}, v{t3}, 5, v{t2}
    v_and_b32 v{t3}, 3, v{lane}
    v_lshl_add_u32 v{t2}, v{t3}, 3, v{t2}
    v_add_u32 v{vSr}, s71, v{t2}"""
    for f in lines(fin_txt): lo.append(f)
    def ld_s(dst):
        for i in range(2):
            p(f"s_add_u32 s65, s27, {i*32*4096}\n buffer_load_dwordx4 {vr(dst+4*i,4)}, v{vSo}, s[4:7], s65 offen sc1")
            vm.issue('s')
    def a2(md, nt): return ACC2 + (nt * 2 + md) * 16
    def unpack_l(dst, src, n):
        out = []
        for q in range(n):
            out.append(f"v_lshlrev_b32 v{dst(2*q)}, 16, v{src+q}"); out.append(f"v_and_b32 v{dst(2*q+1)}, 0xffff0000, v{src+q}")
        return out
    lateR = deque(range(NK_R + 10, 28))
    def wsrc(k): return WF[k % (cfg.wd + 1)]
    XE = B2E = SG = None
    def prep(k):
        out = []
        def w():
            while vm.ops.count(('w2', k)) < 2: hi.popleft()()
            vm.wait(('w2', k))
            if not isL(k):
                bounce_w(k); hfree.append(wblk[k])
        out.append(w)
        out.append(lambda: rd_w2(k, wsrc(k), lg, (1,)))
        out.append(lambda: rd_w2(k, wsrc(k), lg, (0,)))
        return out
    for k in range(cfg.wd):
        for f in prep(k): f()
    for k in range(28):
        if k == cfg.kpoll:
            while hi: hi.popleft()()
            stamp(p, 4)
            poll_issue(1, vm)
        if k == min(cfg.kpoll + 2, 14):
            while hi: hi.popleft()()
            assert not lateR and XE is not None, (lateR, XE)
            poll_check(1, vm); lim[0] = 28; ld_h_all()
            for _ in range(2 * cfg.nh1):
                if hi: hi.popleft()()
            stamp(p, 5)
        if k == 15:
            vm.wait('xe')
            for q in range(8):
                p(f"""v_lshlrev_b32 v{t2}, 16, v{B2E+q}
                v_and_b32 v{t3}, 0xffff0000, v{B2E+q}
                v_add_f32 v{ACC2+2*q}, v{ACC2+2*q}, v{t2}
                v_add_f32 v{ACC2+2*q+1}, v{ACC2+2*q+1}, v{t3}""")
            hfree.append(B2E)
        nx = deque(prep(k + cfg.wd)) if k + cfg.wd < 28 else deque()
        while vm.ops.count(('h', k)) < 2: hi.popleft()()
        vm.wait(('h', k))
        lg.wait(('w2r', k))
        if isL(k):
            free_units.append(unit_of[('w2', k)]); refill(hi, vm)
        for nt in (1, 0):
            for md in (1, 0):
                cc = '0' if k == 0 else vr(a2(md, nt), 16)
                p(f"v_mfma_f32_32x32x16_bf16 {vr(a2(md,nt),16)}, {vr(wsrc(k)+md*4,4)}, {vr(hblk[k] + nt*4, 4)}, {cc}")
                if nx: nx.popleft()()
                if hi: pump(1, 1)
                else: pump(0, 4)
        hfree.append(hblk[k])
        ld_h_all()
        if lim[0] == 14 and nh[0] == 14:
            while lateR and hfree:
                k2 = lateR.popleft(); wblk[k2] = hfree.popleft()
                for f in ld_raw(k2, vm): hi.append(f)
            if not lateR and XE is None and len(hfree) >= 3 and not lo:
                SG = hfree.popleft(); XE = hfree.popleft(); B2E = hfree.popleft()
                for l in f"""buffer_load_dwordx4 {vr(XE,4)}, v{vOo}, s[8:11], s26 offen
                buffer_load_dwordx4 {vr(XE+4,4)}, v{vOo}, s[8:11], s26 offen offset:16
                global_load_dwordx4 {vr(B2E,4)}, v{vB2o}, {sr(PTR(13),2)}
                global_load_dwordx4 {vr(B2E+4,4)}, v{vB2o}, {sr(PTR(13),2)} offset:16""".split('\n'):
                    hi.append(lambda l=l: (p(l), vm.issue('xe')))
        if k == cfg.ks:
            drain_q(); poll_issue(2, vm)
        if k == cfg.ks + 3:
            drain_q(); poll_check(2, vm); ld_s(SG)
        if k == 24:
            XF = [hfree.popleft(), hfree.popleft()]
            xf = lambda i: XF[i >> 3] + (i & 7)
            for l in unpack_l(xf, XE, 8): lo.append(lambda l=l: p(l))
    drain_q()
    stamp(p, 6)
    SV = hfree.popleft(); OUT = hfree.popleft()
    TMb = [hfree.popleft(), hfree.popleft()]; tm = lambda i: TMb[i >> 3] + (i & 7)
    SFb = [hfree.popleft(), hfree.popleft()]; sf = lambda i: SFb[i >> 3] + (i & 7)
    OWN = ACC2
    p(f"v_add_u32 v{t1}, s71, v{vHo}")
    for T in (3, 2, 1):
        for q in range(4): p(f"ds_write_b128 v{t1}, {vr(ACC2 + T*16 + 4*q, 4)} offset:{T*4096 + q*1024}")
    vm.wait('s')
    for i in range(2): p(f"ds_write_b128 v{vSw}, {vr(SG+4*i,4)} offset:{i*1024}")
    for q in range(4): p(f"ds_read_b64_tr_b16 {vr(SV+2*q,2)}, v{vSr} offset:{q*256}")
    for k in range(1, 4):
        p(f"""s_xor_b32 s65, s{S_WAVE}, {k}
        s_mul_i32 s65, s65, {REGS}
        v_add_u32 v{t0+k}, s65, v{vHo}""")
    p("s_waitcnt lgkmcnt(0)\n s_barrier")
    for k in range(1, 4):
        for q in range(4): p(f"ds_read_b128 {vr(ACC2 + k*16 + 4*q, 4)}, v{t0+k} offset:{k*4096 + q*1024}")
    for l in unpack_l(sf, SV, 8): p(l)
    for k in range(1, 4):
        p(f"s_waitcnt lgkmcnt({12 - 4*k})")
        for q in range(16): p(f"v_add_f32 v{OWN+q}, v{OWN+q}, v{ACC2+k*16+q}")
    for q in range(16): p(f"v_mul_f32 v{tm(q)}, {f32(-G.LOG2E)}, v{OWN+q}")
    for q in range(16): p(f"v_exp_f32 v{tm(q)}, v{tm(q)}")
    for q in range(16): p(f"v_mul_f32 v{OWN+q}, v{OWN+q}, v{sf(q)}")
    for q in range(16): p(f"v_add_f32 v{tm(q)}, 1.0, v{tm(q)}")
    for q in range(16): p(f"v_rcp_f32 v{tm(q)}, v{tm(q)}")
    for h in range(2):
        for q in range(8 * h, 8 * h + 8): p(f"v_fma_f32 v{OWN+q}, v{OWN+q}, v{tm(q)}, v{xf(q)}")
        for q in range(4 * h, 4 * h + 4): p(f"v_cvt_pk_bf16_f32 v{OUT+q}, v{OWN+2*q}, v{OWN+2*q+1}")
        p(f"buffer_store_dwordx4 {vr(OUT+4*h,4)}, v{vOo}, s[56:59], s26 offen offset:{16*h}")
    stamp(p, 7)
    G.stamps_out(p, 10 if cfg.fine else 8, ACC2 + 16)
    p("s_endpgm")
    return V.hi_used
```

```python
from asmlib import *
import math
from collections import deque
from roleA import Cnt

XBL = 0; XCH = 4608
TT = 9216 + 16; TCH = 1344
KC = 12288; KCS = 4160; KCH = 8 * KCS
LNB = 81920 - 8192
EI = KC; ERS = 528; ECH = 53 * ERS + 48
assert EI + 2 * ECH <= LNB

def role_B(p, vgen, G):
    S_WAVE, S_TAGA, S_TAGB = G.S_WAVE, G.S_TAGA, G.S_TAGB
    f32 = G.f32; cfg = G.cfg; stamp = G.stamp; srd = G.srd; PTR = G.PTR; LOG2E = G.LOG2E
    V = Regs('v', 4, 240); a = V.alloc
    DUMH = 240
    lane = 1
    vm = Cnt(p, 'vmcnt', 63); lg = Cnt(p, 'lgkmcnt', 15)
    vm.issue('cpf'); vm.issue('gen')
    if cfg.tlb:
        for _ in range(4): vm.issue('tlb')
    t0 = a(); t1 = a(); t2 = a(); t3 = a()
    vL16 = a(); vLd = a(); vDk = a(); vi = a(); vg = a(); vXo = a(); vKW = a(2); vA = a(); vB = a()
    XA = a(4, 2); XB = a(4, 2); PR = a(6); PQ = a(4)
    srd(p, 8, 0, 2048 * 1024)
    p(f"""s_and_b32 s53, s2, 7
    s_lshl_b32 s53, s53, 5
    s_lshr_b32 s60, s2, 3
    s_add_u32 s53, s53, s60
    s_lshl_b32 s61, s53, 3
    s_lshl_b32 s62, s{S_WAVE}, 1
    s_add_u32 s61, s61, s62
    s_lshl_b32 s62, s61, 10
    v_lshlrev_b32 v{vL16}, 4, v{lane}
    buffer_load_dwordx4 {vr(XA,4)}, v{vL16}, s[8:11], s62 offen
    buffer_load_dwordx4 {vr(XB,4)}, v{vL16}, s[8:11], s62 offen offset:1024
    s_and_b32 s59, s2, 7
    s_lshl_b32 s59, s59, 5
    s_lshr_b32 s60, s2, 3
    s_add_u32 s59, s59, s60
    s_lshr_b32 s57, s{S_WAVE}, 1
    s_and_b32 s58, s{S_WAVE}, 1
    s_lshl_b32 s63, s59, 1
    s_add_u32 s63, s63, s57
    s_lshl_b32 s60, s63, 8
    s_lshl_b32 s62, s58, 7
    s_add_u32 s62, s62, s60
    v_lshl_add_u32 v{t0}, v{lane}, 1, s62
    v_xor_b32 v{t2}, 128, v{t0}
    s_lshl_b32 s60, s63, 1
    v_mov_b32 v{t1}, s60""")
    vm.issue('x'); vm.issue('x')
    if cfg.touch1:
        DUM1 = DUMH + 8
        srd(p, 12, 10, 512 * 3584)
        p(f"""s_mul_i32 s54, s2, 7168
        s_lshl_b32 s55, s{S_WAVE}, 11
        s_add_u32 s54, s54, s55
        buffer_load_dwordx4 {vr(DUM1,4)}, v{vL16}, s[12:15], s54 offen
        buffer_load_dwordx4 {vr(DUM1+4,4)}, v{vL16}, s[12:15], s54 offen offset:1024""")
        vm.issue('touch'); vm.issue('touch')
    vPa = a(3)
    p(f"v_mov_b32 v{vPa}, v{t0}\n v_mov_b32 v{vPa+1}, v{t1}\n v_mov_b32 v{vPa+2}, v{t2}")
    def par_loads():
        for k in range(6):
            p(f"global_load_ushort v{PR+k}, v{vPa}, {sr(PTR(1+k),2)}"); vm.issue('par')
        for k in range(4):
            p(f"global_load_ushort v{PQ+k}, v{vPa+2}, {sr(PTR(3+k),2)}"); vm.issue('par')
        p(f"global_load_ushort v{vLd}, v{vPa+1}, {sr(PTR(7),2)}"); vm.issue('par')
        p(f"global_load_ushort v{vDk}, v{vPa+1}, {sr(PTR(8),2)}"); vm.issue('par')
    if not cfg.parlate: par_loads()
    def touch2():
        if True:
            DUM = DUMH
            srd(p, 12, 12, 1792 * 1024)
            p(f"""s_mul_i32 s60, s2, 7168
            s_lshl_b32 s62, s{S_WAVE}, 11
            s_add_u32 s60, s60, s62
            buffer_load_dwordx4 {vr(DUM,4)}, v{vL16}, s[12:15], s60 offen
            buffer_load_dwordx4 {vr(DUM+4,4)}, v{vL16}, s[12:15], s60 offen offset:1024""")
            vm.issue('touch'); vm.issue('touch')
    if cfg.touch == 1 and not cfg.parlate: touch2()
    GA = a(15); aT = a(4); vEw = a(); vEr = a(2); vXw = a(); vXe = a(); vSo = a(); vLr = a(); vLw = a(); ZR = a(4, 2)
    p(f"""v_and_b32 v{vi}, 15, v{lane}
    v_lshrrev_b32 v{vg}, 4, v{lane}
    v_lshlrev_b32 v{vKW}, 4, v0
    s_lshl_b32 s60, s{S_WAVE}, 11
    s_add_u32 s60, s60, {LNB}
    v_lshl_add_u32 v{vLw}, v{lane}, 5, s60
    v_lshlrev_b32 v{vLr}, 2, v0
    v_add_u32 v{vLr}, {LNB}, v{vLr}
    s_mov_b32 s70, 0xffff0000
    s_mov_b32 s71, 0xffff0000""")
    def late_consts():
        p(f"v_lshlrev_b32 v{t3}, 3, v0")
        for e in range(0, 16, 2):
            hs = [h for h in range(2) if e + h < 15]
            for h in hs:
                p(f"v_add_u32 v{GA+e+h}, {7 - (e + h)}, v{t3}")
                p(f"v_max_i32 v{t0+h}, 128, v{GA+e+h}")
                p(f"v_cvt_f32_i32 v{t0+h}, v{t0+h}")
            p(f"""v_cvt_pk_bf16_f32 v{t0}, v{t0}, v{t1}
            v_lshrrev_b32 v{t1}, 16, v{t0}
            v_and_b32 v{t0}, 0xffff, v{t0}""")
            for h in hs:
                p(f"v_subrev_u32 v{t0+h}, 0x4280, v{t0+h}")
                p(f"v_min_i32 v{GA+e+h}, v{t0+h}, v{GA+e+h}")
                p(f"v_lshlrev_b32 v{GA+e+h}, 1, v{GA+e+h}")
        p(f"""s_lshl_b32 s60, s58, 4
        v_add_u32 v{t3}, s60, v{vi}
        s_mul_i32 s60, s57, {TCH}
        v_lshlrev_b32 v{t0}, 4, v{t3}
        v_lshl_add_u32 v{aT}, v{vg}, 3, v{t0}
        v_lshlrev_b32 v{t0}, 3, v{t3}
        v_add_u32 v{t0}, 512, v{t0}
        v_cmp_eq_u32 vcc, 2, v{vg}
        v_cndmask_b32 v{aT}, v{aT}, v{t0}, vcc
        v_lshlrev_b32 v{t0}, 2, v{t3}
        v_add_u32 v{t0}, 768, v{t0}
        v_cmp_eq_u32 vcc, 3, v{vg}
        v_cndmask_b32 v{aT}, v{aT}, v{t0}, vcc
        v_add_u32 v{aT}, s60, v{aT}
        v_mov_b32 v{t1}, 128
        v_cndmask_b32 v{t1}, 4, v{t1}, vcc
        v_add_u32 v{aT+1}, v{aT}, v{t1}
        v_lshlrev_b32 v{t0}, 1, v{t3}
        v_add_u32 v{t0}, 1024, v{t0}
        v_mov_b32 v{t1}, {2*648 - 192}
        v_cmp_eq_u32 vcc, 0, v{vg}
        v_cndmask_b32 v{aT+3}, v{t1}, v{t0}, vcc
        v_mov_b32 v{t1}, {2*648}
        v_cndmask_b32 v{aT+2}, v{t1}, v{t0}, vcc
        v_lshl_add_u32 v{t0}, v{t3}, 2, v{vg}
        v_mov_b32 v{t1}, 1280
        v_cmp_eq_u32 vcc, 1, v{t0}
        v_cndmask_b32 v{aT+2}, v{aT+2}, v{t1}, vcc
        v_add_u32 v{aT+2}, s60, v{aT+2}
        v_add_u32 v{aT+3}, s60, v{aT+3}
        s_mul_i32 s60, s57, {ECH}
        s_lshl_b32 s62, s58, 8
        s_add_u32 s62, s62, s60
        v_lshl_add_u32 v{vEw}, v{lane}, 2, s62
        v_mul_u32_u24 v{t0}, {ERS}, v{vi}
        v_lshl_add_u32 v{t0}, v{vg}, 4, v{t0}
        v_add_u32 v{vEr+1}, s60, v{t0}
        s_mul_i32 s62, s58, {16*ERS}
        v_add_u32 v{vEr}, s62, v{vEr+1}
        v_add_u32 v{vKW+1}, {KCH}, v{vKW}
        v_lshrrev_b32 v{vXo}, 1, v{lane}
        v_lshlrev_b32 v{vXw}, 4, v{vXo}
        v_lshlrev_b32 v{vXo}, 13, v{vXo}
        v_and_b32 v{t0}, 1, v{lane}
        v_lshl_add_u32 v{vXo}, v{t0}, 4, v{vXo}
        v_mul_u32_u24 v{t1}, {XCH}, v{t0}
        s_lshl_b32 s60, s{S_WAVE}, 10
        v_add3_u32 v{vXw}, v{vXw}, v{t1}, s60
        s_lshl_b32 s74, s{S_WAVE}, 19
        s_lshl_b32 s60, s59, 5
        s_add_u32 s74, s74, s60
        s_add_u32 s74, s74, {G.XNT}
        s_lshr_b32 s55, s59, 5
        s_and_b32 s55, s55, 3
        s_lshl_b32 s55, s55, 14
        s_add_u32 s55, s55, {G.XFLAG}
        v_lshlrev_b32 v{vLr}, 6, v0
        s_lshl_b32 s62, s58, 8
        v_and_b32 v{vA}, 7, v{vi}
        v_mul_u32_u24 v{vA}, {KCS}, v{vA}
        v_lshrrev_b32 v{t0}, 3, v{vi}
        v_sub_u32 v{t0}, v{t0}, v{vg}
        v_add_u32 v{t0}, 3, v{t0}
        v_lshl_add_u32 v{vA}, v{t0}, 4, v{vA}
        s_mul_i32 s75, s57, {KCH}
        s_add_u32 s75, s75, s62
        v_add_u32 v{vA}, s75, v{vA}
        v_lshlrev_b32 v{vB}, 5, v{vi}
        v_lshl_add_u32 v{vXe}, v{vg}, 3, v{vB}
        v_lshl_add_u32 v{vB}, v{vg}, 4, v{vB}
        s_mul_i32 s75, s57, {XCH}
        s_lshl_b32 s60, s58, 11
        s_add_u32 s60, s60, s75
        v_add_u32 v{vXe}, s60, v{vXe}
        s_sub_u32 s75, s75, s62
        s_add_u32 s75, s75, {XBL + 480 - 192}
        v_add_u32 v{vB}, s75, v{vB}
        v_lshlrev_b32 v{vSo}, 5, v{vi}
        v_lshrrev_b32 v{t0}, 1, v{vg}
        v_lshl_add_u32 v{vSo}, v{t0}, 4, v{vSo}
        v_and_b32 v{t0}, 1, v{vg}
        v_lshl_add_u32 v{vSo}, v{t0}, 9, v{vSo}
        s_lshl_b32 s56, s63, 12
        s_lshl_b32 s60, s58, 11
        s_add_u32 s56, s56, s60
        s_add_u32 s56, s56, {G.ST}""")
        p(f"""v_mov_b32 v{ZR}, 0
        v_mov_b32 v{ZR+1}, 0
        v_mov_b32 v{ZR+2}, 0
        v_mov_b32 v{ZR+3}, 0
        s_mul_i32 s75, s57, {XCH}
        v_lshl_add_u32 v{t0}, v{lane}, 3, s75
        ds_write_b64 v{t0}, {vr(ZR,2)} offset:{XBL}
        s_mul_i32 s75, s57, {TCH}
        v_mov_b32 v{t0}, s75
        ds_write_b128 v{t0}, {vr(ZR,4)} offset:{TT-16}""")
        lg.issue('z'); lg.issue('z')
    P = a(16, 2); D = a(16, 2); A1 = a(2, 2); A2 = a(2, 2); B1 = a(2, 2); B2 = a(2, 2); Z2 = a(); vC0 = a(); vM = a(); vR = a(); vSD = a()
    F = a(8, 2); Gr = a(16, 2)
    if cfg.bprio: p(f"s_setprio {cfg.bprio}")
    vm.wait('x')
    if cfg.parlate:
        par_loads()
        if cfg.touch == 1: touch2()
    stamp(p, 1)
    for q in range(4):
        p(f"""v_lshlrev_b32 v{P+4*q}, 16, v{XA+q}
        v_lshlrev_b32 v{P+4*q+1}, 16, v{XB+q}
        v_and_b32 v{P+4*q+2}, 0xffff0000, v{XA+q}
        v_and_b32 v{P+4*q+3}, 0xffff0000, v{XB+q}""")
        if q == 0: p(f"v_readfirstlane_b32 s64, v{P}\n v_readfirstlane_b32 s65, v{P+1}")
    G.make_tags(p, vgen)
    for c in range(16): p(f"v_subrev_f32 v{D+c}, s{64 + (c & 1)}, v{P+c}")
    for h in range(2):
        p(f"""v_add_f32 v{A1+h}, v{D+h}, v{D+2+h}
        v_add_f32 v{B1+h}, v{D+4+h}, v{D+6+h}
        v_mul_f32 v{A2+h}, v{D+h}, v{D+h}
        v_mul_f32 v{B2+h}, v{D+2+h}, v{D+2+h}""")
    for c in range(2, 8):
        for h in range(2):
            if c >= 4: p(f"v_add_f32 v{(A1 if c % 2 == 0 else B1)+h}, v{(A1 if c % 2 == 0 else B1)+h}, v{D+2*c+h}")
            p(f"v_fmac_f32 v{(A2 if c % 2 == 0 else B2)+h}, v{D+2*c+h}, v{D+2*c+h}")
    for h in range(2):
        p(f"v_add_f32 v{A1+h}, v{A1+h}, v{B1+h}\n v_add_f32 v{A2+h}, v{A2+h}, v{B2+h}")
    p(f"""v_mov_b32 v{vC0}, s64
    s_mov_b64 exec, s[70:71]
    v_mov_b32 v{vC0}, s65
    s_mov_b64 exec, -1""")
    G.reduce4(p, A1, A2, Z2)
    def sd_of(vvar_bf, vsd):
        p(f"""v_add_f32 v{t0}, {f32(1e-5)}, v{vvar_bf}
        v_cvt_pk_bf16_f32 v{t0}, v{t0}, v{t0}
        v_lshlrev_b32 v{t0}, 16, v{t0}
        v_sqrt_f32 v{t0}, v{t0}
        v_cvt_pk_bf16_f32 v{t0}, v{t0}, v{t0}
        v_lshlrev_b32 v{vsd}, 16, v{t0}""")
    p(f"""v_mul_f32 v{A1}, {f32(1/512)}, v{A1}
    v_mul_f32 v{Z2}, {f32(1/512)}, v{Z2}
    v_fma_f32 v{Z2}, -v{A1}, v{A1}, v{Z2}
    v_max_f32 v{Z2}, 0, v{Z2}
    v_add_f32 v{A1}, v{vC0}, v{A1}
    v_cvt_pk_bf16_f32 v{t1}, v{A1}, v{Z2}
    v_lshlrev_b32 v{vM}, 16, v{t1}
    v_and_b32 v{t1}, 0xffff0000, v{t1}""")
    sd_of(t1, vSD)
    p(f"""v_rcp_f32 v{vR}, v{vSD}
    v_sub_f32 v{t2}, v{A1}, v{vM}
    v_mul_f32 v{t3}, v{vM}, -v{vR}
    v_readlane_b32 s68, v{vR}, 0
    v_readlane_b32 s69, v{vR}, 16
    v_readlane_b32 s66, v{t3}, 0
    v_readlane_b32 s67, v{t3}, 16
    v_mul_f32 v{t2}, v{t2}, v{vR}
    v_mul_f32 v{Z2}, v{Z2}, v{vR}
    v_mul_f32 v{Z2}, v{Z2}, v{vR}
    v_mov_b32 v{B1}, s66
    v_mov_b32 v{B1+1}, s67""")
    for c in range(16): p(f"v_fma_f32 v{D+c}, v{P+c}, s{68 + (c & 1)}, v{B1 + (c & 1)}")
    for c in range(8): p(f"v_cvt_pk_f16_f32 v{F+c}, v{D+2*c}, v{D+2*c+1}")
    p(f"""ds_write_b128 v{vLw}, {vr(F,4)}
    ds_write_b128 v{vLw}, {vr(F+4,4)} offset:16
    v_cvt_pk_bf16_f32 v{t1}, v{t2}, v{Z2}
    v_lshlrev_b32 v{B2}, 16, v{t1}
    v_and_b32 v{t1}, 0xffff0000, v{t1}""")
    sd_of(t1, B2 + 1)
    p(f"""v_fma_f32 v{t0}, -v{B2}, v{vSD}, -v{vM}
    v_mul_f32 v{t1}, v{vSD}, v{B2+1}
    v_cvt_pk_bf16_f32 v{Gr}, v{t0}, v{t0}
    v_cvt_pk_bf16_f32 v{t2}, v{t1}, v{t1}
    v_and_b32 v{t3}, 0xffff0000, v{Gr}
    v_sub_f32 v{t0}, v{t0}, v{t3}
    v_and_b32 v{t3}, 0xffff0000, v{t2}
    v_sub_f32 v{t2}, v{t1}, v{t3}
    v_cvt_pk_bf16_f32 v{Gr+1}, v{t0}, v{t1}
    v_cvt_pk_bf16_f32 v{Gr+2}, v{t2}, 0
    v_mov_b32 v{Gr+3}, s{S_TAGA}
    v_lshlrev_b32 v{t0}, 4, v{vg}
    s_lshl_b32 s60, s61, 4
    s_add_u32 s60, s60, {G.AB}
    s_mov_b64 exec, 0x10001
    buffer_store_dwordx4 {vr(Gr,4)}, v{t0}, s[4:7], s60 offen sc1
    s_mov_b64 exec, -1
    s_waitcnt lgkmcnt(0)
    s_barrier""")
    vm.issue('st'); lg.done = len(lg.ops)
    if cfg.bcut == 1:
        p("s_endpgm"); return V.hi_used
    G2 = P
    for i in range(2):
        p(f"ds_read2st64_b32 {vr(G2+4*i,2)}, v{vLr} offset0:{i*4} offset1:{i*4 + 8}")
        p(f"ds_read2st64_b32 {vr(G2+4*i+2,2)}, v{vLr} offset0:{i*4 + 16} offset1:{i*4 + 24}")
    p(f"""s_lshl_b32 s60, s53, 13
    s_add_u32 s60, s60, {G.XNT}
    s_add_u32 s62, s60, 4096""")
    for i in range(2):
        p(f"s_waitcnt lgkmcnt({2-2*i})")
        p(f"buffer_store_dwordx4 {vr(G2+4*i,4)}, v{vKW}, s[4:7], s{60+2*i} offen sc1"); vm.issue('st')
    stamp(p, 2)
    for r, n in ((D, 16), (A1, 2), (A2, 2), (B1, 2), (B2, 2), (Z2, 1), (vC0, 1), (vM, 1), (vR, 1), (vSD, 1), (F, 8), (Gr, 16), (XA, 4), (XB, 4)): V.free(r, n)
    if cfg.bcut == 2:
        p("s_endpgm"); return V.hi_used
    vm.wait('par')
    if cfg.touch == 2: touch2()
    if cfg.bprio: p('s_setprio 0')
    warm = deque()
    if cfg.warm:
        DUM = DUMH
        srd(p, 12, 12, 1792 * 1024)
        p(f"""s_lshr_b32 s54, s2, 3
        s_lshl_b32 s54, s54, 2
        s_add_u32 s54, s54, s{S_WAVE}
        s_mul_i32 s54, s54, {14*1024}""")
        for i in range(14):
            def f(i=i):
                if i and i % 4 == 0: p("s_add_u32 s54, s54, 4096")
                p(f"buffer_load_dwordx4 {vr(DUM+4*(i&3),4)}, v{vL16}, s[12:15], s54 offen offset:{(i%4)*1024}"); vm.issue('warm')
            warm.append(f)
    if cfg.bcut == 3:
        p("s_endpgm"); return V.hi_used
    vdt = a(); a2 = a(); b2 = a(); C = a(2)
    p(f"""v_lshlrev_b32 v{vdt}, 16, v{vLd}
    v_mul_f32 v{vdt}, {f32(LOG2E)}, v{vdt}
    v_exp_f32 v{vdt}, v{vdt}
    v_lshlrev_b32 v{vDk}, 16, v{vDk}""")
    for k in range(6): p(f"v_lshlrev_b32 v{PR+k}, 16, v{PR+k}")
    for k in range(4): p(f"v_lshlrev_b32 v{PQ+k}, 16, v{PQ+k}")
    p(f"""v_cvt_pk_bf16_f32 v{vdt}, v{vdt}, v{vdt}
    v_lshlrev_b32 v{vdt}, 16, v{vdt}
    v_mul_f32 v{C}, v{PR+4}, v{PR+2}
    v_mul_f32 v{C+1}, v{PR+4}, v{PR+3}
    v_mul_f32 v{t0}, v{PQ+2}, v{PQ}
    v_mul_f32 v{t1}, v{PQ+2}, v{PQ+1}
    v_fma_f32 v{C}, -v{PR+5}, v{PR+3}, v{C}
    v_fma_f32 v{C+1}, v{PR+5}, v{PR+2}, v{C+1}
    v_fma_f32 v{t0}, -v{PQ+3}, v{PQ+1}, v{t0}
    v_fma_f32 v{t1}, v{PQ+3}, v{PQ}, v{t1}
    v_mul_f32 v{a2}, v{vdt}, v{PR}
    v_mul_f32 v{b2}, v{vdt}, v{PR+1}
    v_max_f32 v{t0}, |v{t0}|, |v{t1}|
    v_max3_f32 v{t0}, |v{C}|, |v{C+1}|, v{t0}
    v_mul_f32 v{a2}, {f32(LOG2E)}, v{a2}
    v_mul_f32 v{b2}, {f32(1/(2*math.pi))}, v{b2}
    v_max_f32_dpp v{t0}, v{t0}, v{t0} quad_perm:[1,0,3,2] row_mask:0xf bank_mask:0xf""")
    AN = {1: a(2), 8: a(2), 64: a(2), 256: a(2)}
    red = deque([f"v_max_f32_dpp v{t0}, v{t0}, v{t0} quad_perm:[2,3,0,1] row_mask:0xf bank_mask:0xf",
           f"v_max_f32_dpp v{t0}, v{t0}, v{t0} row_half_mirror row_mask:0xf bank_mask:0xf",
           f"v_max_f32_dpp v{t0}, v{t0}, v{t0} row_mirror row_mask:0xf bank_mask:0xf",
           f"v_max_f32_dpp v{t0}, v{t0}, v{t0} row_bcast:15 row_mask:0xa bank_mask:0xf",
           f"v_max_f32_dpp v{t0}, v{t0}, v{t0} row_bcast:31 row_mask:0xc bank_mask:0xf",
           f"v_frexp_exp_i32_f32 v{t0}, v{t0}",
           f"v_readlane_b32 s72, v{t0}, 63\n s_sub_u32 s73, 0, s72"])
    W_ = a(8)
    ks = [8, 64, 1, 256]
    for j, tt in enumerate(ks):
        p(f"v_mul_f32 v{W_+2*j}, {f32(float(tt))}, v{a2}\n v_mul_f32 v{W_+2*j+1}, {f32(float(tt))}, v{b2}"); p(red.popleft())
    for j, tt in enumerate(ks): p(f"v_fract_f32 v{W_+2*j+1}, v{W_+2*j+1}")
    p(red.popleft())
    for j, tt in enumerate(ks):
        p(f"v_exp_f32 v{W_+2*j}, v{W_+2*j}\n v_cos_f32 v{AN[tt]}, v{W_+2*j+1}\n v_sin_f32 v{AN[tt]+1}, v{W_+2*j+1}")
        if red: p(red.popleft())
    for j, tt in enumerate(ks):
        p(f"v_mul_f32 v{AN[tt]}, v{AN[tt]}, v{W_+2*j}\n v_mul_f32 v{AN[tt]+1}, v{AN[tt]+1}, v{W_+2*j}")
    assert not red
    p(f"""v_ldexp_f32 v{C}, v{C}, s73
    v_ldexp_f32 v{C+1}, v{C+1}, s73
    v_ldexp_f32 v{vdt}, v{vdt}, s72
""")
    V.free(W_, 8); V.free(PR, 6); V.free(PQ, 4)
    def xflag():
        vm.wait('st')
        p(f"""v_mov_b32 v{t2}, s{S_TAGA}
        v_mov_b32 v{t3}, s{S_TAGB}
        s_lshl_b32 s60, s{S_WAVE}, 8
        s_add_u32 s60, s60, s53
        s_lshl_b32 s60, s60, 6
        s_add_u32 s60, s60, {G.XFLAG}
        v_mov_b32 v{t1}, 0
        s_mov_b64 exec, 1
        buffer_store_dwordx2 {vr(t2,2)}, v{t1}, s[4:7], s60 offen sc1
        s_mov_b64 exec, -1""")
    NCV = 52 if cfg.defer else 4
    CV = a(NCV); cvi = [0]; later = []
    def emit_slot(row, r, conj):
        c = CV + (cvi[0] % NCV); cvi[0] += 1
        p(f"v_cvt_pk_f16_f32 v{c}, v{r}, {'-' if conj else ''}v{r+1}")
        w_ = f"ds_write_b32 v{vEw}, v{c} offset:{EI + row*ERS}"
        if cfg.defer: later.append(w_)
        else: p(w_)
        if cfg.warm == 1 and warm and cvi[0] % 3 == 0: warm.popleft()()
    def cmul_group(items):
        for d, x, y in items: p(f"v_mul_f32 v{d}, v{x}, v{y}\n v_mul_f32 v{d+1}, v{x}, v{y+1}")
        for d, x, y in items: p(f"v_fma_f32 v{d}, -v{x+1}, v{y+1}, v{d}\n v_fma_f32 v{d+1}, v{x+1}, v{y}, v{d+1}")
    Pw = {1: AN[8]}; Qw = {1: AN[64]}
    for i in range(2, 8): Pw[i] = a(2)
    for i in (2, 3): Qw[i] = a(2)
    Gv = {0: C}
    for j in range(1, 8): Gv[j] = a(2)
    Hv = [a(2), a(2)]; Iv = [a(2), a(2)]; TP = [a(2) for _ in range(4)]
    LROW = lambda idx: 32 + idx
    E1, E256 = AN[1], AN[256]
    emit_slot(1, Pw[1], False); emit_slot(8, Qw[1], False); emit_slot(LROW(0), C, True)
    cmul_group([(Pw[2], Pw[1], Pw[1]), (Qw[2], Qw[1], Qw[1]), (Gv[1], C, E1), (Hv[0], C, E256)])
    emit_slot(2, Pw[2], False); emit_slot(16, Qw[2], False); emit_slot(LROW(1), Gv[1], True); emit_slot(LROW(8), Hv[0], True)
    cmul_group([(Pw[3], Pw[2], Pw[1]), (Pw[4], Pw[2], Pw[2]), (Qw[3], Qw[2], Qw[1]), (Gv[2], Gv[1], E1), (Hv[1], Hv[0], E256)])
    emit_slot(3, Pw[3], False); emit_slot(4, Pw[4], False); emit_slot(24, Qw[3], False); emit_slot(LROW(2), Gv[2], True); emit_slot(LROW(12), Hv[1], True)
    cmul_group([(Pw[5], Pw[4], Pw[1]), (Pw[6], Pw[4], Pw[2]), (Pw[7], Pw[4], Pw[3]), (Gv[3], Gv[2], E1), (Hv[0], Hv[1], E256)])
    emit_slot(5, Pw[5], False); emit_slot(6, Pw[6], False); emit_slot(7, Pw[7], False); emit_slot(LROW(3), Gv[3], True); emit_slot(LROW(14), Hv[0], True)
    xflag()
    prods = deque([(i1, i0) for i1 in (1, 2, 3) for i0 in range(1, 8)])
    hcur = 0; hrows = deque([16, 17, 18, 19, 20]); gnext = 4; icur = None; irows = deque([10, 13, 15]); extra = deque([(2, 9), (6, 11)])
    while prods or hrows or gnext < 8 or irows or extra:
        items = []; outs = []; tp = 0
        if gnext < 8:
            items.append((Gv[gnext], Gv[gnext - 1], E1)); outs.append((LROW(gnext), Gv[gnext], True)); gnext += 1
        if hrows:
            items.append((Hv[1 - hcur], Hv[hcur], E256)); outs.append((LROW(hrows.popleft()), Hv[1 - hcur], True)); hcur = 1 - hcur
        if irows and gnext > 5:
            src = Gv[4] if icur is None else Iv[icur]; ni = 0 if icur is None else 1 - icur
            items.append((Iv[ni], src, E256)); outs.append((LROW(irows.popleft()), Iv[ni], True)); icur = ni
        if extra and gnext > extra[0][0] + 1:
            j, row = extra.popleft(); items.append((TP[tp], Gv[j], E256)); outs.append((LROW(row), TP[tp], True)); tp += 1
        while prods and tp < 4 and len(items) < 5:
            i1, i0 = prods.popleft(); items.append((TP[tp], Pw[i0], Qw[i1])); outs.append((8 * i1 + i0, TP[tp], False)); tp += 1
        cmul_group(items)
        for o in outs: emit_slot(*o)
    while cfg.warm == 1 and warm: warm.popleft()()
    for d in list(Pw.values()) + list(Qw.values()) + list(Gv.values()) + Hv + Iv + TP + [E1, E256]: V.free(d, 2)
    if cfg.bcut == 4:
        p("s_endpgm"); return V.hi_used
    late_consts()
    p(f"v_mov_b32 v{t0}, 0x3c00\n ds_write_b32 v{vEw}, v{t0} offset:{EI}")
    for wi, w_ in enumerate(later):
        p(w_)
        if cfg.warm == 3 and warm and wi % 3 == 0: warm.popleft()()
    V.free(CV, NCV); V.free(a2); V.free(b2); V.free(P, 16)
    if cfg.bcut == 5:
        p("s_endpgm"); return V.hi_used
    XG = a(8, 4); XFL = a(2, 2)
    p(f"buffer_load_dwordx2 {vr(XFL,2)}, v{vLr}, s[4:7], s55 offen sc1")
    def xcheck():
        p(f"""s_mov_b32 s62, 0
L_b_poll:
        s_waitcnt vmcnt(0)
        v_xor_b32 v{t0}, s{S_TAGA}, v{XFL}
        v_xor_b32 v{t1}, s{S_TAGB}, v{XFL+1}
        v_or_b32 v{t0}, v{t0}, v{t1}
        v_cmp_ne_u32 vcc, 0, v{t0}
        s_add_u32 s62, s62, 1
        s_cmp_eq_u64 vcc, 0
        s_cbranch_scc1 L_b_got
        s_cmp_ge_u32 s62, {G.SPIN_MAX}
        s_cbranch_scc1 L_b_got
        s_sleep 1
        buffer_load_dwordx2 {vr(XFL,2)}, v{vLr}, s[4:7], s55 offen sc1
        s_branch L_b_poll
L_b_got:
        s_add_u32 s60, s74, {1 << 18}
        buffer_load_dwordx4 {vr(XG,4)}, v{vXo}, s[4:7], s74 offen sc1
        buffer_load_dwordx4 {vr(XG+4,4)}, v{vXo}, s[4:7], s60 offen sc1""")
    p("s_waitcnt lgkmcnt(0)\n s_barrier"); lg.done = len(lg.ops)
    stamp(p, 3)
    ACC = a(8, 4); FR = a(96, 4)
    for ks_ in range(8):
        p(f"ds_read_b128 {vr(FR+12*ks_,4)}, v{vEr} offset:{EI + ks_*64}")
        p(f"ds_read_b128 {vr(FR+12*ks_+4,4)}, v{vEr+1} offset:{EI + 32*ERS + ks_*64}")
        p(f"ds_read_b128 {vr(FR+12*ks_+8,4)}, v{vEr+1} offset:{EI + 48*ERS + ks_*64}")
        for _ in range(3): lg.issue(('e', ks_))
        if ks_ >= 3:
            k2 = ks_ - 3
            lg.wait(('e', k2))
            for tl in range(2):
                c = vr(ACC + 4 * tl, 4) if k2 else '0'
                p(f"v_mfma_f32_16x16x32_f16 {vr(ACC+4*tl,4)}, {vr(FR+12*k2+4+4*tl,4)}, {vr(FR+12*k2,4)}, {c}")
    for k2 in range(5, 8):
        lg.wait(('e', k2))
        for tl in range(2):
            p(f"v_mfma_f32_16x16x32_f16 {vr(ACC+4*tl,4)}, {vr(FR+12*k2+4+4*tl,4)}, {vr(FR+12*k2,4)}, {vr(ACC+4*tl,4)}")
    p(f"""v_cvt_pk_f16_f32 v{FR}, v{ACC}, v{ACC+1}
    v_cvt_pk_f16_f32 v{FR+1}, v{ACC+2}, v{ACC+3}
    v_cvt_pk_f16_f32 v{FR+2}, v{ACC+4}, v{ACC+5}
    v_cvt_pk_f16_f32 v{FR+3}, v{ACC+6}, v{ACC+7}
    ds_write_b32 v{aT}, v{FR} offset:{TT}
    ds_write_b32 v{aT+1}, v{FR+1} offset:{TT}
    ds_write_b16 v{aT+2}, v{FR+2} offset:{TT}
    s_mov_b64 exec, 0xffff
    ds_write_b16_d16_hi v{aT+3}, v{FR+2} offset:{TT+64}
    ds_write_b16 v{aT+3}, v{FR+3} offset:{TT+128}
    ds_write_b16_d16_hi v{aT+3}, v{FR+3} offset:{TT+192}
    s_mov_b64 exec, -1
    s_waitcnt lgkmcnt(0)
    s_barrier""")
    lg.done = len(lg.ops)
    V.free(ACC, 8); V.free(FR, 96); V.free(aT, 4)
    xcheck()
    WS_ = [[a(8, 2), a(9, 2), a(8, 2), a(9, 2)] for _ in range(2)]; EL = [a(15), a(15)]
    for ch in range(2):
        for e in range(15):
            p(f"ds_read_u16 v{EL[ch] + e}, v{GA+e} offset:{TT + ch*TCH}"); lg.issue(('el', ch))
    p(f"""v_mul_u32_u24 v{t0}, {KCS}, v{vi}
    ds_write_b128 v{t0}, {vr(ZR,4)} offset:{KC}""")
    lg.issue('z2')
    for ch in range(2):
        el = EL[ch]; W0, W1, S0, S1 = WS_[ch]
        lg.wait(('el', ch))
        def wr(s_):
            if s_ & 1: o = (7 - s_) // 2; e_, o_ = W0, W1
            else: o = (6 - s_) // 2; e_, o_ = S0, S1
            src = e_ + o if o % 2 == 0 else o_ + 1 + o
            p(f"ds_write_b128 v{vKW+ch}, {vr(src,4)} offset:{KC + s_*KCS + 16}"); lg.issue('kw')
            if cfg.warm == 2 and warm: warm.popleft()()
        for q in range(6): p(f"v_lshl_or_b32 v{W0+q}, v{el+2*q+1}, 16, v{el+2*q}")
        wr(7); wr(3)
        for q in range(6): p(f"v_lshl_or_b32 v{S0+q}, v{el+2*q+2}, 16, v{el+2*q+1}")
        wr(6); wr(2)
        for q in range(1, 7): p(f"v_lshl_or_b32 v{W1+1+q}, v{el+2*q+1}, 16, v{el+2*q}")
        wr(5); wr(1)
        for q in range(1, 7): p(f"v_lshl_or_b32 v{S1+1+q}, v{el+2*q+2}, 16, v{el+2*q+1}")
        wr(4); wr(0)
    for ch in range(2):
        for r, n in zip(WS_[ch], (8, 9, 8, 9)): V.free(r, n)
        V.free(EL[ch], 15)
    V.free(GA, 15)
    stamp(p, 4)
    if cfg.bcut == 6:
        p("s_endpgm"); return V.hi_used
    p("s_waitcnt vmcnt(0)")
    for i in range(2): p(f"ds_write_b128 v{vXw}, {vr(XG+4*i,4)} offset:{XBL + 512 + i*512}")
    V.free(XG, 8)
    p("s_waitcnt lgkmcnt(0)\n s_barrier"); lg.done = len(lg.ops)
    stamp(p, 5)
    if cfg.dumpK:
        Dm = a(4, 4)
        for ch in range(2):
            p(f"""ds_read_b128 {vr(Dm,4)}, v{vKW+ch} offset:{KC + 7*KCS + 16}
            s_lshl_b32 s60, s59, 13
            s_add_u32 s60, s60, {G.DBG + ch*4096}
            s_waitcnt lgkmcnt(0)
            buffer_store_dwordx4 {vr(Dm,4)}, v{vKW}, s[4:7], s60 offen
            s_waitcnt vmcnt(0)""")
        p(f"""s_lshl_b32 s60, s63, 2
        s_add_u32 s60, s60, {G.DBG + 0x400000}
        v_mov_b32 v{Dm+1}, 0
        buffer_store_dword v{vdt}, v{Dm+1}, s[4:7], s60 offen
        s_waitcnt vmcnt(0)""")
        V.free(Dm, 4)
    CA = a(32, 4); FA = [a(32, 4), a(32, 4)]; FB = [a(32, 4), a(32, 4)]; XN = a(8, 2)
    def rds(rr):
        out = []
        for k in range(8):
            def fa(k=k): p(f"ds_read_b128 {vr(FA[rr&1]+4*k,4)}, v{vA} offset:{KC + rr*64 + k*512}"); lg.issue(('f', rr, k))
            def fb(k=k): p(f"ds_read_b128 {vr(FB[rr&1]+4*k,4)}, v{vB} offset:{192 - rr*64 + k*512}"); lg.issue(('f', rr, k))
            out += [fa, fb]
        return out
    pairs = sorted([(aa, bb) for aa in range(8) for bb in range(8 - aa)], key=lambda t: (max(t), t[0] + t[1]))
    q_ = deque(rds(0))
    for _ in range(8): q_.popleft()()
    seen = set()
    for rr in range(4):
        if rr < 3: nxt = deque(rds(rr + 1))
        else:
            nxt = deque()
            for k in range(4):
                def fx(k=k): p(f"ds_read_b64 {vr(XN+2*k,2)}, v{vXe} offset:{XBL + 512 + k*512}"); lg.issue('xn')
                nxt.append(fx)
        for n_, (aa, bb) in enumerate(pairs):
            m_ = max(aa, bb)
            while lg.ops.count(('f', rr, m_)) < 2: q_.popleft()()
            lg.wait(('f', rr, m_))
            J = aa + bb
            c = vr(CA + 4 * J, 4) if J in seen else '0'
            seen.add(J)
            p(f"v_mfma_f32_16x16x32_f16 {vr(CA+4*J,4)}, {vr(FA[rr&1]+4*aa,4)}, {vr(FB[rr&1]+4*bb,4)}, {c}")
            if cfg.warm == 4 and warm and n_ % 3 == 0: warm.popleft()()
            if q_: q_.popleft()()
            elif nxt and n_ % 2 == 1 and n_ >= 4: nxt.popleft()()
        q_ = nxt
    while q_: q_.popleft()()
    stamp(p, 6)
    p(f"""s_lshl_b32 s60, s{S_WAVE}, 12
    v_add_u32 v{t1}, s60, v{vL16}
    s_xor_b32 s60, s60, 4096
    v_add_u32 v{t2}, s60, v{vL16}
    s_cmp_eq_u32 s58, 0
    s_barrier
    s_cbranch_scc1 L_b_e0""")
    for k in range(4): p(f"ds_write_b128 v{t1}, {vr(CA+4*k,4)} offset:{KC+k*1024}")
    for k in range(16): p(f"v_mov_b32 v{CA+k}, v{CA+16+k}")
    p("s_branch L_b_e1\nL_b_e0:")
    for k in range(4): p(f"ds_write_b128 v{t1}, {vr(CA+16+4*k,4)} offset:{KC+k*1024}")
    p("L_b_e1:\n s_waitcnt lgkmcnt(4)")
    for k in range(4):
        for r in range(4):
            p(f"v_fma_mix_f32 v{FB[1]+4*k+r}, v{XN+2*k+(r>>1)}, v{vDk}, 0 op_sel:[{r&1},0,0] op_sel_hi:[1,0,0]")
    O = FA[0]; GG = FB[0]
    p("s_waitcnt lgkmcnt(0)\n s_barrier")
    for k in range(4): p(f"ds_read_b128 {vr(O+4*k,4)}, v{t2} offset:{KC+k*1024}")
    for k in range(4):
        p(f"s_waitcnt lgkmcnt({3-k})")
        for r in range(4): p(f"v_add_f32 v{CA+4*k+r}, v{CA+4*k+r}, v{O+4*k+r}")
        for r in range(4): p(f"v_fma_f32 v{CA+4*k+r}, v{CA+4*k+r}, v{vdt}, v{FB[1]+4*k+r}")
        for h in range(2): p(f"v_cvt_pk_bf16_f32 v{GG+2*k+h}, v{CA+4*k+2*h}, v{CA+4*k+2*h+1}")
        if k & 1:
            g_ = GG + 2 * (k - 1)
            p(f"v_permlane16_swap_b32 v{g_}, v{g_+2}\n v_permlane16_swap_b32 v{g_+1}, v{g_+3}")
            p(f"buffer_store_dwordx4 {vr(g_,4)}, v{vSo}, s[4:7], s56 offen offset:{(k>>1)*1024} sc1")
    p(f"""v_mov_b32 v{t2}, s{S_TAGA}
    v_mov_b32 v{t3}, s{S_TAGB}
    s_lshl_b32 s60, s63, 1
    s_add_u32 s60, s60, s58
    s_lshl_b32 s60, s60, 6
    s_add_u32 s60, s60, {G.SFLAG}
    v_mov_b32 v{t1}, 0
    s_waitcnt vmcnt(0)
    s_mov_b64 exec, 1
    buffer_store_dwordx2 {vr(t2,2)}, v{t1}, s[4:7], s60 offen sc1
    s_mov_b64 exec, -1""")
    stamp(p, 7)
    p(f"""s_or_b32 s60, s2, s{S_WAVE}
    s_cmp_lg_u32 s60, 0
    s_cbranch_scc1 L_b_done""")
    if cfg.only != 'B':
        FL = FA[1]
        p(f"""v_lshlrev_b32 v{t3}, 8, v{lane}
        s_mov_b32 s62, 0
L_b_gpoll:""")
        for i in range(4):
            p(f"s_mov_b32 s60, {G.HFLAG + i*16384}\n buffer_load_dwordx2 {vr(FL+2*i,2)}, v{t3}, s[4:7], s60 offen sc1")
        p(f"s_waitcnt vmcnt(0)\n v_mov_b32 v{t0}, 0")
        for i in range(4):
            p(f"""v_xor_b32 v{t1}, s{S_TAGA}, v{FL+2*i}
            v_xor_b32 v{t2}, s{S_TAGB}, v{FL+2*i+1}
            v_or3_b32 v{t0}, v{t0}, v{t1}, v{t2}""")
        p(f"""v_cmp_ne_u32 vcc, 0, v{t0}
        s_add_u32 s62, s62, 1
        s_cmp_eq_u64 vcc, 0
        s_cbranch_scc1 L_b_gok
        s_cmp_ge_u32 s62, {G.SPIN_MAX}
        s_cbranch_scc1 L_b_gok
        s_sleep 8
        s_branch L_b_gpoll
L_b_gok:""")
    p(f"""v_mov_b32 v{t0}, s{S_TAGA}
    v_mov_b32 v{t1}, 0
    s_mov_b64 exec, 1
    buffer_store_dword v{t0}, v{t1}, s[4:7], 0 offen offset:{G.GEN}
    s_mov_b64 exec, -1
L_b_done:""")
    G.stamps_out(p, 8, CA)
    p("s_endpgm")
    return V.hi_used
```

```python
import sys, math, struct
from asmlib import *

NAME = "recurrent_scan__ssm_conv_s4__mixer_channel_mlp__prompt"
GEN = 0; HFLAG = 0x1000; HFLAG1 = 0x10000; AB = 0x30000; CF = 0x40000; WFLAG = 0x50000; XFLAG = 0x60000; SFLAG = 0x70000; W2P = 0x1200000; XNT = 0x100000; ST = 0x300000; HB = 0x500000
DBG = 0x2000000; TSB = 0x3000000
LDS_BYTES = 81920
SPIN_MAX = 200000

def f32(x): return '0x%08x' % struct.unpack('<I', struct.pack('<f', x))[0]
LOG2E = 1.4426950408889634

class Cfg:
    ts = False
    dumpK = False
    only = None
    bdelay = 0; tlb = 0; parlate = 1; wd = 1; mvg = 0; nm2 = 4; km2 = 4; nh1 = 4; g1lo = 10; emv = 0; gdm = 8; nosc = 0; nomf = 0; now2 = 0; noh = 0; rot2 = 1; nh0 = 4; fine2 = 0; touch1 = 0; touch = 1; w2late = 0; bcut = 0; bprio = 3; cpf = 1; wpi = 38; wpc = 44; defer = 1; warm = 0; nopk = 1; nxp = 3; prio = 2; fl0 = 52; p0i = 80; p0c = 50; kfl1 = 2; ks = 22; fine = 0; gstart = 36; glo = 12; kpoll = 9; exact = 0; rot = 1; nkr = 12; nodma = 0; nobounce = 0; nogelu = 0; nobar = 0; cyc = 0; dbgts = 0; ni = 0
cfg = Cfg()

S_WAVE = 3
S_WS = 4
PTR = lambda i: 16 + 2 * i
S_TAGA, S_TAGB = 50, 51

def srd(p, s, ptr_idx, nbytes):
    p(f"""s_mov_b32 s{s}, s{PTR(ptr_idx)}
    s_mov_b32 s{s+1}, s{PTR(ptr_idx)+1}
    s_mov_b32 s{s+2}, {nbytes}
    s_mov_b32 s{s+3}, 0x20000""")

ts_count = [0]
def stamp(p, k):
    if cfg.ts: p(f"{'s_memtime' if cfg.cyc else 's_memrealtime'} s[{80+2*k}:{81+2*k}]")
def stamps_out(p, n, vt):
    if not cfg.ts: return
    if cfg.dbgts:
        lab = 'L_dbg%d' % len(p.ins)
        p(f"""s_waitcnt lgkmcnt(0)
        s_and_b32 s76, s2, 255
        s_cmp_lg_u32 s76, {cfg.dbgts - 1}
        s_cbranch_scc1 {lab}
        s_mov_b32 s76, s46
        s_mov_b32 s77, s47
        s_mov_b32 s78, 256
        s_mov_b32 s79, 0x20000
        s_lshr_b32 s75, s2, 8
        s_lshl_b32 s75, s75, 5
        v_mov_b32 v{vt+4}, 0
        v_cmp_eq_u32 vcc, 0, v0
        s_and_saveexec_b64 s[72:73], vcc""")
        for k in range(0, 8, 4):
            for j in range(4): p(f"v_mov_b32 v{vt+j}, s{80+2*(k+j)}")
            p(f"buffer_store_dwordx4 {vr(vt,4)}, v{vt+4}, s[76:79], s75 offen offset:{k*4}\n s_nop 2")
        p(f"s_mov_b64 exec, s[72:73]\n{lab}:")
        return
    p(f"""s_waitcnt lgkmcnt(0)
    v_cmp_eq_u32 vcc, 0, v0
    s_and_saveexec_b64 s[76:77], vcc
    s_lshl_b32 s78, s2, 4
    v_mov_b32 v{vt+4}, s78""")
    for k in range(n - 1):
        p(f"""v_mov_b32 v{vt}, s{80+2*k}
        v_mov_b32 v{vt+1}, s{81+2*k}
        v_mov_b32 v{vt+2}, s{82+2*k}
        v_mov_b32 v{vt+3}, s{83+2*k}
        s_mov_b32 s78, {TSB + k*0x10000}
        buffer_store_dwordx4 {vr(vt,4)}, v{vt+4}, s[4:7], s78 offen
        s_nop 2""")
    p("s_mov_b64 exec, s[76:77]")

def make_tags(p, vgen):
    p(f"""v_readfirstlane_b32 s{S_TAGA}, v{vgen}
    s_mul_i32 s{S_TAGA}, s{S_TAGA}, 0x9E3779B1
    s_add_u32 s{S_TAGA}, s{S_TAGA}, 0x7F4A7C15
    s_xor_b32 s{S_TAGB}, s{S_TAGA}, 0x5bd1e995""")

def reduce4(p, A1, A2, Z2):
    p(f"""v_permlane16_swap_b32 v{A1}, v{A1+1}
    v_permlane16_swap_b32 v{A2}, v{A2+1}
    v_add_f32 v{A1}, v{A1}, v{A1+1}
    v_add_f32 v{A2}, v{A2}, v{A2+1}
    v_permlane32_swap_b32 v{A1}, v{A2}
    v_add_f32 v{A1}, v{A1}, v{A2}
    v_add_f32_dpp v{A1}, v{A1}, v{A1} quad_perm:[1,0,3,2] row_mask:0xf bank_mask:0xf
    v_add_f32_dpp v{A1}, v{A1}, v{A1} quad_perm:[2,3,0,1] row_mask:0xf bank_mask:0xf
    v_add_f32_dpp v{A1}, v{A1}, v{A1} row_half_mirror row_mask:0xf bank_mask:0xf
    v_add_f32_dpp v{A1}, v{A1}, v{A1} row_mirror row_mask:0xf bank_mask:0xf
    v_mov_b32 v{Z2}, v{A1}
    v_permlane32_swap_b32 v{A1}, v{Z2}""")

XBL = 0; XCH = 4608
TT = 9216 + 16; TCH = 1344
KC = 12288; KCS = 4160; KCH = 8 * KCS
LNB = KC
PT = KC + 8192
PX = KC + 16384

def role_B(p, vgen):
    V = Regs('v', 4, 256)
    lane = 1
    a = V.alloc
    vL16 = a(); XA = a(4, 2); XB = a(4, 2); PR = a(6); vLd = a(); vDk = a(); t0 = a(); t1 = a(); t2 = a(); t3 = a()
    srd(p, 8, 0, 2048 * 1024)
    p(f"""s_lshl_b32 s61, s2, 3
    s_lshl_b32 s62, s{S_WAVE}, 1
    s_add_u32 s61, s61, s62
    s_lshl_b32 s62, s61, 10
    v_lshlrev_b32 v{vL16}, 4, v{lane}
    buffer_load_dwordx4 {vr(XA,4)}, v{vL16}, s[8:11], s62 offen
    buffer_load_dwordx4 {vr(XB,4)}, v{vL16}, s[8:11], s62 offen offset:1024
    s_lshr_b32 s63, s{S_WAVE}, 1
    s_lshl_b32 s60, s2, 1
    s_add_u32 s63, s63, s60
    s_lshl_b32 s60, s63, 8
    v_lshl_add_u32 v{t0}, v{lane}, 2, s60
    s_lshl_b32 s60, s63, 1
    v_mov_b32 v{t1}, s60""")
    for k in range(6):
        p(f"global_load_dword v{PR+k}, v{t0}, {sr(PTR(1+k),2)}")
    p(f"global_load_ushort v{vLd}, v{t1}, {sr(PTR(7),2)}")
    p(f"global_load_ushort v{vDk}, v{t1}, {sr(PTR(8),2)}")
    vi = a(); vg = a(); tB = a(2, 2); tA = a(6, 2)
    p(f"""v_and_b32 v{vi}, 15, v{lane}
    v_lshrrev_b32 v{vg}, 4, v{lane}
    v_lshlrev_b32 v{t0}, 4, v{vi}
    v_cvt_f32_u32 v{tB}, v{t0}
    v_cvt_f32_u32 v{tA}, v{vi}
    v_lshlrev_b32 v{t0}, 1, v{vi}
    v_add_u32 v{t0}, 256, v{t0}
    v_bfe_u32 v{t1}, v{vi}, 2, 1
    v_lshlrev_b32 v{t1}, 8, v{t1}
    v_and_b32 v{t2}, 3, v{vi}
    v_lshl_add_u32 v{t1}, v{t2}, 2, v{t1}
    v_add_u32 v{t1}, 512, v{t1}
    v_cmp_gt_u32 vcc, 8, v{vi}
    v_cndmask_b32 v{t0}, v{t1}, v{t0}, vcc
    v_cvt_f32_u32 v{tA+2}, v{t0}
    v_lshrrev_b32 v{t0}, 1, v{vi}
    v_lshlrev_b32 v{t0}, 8, v{t0}
    v_and_b32 v{t1}, 1, v{vi}
    v_lshl_add_u32 v{t0}, v{t1}, 3, v{t0}
    v_add_u32 v{t0}, 1024, v{t0}
    v_min_u32 v{t0}, 2048, v{t0}
    v_cvt_f32_u32 v{tA+4}, v{t0}""")
    GA = a(16)
    p(f"v_lshlrev_b32 v{t3}, 3, v0")
    for e in range(0, 16, 2):
        for h in range(2):
            d = 7 - (e + h)
            p(f"v_add_u32 v{GA+e+h}, {d}, v{t3}")
            p(f"v_max_i32 v{t0+h}, 128, v{GA+e+h}")
            p(f"v_cvt_f32_i32 v{t0+h}, v{t0+h}")
        p(f"""v_cvt_pk_bf16_f32 v{t0}, v{t0}, v{t1}
        v_lshrrev_b32 v{t1}, 16, v{t0}
        v_and_b32 v{t0}, 0xffff, v{t0}""")
        for h in range(2):
            p(f"v_subrev_u32 v{t0+h}, 0x4280, v{t0+h}")
            p(f"v_min_i32 v{GA+e+h}, v{t0+h}, v{GA+e+h}")
            p(f"v_lshlrev_b32 v{GA+e+h}, 1, v{GA+e+h}")
            p(f"v_add_u32 v{GA+e+h}, {TT}, v{GA+e+h}")
    P = a(16, 2); D = a(16, 2); A1 = a(2, 2); A2 = a(2, 2); B1 = a(2, 2); B2 = a(2, 2); Z2 = a(); vC0 = a(); vM = a(); vR = a()
    p("s_waitcnt vmcnt(8)")
    stamp(p, 1)
    for q in range(4):
        p(f"""v_lshlrev_b32 v{P+4*q}, 16, v{XA+q}
        v_lshlrev_b32 v{P+4*q+1}, 16, v{XB+q}
        v_and_b32 v{P+4*q+2}, 0xffff0000, v{XA+q}
        v_and_b32 v{P+4*q+3}, 0xffff0000, v{XB+q}""")
    p(f"""v_readfirstlane_b32 s64, v{P}
    v_readfirstlane_b32 s65, v{P+1}
    s_mov_b32 s70, 0xffff0000
    s_mov_b32 s71, 0xffff0000""")
    make_tags(p, vgen)
    for c in range(8):
        p(f"v_pk_add_f32 {vr(D+2*c,2)}, {vr(P+2*c,2)}, s[64:65] neg_lo:[0,1] neg_hi:[0,1]")
    def sums(X):
        p(f"""v_pk_add_f32 {vr(A1,2)}, {vr(X,2)}, {vr(X+2,2)}
        v_pk_add_f32 {vr(B1,2)}, {vr(X+4,2)}, {vr(X+6,2)}
        v_pk_mul_f32 {vr(A2,2)}, {vr(X,2)}, {vr(X,2)}
        v_pk_mul_f32 {vr(B2,2)}, {vr(X+2,2)}, {vr(X+2,2)}""")
        for c in range(4, 8):
            acc = A1 if c % 2 == 0 else B1
            p(f"v_pk_add_f32 {vr(acc,2)}, {vr(acc,2)}, {vr(X+2*c,2)}")
        for c in range(2, 8):
            acc = A2 if c % 2 == 0 else B2
            p(f"v_pk_fma_f32 {vr(acc,2)}, {vr(X+2*c,2)}, {vr(X+2*c,2)}, {vr(acc,2)}")
        p(f"""v_pk_add_f32 {vr(A1,2)}, {vr(A1,2)}, {vr(B1,2)}
        v_pk_add_f32 {vr(A2,2)}, {vr(A2,2)}, {vr(B2,2)}""")
    sums(D)
    p(f"""v_mov_b32 v{vC0}, s64
    s_mov_b64 exec, s[70:71]
    v_mov_b32 v{vC0}, s65
    s_mov_b64 exec, -1""")
    reduce4(p, A1, A2, Z2)
    def stats(mean_add, vm, vsd_r, vsd):
        p(f"""v_mul_f32 v{A1}, {f32(1/512)}, v{A1}
        v_mul_f32 v{Z2}, {f32(1/512)}, v{Z2}
        v_fma_f32 v{Z2}, -v{A1}, v{A1}, v{Z2}
        v_max_f32 v{Z2}, 0, v{Z2}""")
        if mean_add is not None: p(f"v_add_f32 v{A1}, v{mean_add}, v{A1}")
        p(f"""v_cvt_pk_bf16_f32 v{t0}, v{A1}, v{Z2}
        v_lshlrev_b32 v{vm}, 16, v{t0}
        v_and_b32 v{t0}, 0xffff0000, v{t0}
        v_add_f32 v{t0}, {f32(1e-5)}, v{t0}
        v_cvt_pk_bf16_f32 v{t0}, v{t0}, v{t0}
        v_lshlrev_b32 v{t0}, 16, v{t0}
        v_sqrt_f32 v{t0}, v{t0}
        v_cvt_pk_bf16_f32 v{t0}, v{t0}, v{t0}
        v_lshlrev_b32 v{vsd}, 16, v{t0}""")
        if vsd_r is not None: p(f"v_rcp_f32 v{vsd_r}, v{vsd}")
    vSD = a()
    stats(vC0, vM, vR, vSD)
    p(f"""v_readlane_b32 s66, v{vM}, 0
    v_readlane_b32 s67, v{vM}, 16
    v_readlane_b32 s68, v{vR}, 0
    v_readlane_b32 s69, v{vR}, 16""")
    F = a(8, 2); K_ = a(8)
    for c in range(8): p(f"v_pk_add_f32 {vr(D+2*c,2)}, {vr(P+2*c,2)}, s[66:67] neg_lo:[0,1] neg_hi:[0,1]")
    for c in range(8): p(f"v_cvt_pk_bf16_f32 v{K_+c}, v{D+2*c}, v{D+2*c+1}")
    for c in range(8):
        p(f"v_lshlrev_b32 v{D+2*c}, 16, v{K_+c}\n v_and_b32 v{D+2*c+1}, 0xffff0000, v{K_+c}")
    for c in range(8): p(f"v_pk_mul_f32 {vr(D+2*c,2)}, {vr(D+2*c,2)}, s[68:69]")
    for c in range(8): p(f"v_cvt_pk_bf16_f32 v{K_+c}, v{D+2*c}, v{D+2*c+1}")
    for c in range(8):
        p(f"v_lshlrev_b32 v{D+2*c}, 16, v{K_+c}\n v_and_b32 v{D+2*c+1}, 0xffff0000, v{K_+c}")
    for c in range(8): p(f"v_cvt_pkrtz_f16_f32 v{F+c}, v{D+2*c}, v{D+2*c+1}")
    p(f"""s_lshl_b32 s60, s{S_WAVE}, 11
    v_lshl_add_u32 v{t1}, v{lane}, 5, s60
    ds_write_b128 v{t1}, {vr(F,4)} offset:{LNB}
    ds_write_b128 v{t1}, {vr(F+4,4)} offset:{LNB+16}""")
    sums(D)
    reduce4(p, A1, A2, Z2)
    G = a(16, 2)
    vM2 = a(); vR2 = a()
    stats(None, vM2, None, vR2)
    p(f"""v_fma_f32 v{t0}, -v{vM2}, v{vSD}, -v{vM}
    v_mul_f32 v{t1}, v{vSD}, v{vR2}
    v_cvt_pk_bf16_f32 v{G}, v{t0}, v{t0}
    v_cvt_pk_bf16_f32 v{t2}, v{t1}, v{t1}
    v_and_b32 v{t3}, 0xffff0000, v{G}
    v_sub_f32 v{t0}, v{t0}, v{t3}
    v_and_b32 v{t3}, 0xffff0000, v{t2}
    v_sub_f32 v{t2}, v{t1}, v{t3}
    v_cvt_pk_bf16_f32 v{G+1}, v{t0}, v{t1}
    v_cvt_pk_bf16_f32 v{G+2}, v{t2}, 0
    v_mov_b32 v{G+3}, s{S_TAGA}
    v_lshlrev_b32 v{t0}, 4, v{vg}
    s_lshl_b32 s60, s61, 4
    s_add_u32 s60, s60, {AB}
    s_mov_b64 exec, 0x10001
    buffer_store_dwordx4 {vr(G,4)}, v{t0}, s[4:7], s60 offen sc1
    s_mov_b64 exec, -1
    s_waitcnt lgkmcnt(0)
    s_barrier""")
    p(f"""v_lshrrev_b32 v{t0}, 1, v0
    v_lshlrev_b32 v{t0}, 2, v{t0}
    v_and_b32 v{t1}, 1, v0
    v_lshl_add_u32 v{t0}, v{t1}, 12, v{t0}""")
    for i in range(4):
        p(f"ds_read2st64_b32 {vr(G+4*i,2)}, v{t0} offset0:{(LNB + i*512)//256} offset1:{(LNB + i*512)//256 + 8}")
        p(f"v_mov_b32 v{G+4*i+2}, s{S_TAGA}\n v_mov_b32 v{G+4*i+3}, s{S_TAGB}")
    p(f"""v_lshlrev_b32 v{t0}, 4, v0
    s_lshl_b32 s60, s2, 14
    s_add_u32 s60, s60, {XNT}""")
    for i in range(4):
        p(f"s_waitcnt lgkmcnt({3-i})")
        p(f"buffer_store_dwordx4 {vr(G+4*i,4)}, v{t0}, s[4:7], s60 offen sc1")
        if i < 3: p("s_add_u32 s60, s60, 4096")
    stamp(p, 2)
    for r, n in ((P, 16), (D, 16), (A1, 2), (A2, 2), (B1, 2), (B2, 2), (Z2, 1), (vC0, 1), (vM, 1), (vR, 1), (F, 8), (K_, 8), (vM2, 1), (vR2, 1), (XA, 4), (XB, 4)): V.free(r, n)
    p("s_waitcnt vmcnt(5)")
    if cfg.warm:
        DUM = a(4, 4)
        srd(p, 12, 12, 1792 * 1024)
        p(f"""s_lshr_b32 s60, s2, 3
        s_lshl_b32 s60, s60, 2
        s_add_u32 s60, s60, s{S_WAVE}
        s_mul_i32 s60, s60, {14*1024}""")
        for i in range(14):
            if i and i % 4 == 0: p("s_add_u32 s60, s60, 4096")
            p(f"buffer_load_dwordx4 {vr(DUM,4)}, v{vL16}, s[12:15], s60 offen offset:{(i%4)*1024}")
    U = a(12, 2); E = a(8, 2); vdt = a()
    p(f"""v_lshlrev_b32 v{vdt}, 16, v{vLd}
    v_mul_f32 v{vdt}, {f32(LOG2E)}, v{vdt}
    v_exp_f32 v{vdt}, v{vdt}
    v_lshlrev_b32 v{vDk}, 16, v{vDk}
    v_cvt_pk_bf16_f32 v{vdt}, v{vdt}, v{vdt}
    v_lshlrev_b32 v{vdt}, 16, v{vdt}""")
    for k in range(6):
        p(f"v_lshlrev_b32 v{U+2*k}, 16, v{PR+k}\n v_and_b32 v{U+2*k+1}, 0xffff0000, v{PR+k}")
    for k in range(4):
        for h in range(2): p(f"v_mul_f32 v{U+2*k+h}, v{vdt}, v{U+2*k+h}")
    for h in range(2):
        p(f"""v_mul_f32 v{E+4*h}, {f32(LOG2E)}, v{U+h}
        v_mul_f32 v{E+4*h+1}, {f32(1/(2*math.pi))}, v{U+2+h}
        v_mul_f32 v{E+4*h+2}, v{U+8+h}, v{U+4+h}
        v_fma_f32 v{E+4*h+2}, -v{U+10+h}, v{U+6+h}, v{E+4*h+2}
        v_mul_f32 v{E+4*h+3}, v{U+8+h}, v{U+6+h}
        v_fma_f32 v{E+4*h+3}, v{U+10+h}, v{U+4+h}, v{E+4*h+3}""")
    p(f"""v_max_f32 v{t0}, |v{E+2}|, |v{E+3}|
    v_max3_f32 v{t0}, |v{E+6}|, |v{E+7}|, v{t0}
    v_max_f32_dpp v{t0}, v{t0}, v{t0} quad_perm:[1,0,3,2] row_mask:0xf bank_mask:0xf
    v_max_f32_dpp v{t0}, v{t0}, v{t0} quad_perm:[2,3,0,1] row_mask:0xf bank_mask:0xf
    v_max_f32_dpp v{t0}, v{t0}, v{t0} row_half_mirror row_mask:0xf bank_mask:0xf
    v_max_f32_dpp v{t0}, v{t0}, v{t0} row_mirror row_mask:0xf bank_mask:0xf
    v_max_f32_dpp v{t0}, v{t0}, v{t0} row_bcast:15 row_mask:0xa bank_mask:0xf
    v_max_f32_dpp v{t0}, v{t0}, v{t0} row_bcast:31 row_mask:0xc bank_mask:0xf
    v_frexp_exp_i32_f32 v{t0}, v{t0}
    v_readlane_b32 s72, v{t0}, 63
    s_sub_u32 s73, 0, s72
    s_and_b32 s60, s{S_WAVE}, 1
    s_cmp_eq_u32 s60, 1
    s_cselect_b64 vcc, -1, 0""")
    for k in range(4): p(f"v_cndmask_b32 v{E+k}, v{E+k}, v{E+4+k}, vcc")
    p(f"""v_ldexp_f32 v{E+2}, v{E+2}, s73
    v_ldexp_f32 v{E+3}, v{E+3}, s73
    s_lshl_b32 s60, s{S_WAVE}, 10
    v_add_u32 v{t1}, s60, v{vL16}
    ds_write_b128 v{t1}, {vr(E,4)} offset:{PT}
    v_lshl_add_u32 v{t1}, v{vg}, 6, s60
    s_waitcnt lgkmcnt(0)""")
    V.free(U, 12); V.free(E, 8); V.free(PR, 6)
    ACC = a(12, 4); Q = a(32, 4); FR = a(32, 4)
    W_ = a(24, 2)
    def rdq(kap):
        for q in range(4): p(f"ds_read_b128 {vr(Q + (kap&1)*16 + 4*q, 4)}, v{t1} offset:{PT + kap*256 + q*16}")
    rdq(0)
    for kap in range(4):
        if kap < 3: rdq(kap + 1); p("s_waitcnt lgkmcnt(4)")
        else: p("s_waitcnt lgkmcnt(0)")
        fr = FR + (kap & 1) * 16
        for q in range(4):
            pq = Q + (kap & 1) * 16 + 4 * q
            ts_ = [tA, tA + 2, tA + 4, tB]
            for k in range(4):
                w = W_ + 6 * k
                p(f"v_pk_mul_f32 {vr(w,2)}, {vr(pq,2)}, {vr(ts_[k],2)} op_sel_hi:[1,0]")
            for k in range(4): p(f"v_fract_f32 v{W_+6*k+1}, v{W_+6*k+1}")
            for k in range(4):
                w = W_ + 6 * k
                p(f"v_exp_f32 v{w}, v{w}\n v_cos_f32 v{w+2}, v{w+1}\n v_sin_f32 v{w+3}, v{w+1}")
            for k in range(4):
                w = W_ + 6 * k
                p(f"v_pk_mul_f32 {vr(w+2,2)}, {vr(w+2,2)}, {vr(w,2)} op_sel_hi:[1,0]")
            for k in range(3):
                w = W_ + 6 * k
                p(f"v_cvt_pk_f16_f32 v{fr+4*k+q}, v{w+2}, v{w+3}")
            w = W_ + 18
            p(f"""v_mul_f32 v{w+4}, v{pq+2}, v{w+2}
            v_mul_f32 v{w+5}, v{pq+2}, v{w+3}
            v_fma_f32 v{w+4}, -v{pq+3}, v{w+3}, v{w+4}
            v_fma_f32 v{w+5}, v{pq+3}, v{w+2}, v{w+5}
            v_cvt_pk_f16_f32 v{fr+12+q}, v{w+4}, -v{w+5}""")
        for k in range(3):
            c = vr(ACC + 4 * k, 4) if kap else '0'
            p(f"v_mfma_f32_16x16x32_f16 {vr(ACC+4*k,4)}, {vr(fr+4*k,4)}, {vr(fr+12,4)}, {c}")
    V.free(Q, 32); V.free(FR, 32); V.free(W_, 24)
    stamp(p, 3)
    XG = a(16, 4); vXo = a()
    p(f"""v_lshrrev_b32 v{vXo}, 2, v{lane}
    v_lshlrev_b32 v{vXo}, 14, v{vXo}
    v_and_b32 v{t0}, 3, v{lane}
    v_lshl_add_u32 v{vXo}, v{t0}, 4, v{vXo}
    s_lshl_b32 s74, s{S_WAVE}, 20
    s_lshl_b32 s60, s2, 6
    s_add_u32 s74, s74, s60
    s_add_u32 s74, s74, {XNT}""")
    def gather():
        for i in range(4):
            p(f"s_add_u32 s60, s74, {i << 18}")
            p(f"buffer_load_dwordx4 {vr(XG+4*i,4)}, v{vXo}, s[4:7], s60 offen sc1")
    gather()
    p(f"""s_lshr_b32 s60, s{S_WAVE}, 1
    s_mul_i32 s75, s60, 3072
    v_add_u32 v{t1}, s75, v{vL16}
    s_and_b32 s62, s{S_WAVE}, 1
    s_cmp_eq_u32 s62, 0
    s_cbranch_scc1 L_b_even1""")
    for k in range(3): p(f"ds_write_b128 v{t1}, {vr(ACC+4*k,4)} offset:{PX + k*1024}")
    ZR = a(4, 2)
    p(f"""v_mov_b32 v{ZR}, 0
    v_mov_b32 v{ZR+1}, 0
    s_mul_i32 s75, s60, {XCH}
    v_lshl_add_u32 v{t0}, v{lane}, 3, s75
    ds_write_b64 v{t0}, {vr(ZR,2)} offset:{XBL}
    s_mul_i32 s75, s60, {TCH}
    v_and_b32 v{t0}, 3, v{lane}
    v_lshl_add_u32 v{t0}, v{t0}, 2, s75
    ds_write_b32 v{t0}, v{ZR} offset:{TT-16}
    s_waitcnt lgkmcnt(0)
L_b_even1:
    s_barrier
    s_cbranch_scc0 L_b_odd2""")
    O = a(12, 4)
    for k in range(3): p(f"ds_read_b128 {vr(O+4*k,4)}, v{t1} offset:{PX + k*1024}")
    a0 = a(); a1 = a(); a2 = a()
    p(f"""s_mul_i32 s75, s60, {TCH}
    v_lshlrev_b32 v{a0}, 5, v{vi}
    v_lshl_add_u32 v{a0}, v{vg}, 3, v{a0}
    v_add_u32 v{a0}, s75, v{a0}
    v_lshlrev_b32 v{a1}, 4, v{vi}
    v_lshl_add_u32 v{a1}, v{vg}, 3, v{a1}
    v_add_u32 v{a1}, 512, v{a1}
    v_lshlrev_b32 v{t0}, 3, v{vi}
    v_lshl_add_u32 v{t0}, v{vg}, 7, v{t0}
    v_add_u32 v{t0}, {768-256}, v{t0}
    v_cmp_gt_u32 vcc, 2, v{vg}
    v_cndmask_b32 v{a1}, v{t0}, v{a1}, vcc
    v_add_u32 v{a1}, s75, v{a1}
    v_lshlrev_b32 v{a2}, 2, v{vi}
    v_lshl_add_u32 v{a2}, v{vg}, 7, v{a2}
    v_add_u32 v{a2}, s75, v{a2}
    s_waitcnt lgkmcnt(0)""")
    for k in range(12): p(f"v_add_f32 v{ACC+k}, v{ACC+k}, v{O+k}")
    for k in range(6): p(f"v_cvt_pk_f16_f32 v{O+k}, v{ACC+2*k}, v{ACC+2*k+1}")
    p(f"""ds_write_b64 v{a0}, {vr(O,2)} offset:{TT}
    ds_write_b64 v{a1}, {vr(O+2,2)} offset:{TT}
    s_mov_b32 s76, -1
    s_mov_b32 s77, 1
    s_mov_b64 exec, s[76:77]
    ds_write_b32 v{a2}, v{O+4} offset:{TT+1024}
    s_mov_b32 s77, 0
    s_mov_b64 exec, s[76:77]
    ds_write_b32 v{a2}, v{O+5} offset:{TT+1024+64}
    s_mov_b64 exec, -1
    s_waitcnt lgkmcnt(0)
L_b_odd2:
    s_barrier""")
    for r in (a0, a1, a2): V.free(r)
    V.free(O, 12); V.free(ACC, 12)
    vKW = a(2)
    p(f"v_lshlrev_b32 v{vKW}, 4, v0\n v_add_u32 v{vKW+1}, {KCH}, v{vKW}")
    W0 = a(8, 2); W1 = a(9, 2); S0 = a(8, 2); S1 = a(9, 2); EL = [a(15), a(15)]
    for ch in range(2):
        for e in range(15):
            p(f"ds_read_u16 v{EL[ch] + e}, v{GA+e} offset:{ch*TCH}")
    for ch in range(2):
        el = EL[ch]
        p(f"s_waitcnt lgkmcnt({15 if ch == 0 else 8})")
        for q in range(7):
            p(f"v_lshl_or_b32 v{W0+q}, v{el+2*q+1}, 16, v{el+2*q}")
            p(f"v_lshl_or_b32 v{S0+q}, v{el+2*q+2}, 16, v{el+2*q+1}")
        for q in range(1, 7):
            p(f"v_lshl_or_b32 v{W1+1+q}, v{el+2*q+1}, 16, v{el+2*q}")
            p(f"v_lshl_or_b32 v{S1+1+q}, v{el+2*q+2}, 16, v{el+2*q+1}")
        for s_ in range(8):
            if s_ & 1: o = (7 - s_) // 2; e_, o_ = W0, W1
            else: o = (6 - s_) // 2; e_, o_ = S0, S1
            src = e_ + o if o % 2 == 0 else o_ + 1 + o
            p(f"ds_write_b128 v{vKW+ch}, {vr(src,4)} offset:{KC + s_*KCS + 16}")
    p(f"""v_mov_b32 v{ZR}, 0
    v_mov_b32 v{ZR+1}, 0
    v_mov_b32 v{ZR+2}, 0
    v_mov_b32 v{ZR+3}, 0
    v_mul_u32_u24 v{t0}, {KCS}, v{vi}
    ds_write_b128 v{t0}, {vr(ZR,4)} offset:{KC}""")
    for r, n in ((W0, 8), (W1, 9), (S0, 8), (S1, 9), (GA, 16), (EL[0], 15), (EL[1], 15)): V.free(r, n)
    stamp(p, 4)
    p(f"""s_mov_b32 s62, 0
L_b_poll:
    s_waitcnt vmcnt(0)
    v_xor_b32 v{t0}, s{S_TAGA}, v{XG+2}
    v_xor_b32 v{t1}, s{S_TAGB}, v{XG+3}
    v_or_b32 v{t0}, v{t0}, v{t1}""")
    for i in range(1, 4):
        p(f"""v_xor_b32 v{t1}, s{S_TAGA}, v{XG+4*i+2}
        v_xor_b32 v{t2}, s{S_TAGB}, v{XG+4*i+3}
        v_or3_b32 v{t0}, v{t0}, v{t1}, v{t2}""")
    p(f"""v_cmp_ne_u32 vcc, 0, v{t0}
    s_add_u32 s62, s62, 1
    s_cmp_eq_u64 vcc, 0
    s_cbranch_scc1 L_b_got
    s_cmp_ge_u32 s62, {SPIN_MAX}
    s_cbranch_scc1 L_b_got
    s_sleep 1""")
    gather()
    p("s_branch L_b_poll\nL_b_got:")
    p(f"""v_lshrrev_b32 v{t0}, 2, v{lane}
    v_lshlrev_b32 v{t0}, 4, v{t0}
    v_and_b32 v{t1}, 1, v{lane}
    v_lshl_add_u32 v{t0}, v{t1}, 3, v{t0}
    v_bfe_u32 v{t1}, v{lane}, 1, 1
    v_mul_u32_u24 v{t1}, {XCH}, v{t1}
    s_lshl_b32 s60, s{S_WAVE}, 10
    v_add3_u32 v{t0}, v{t0}, v{t1}, s60""")
    for i in range(4): p(f"ds_write_b64 v{t0}, {vr(XG+4*i,2)} offset:{XBL + 512 + i*256}")
    V.free(XG, 16)
    vA = a(); vB = a()
    p(f"""s_lshr_b32 s60, s{S_WAVE}, 1
    s_and_b32 s62, s{S_WAVE}, 1
    s_lshl_b32 s62, s62, 8
    v_and_b32 v{vA}, 7, v{vi}
    v_mul_u32_u24 v{vA}, {KCS}, v{vA}
    v_lshrrev_b32 v{t0}, 3, v{vi}
    v_sub_u32 v{t0}, v{t0}, v{vg}
    v_add_u32 v{t0}, 3, v{t0}
    v_lshl_add_u32 v{vA}, v{t0}, 4, v{vA}
    s_mul_i32 s75, s60, {KCH}
    s_add_u32 s75, s75, s62
    v_add_u32 v{vA}, s75, v{vA}
    v_lshlrev_b32 v{vB}, 5, v{vi}
    v_lshl_add_u32 v{vB}, v{vg}, 4, v{vB}
    s_mul_i32 s75, s60, {XCH}
    s_sub_u32 s75, s75, s62
    s_add_u32 s75, s75, {XBL + 480 - 192}
    v_add_u32 v{vB}, s75, v{vB}
    s_waitcnt lgkmcnt(0)
    s_barrier""")
    stamp(p, 5)
    if cfg.dumpK:
        Dm = a(4, 4)
        for ch in range(2):
            p(f"""ds_read_b128 {vr(Dm,4)}, v{vKW+ch} offset:{KC + 7*KCS + 16}
            s_lshl_b32 s60, s2, 13
            s_add_u32 s60, s60, {DBG + ch*4096}
            s_waitcnt lgkmcnt(0)
            buffer_store_dwordx4 {vr(Dm,4)}, v{vKW}, s[4:7], s60 offen
            s_waitcnt vmcnt(0)""")
        p(f"""v_mov_b32 v{Dm}, s72
        s_lshl_b32 s60, s63, 2
        s_add_u32 s60, s60, {DBG + 0x400000}
        v_mov_b32 v{Dm+1}, 0
        buffer_store_dword v{Dm}, v{Dm+1}, s[4:7], s60 offen
        s_waitcnt vmcnt(0)""")
        V.free(Dm, 4)
    CA = a(32, 4); FA = [a(32, 4), a(32, 4)]; FB = [a(32, 4), a(32, 4)]
    def rd_res(rr):
        bsel = rr & 1
        for k in range(8):
            p(f"ds_read_b128 {vr(FA[bsel]+4*k,4)}, v{vA} offset:{KC + rr*64 + k*512}")
            p(f"ds_read_b128 {vr(FB[bsel]+4*k,4)}, v{vB} offset:{192 - rr*64 + k*512}")
    rd_res(0)
    for rr in range(4):
        bsel = rr & 1
        pairs = sorted([(aa, bb) for aa in range(8) for bb in range(8 - aa)], key=lambda t: (max(t), t[0] + t[1]))
        nxt = []
        if rr < 3:
            nb = (rr + 1) & 1
            for k in range(8):
                nxt.append(f"ds_read_b128 {vr(FA[nb]+4*k,4)}, v{vA} offset:{KC + (rr+1)*64 + k*512}")
                nxt.append(f"ds_read_b128 {vr(FB[nb]+4*k,4)}, v{vB} offset:{192 - (rr+1)*64 + k*512}")
        have = -1; issued = 0
        for n_, (aa, bb) in enumerate(pairs):
            m_ = max(aa, bb)
            if m_ > have:
                outstanding = 16 - 2 * (m_ + 1) + issued
                p(f"s_waitcnt lgkmcnt({min(outstanding, 15)})")
                have = m_
            J = aa + bb
            first = (rr == 0 and (aa, bb) == min((t for t in pairs if t[0] + t[1] == J), key=lambda t: pairs.index(t)))
            c = '0' if first else vr(CA + 4 * J, 4)
            p(f"v_mfma_f32_16x16x32_f16 {vr(CA+4*J,4)}, {vr(FA[bsel]+4*aa,4)}, {vr(FB[bsel]+4*bb,4)}, {c}")
            if have == 7 or True:
                if have == 7 and nxt:
                    for x in nxt: p(x)
                    nxt = []; issued = 16
    stamp(p, 6)
    for r in FA + FB: V.free(r, 32)
    p(f"""s_barrier
    s_lshl_b32 s60, s{S_WAVE}, 12
    v_add_u32 v{t1}, s60, v{vL16}
    s_xor_b32 s60, s60, 4096
    v_add_u32 v{t2}, s60, v{vL16}
    s_and_b32 s62, s{S_WAVE}, 1
    s_cmp_eq_u32 s62, 0
    s_cbranch_scc1 L_b_e0""")
    for k in range(4): p(f"ds_write_b128 v{t1}, {vr(CA+4*k,4)} offset:{KC+k*1024}")
    for k in range(16): p(f"v_mov_b32 v{CA+k}, v{CA+16+k}")
    p("s_branch L_b_e1\nL_b_e0:")
    for k in range(4): p(f"ds_write_b128 v{t1}, {vr(CA+16+4*k,4)} offset:{KC+k*1024}")
    p("L_b_e1:")
    XN = a(8, 2); O = CA + 16
    p(f"""s_lshr_b32 s60, s{S_WAVE}, 1
    s_mul_i32 s75, s60, {XCH}
    s_lshl_b32 s62, s62, 11
    s_add_u32 s75, s75, s62
    v_lshlrev_b32 v{t0}, 5, v{vi}
    v_lshl_add_u32 v{t0}, v{vg}, 3, v{t0}
    v_add_u32 v{t0}, s75, v{t0}""")
    for k in range(4): p(f"ds_read_b64 {vr(XN+2*k,2)}, v{t0} offset:{XBL + 512 + k*512}")
    p("s_waitcnt lgkmcnt(0)\n s_barrier")
    for k in range(4): p(f"ds_read_b128 {vr(O+4*k,4)}, v{t2} offset:{KC+k*1024}")
    p(f"""v_lshlrev_b32 v{t3}, 6, v{vi}
    v_lshl_add_u32 v{t3}, v{vg}, 4, v{t3}
    s_lshl_b32 s60, s63, 13
    s_lshl_b32 s62, s62, 1
    s_add_u32 s60, s60, s62
    s_add_u32 s60, s60, {ST}""")
    Y = a(4, 2); Xf = a(4, 2); GG = [a(4, 2), a(4, 2)]
    for k in range(4):
        g_ = GG[k & 1]
        p(f"s_waitcnt lgkmcnt({3-k})")
        for r in range(4):
            p(f"v_add_f32 v{Y+r}, v{CA+4*k+r}, v{O+4*k+r}")
            p(f"v_ldexp_f32 v{Y+r}, v{Y+r}, s72")
        for h in range(2):
            p(f"""v_cvt_f32_f16 v{Xf+2*h}, v{XN+2*k+h}
            v_cvt_f32_f16_sdwa v{Xf+2*h+1}, v{XN+2*k+h} dst_sel:DWORD dst_unused:UNUSED_PAD src0_sel:WORD_1""")
        for r in range(4): p(f"v_mul_f32 v{Xf+r}, v{Xf+r}, v{vDk}")
        for h in range(2):
            p(f"""v_cvt_pk_bf16_f32 v{t0}, v{Y+2*h}, v{Y+2*h+1}
            v_cvt_pk_bf16_f32 v{t1}, v{Xf+2*h}, v{Xf+2*h+1}
            v_lshlrev_b32 v{Y+2*h}, 16, v{t0}
            v_and_b32 v{Y+2*h+1}, 0xffff0000, v{t0}
            v_lshlrev_b32 v{Xf+2*h}, 16, v{t1}
            v_and_b32 v{Xf+2*h+1}, 0xffff0000, v{t1}
            v_pk_add_f32 {vr(Y+2*h,2)}, {vr(Y+2*h,2)}, {vr(Xf+2*h,2)}
            v_cvt_pk_bf16_f32 v{g_+h}, v{Y+2*h}, v{Y+2*h+1}""")
        if k < 2: p(f"v_mov_b32 v{g_+2}, s{S_TAGA}\n v_mov_b32 v{g_+3}, s{S_TAGB}")
        p(f"buffer_store_dwordx4 {vr(g_,4)}, v{t3}, s[4:7], s60 offen offset:{k*1024} sc1")
    stamp(p, 7)
    p(f"""s_or_b32 s60, s2, s{S_WAVE}
    s_cmp_lg_u32 s60, 0
    s_cbranch_scc1 L_b_done""")
    if cfg.only != 'B':
        FL = a(8, 2)
        p(f"""v_lshlrev_b32 v{t3}, 8, v{lane}
        s_mov_b32 s62, 0
L_b_gpoll:""")
        for i in range(4):
            p(f"s_mov_b32 s60, {HFLAG + i*16384}\n buffer_load_dwordx2 {vr(FL+2*i,2)}, v{t3}, s[4:7], s60 offen sc1")
        p(f"s_waitcnt vmcnt(0)\n v_mov_b32 v{t0}, 0")
        for i in range(4):
            p(f"""v_xor_b32 v{t1}, s{S_TAGA}, v{FL+2*i}
            v_xor_b32 v{t2}, s{S_TAGB}, v{FL+2*i+1}
            v_or3_b32 v{t0}, v{t0}, v{t1}, v{t2}""")
        p(f"""v_cmp_ne_u32 vcc, 0, v{t0}
        s_add_u32 s62, s62, 1
        s_cmp_eq_u64 vcc, 0
        s_cbranch_scc1 L_b_gok
        s_cmp_ge_u32 s62, {SPIN_MAX}
        s_cbranch_scc1 L_b_gok
        s_sleep 4
        s_branch L_b_gpoll
L_b_gok:""")
    p(f"""v_mov_b32 v{t0}, s{S_TAGA}
    v_mov_b32 v{t1}, 0
    s_mov_b64 exec, 1
    buffer_store_dword v{t0}, v{t1}, s[4:7], 0 offen offset:{GEN}
    s_mov_b64 exec, -1
L_b_done:""")
    stamps_out(p, 8, CA)
    p("s_endpgm")
    return V.hi_used

def build():
    p = Prog(); p.nopk = bool(cfg.nopk)
    name = NAME + "_kernel"
    p(f""".globl {name}
.p2align 8
.type {name},@function
{name}:
    s_cmp_ge_u32 s2, 512
    s_cbranch_scc1 L_exit
    s_load_dwordx16 s[16:31], s[0:1], 0
    s_load_dwordx16 s[32:47], s[0:1], 64
    s_load_dwordx2 s[48:49], s[0:1], 128""")
    if cfg.cpf:
        p(f"""s_getpc_b64 s[52:53]
        s_lshr_b32 s54, s2, 3
        s_and_b32 s54, s54, 15
        s_lshl_b32 s54, s54, 12
        v_lshl_add_u32 v4, v0, 4, s54
        v_min_u32 v4, CODE_END_OFF, v4
        global_load_dwordx4 v[252:255], v4, s[52:53]""")
    stamp(p, 0)
    p(f"""v_lshrrev_b32 v1, 6, v0
    v_readfirstlane_b32 s{S_WAVE}, v1
    v_and_b32 v1, 63, v0
    v_mov_b32 v3, 0
    s_waitcnt lgkmcnt(0)
    s_mov_b32 s4, s48
    s_mov_b32 s5, s49
    s_mov_b32 s6, 0x10000000
    s_mov_b32 s7, 0x20000
    buffer_load_dword v2, v3, s[4:7], 0 offen offset:{GEN} sc1
""")
    if cfg.tlb:
        p(f"""v_and_b32 v4, 15, v1
        v_lshlrev_b32 v4, {cfg.tlb}, v4
        v_min_u32 v4, 0xc00000, v4
        buffer_load_dword v248, v4, s[4:7], 0 offen offset:256
        global_load_dword v249, v3, {sr(PTR(14),2)}
        global_load_dword v250, v3, {sr(PTR(12),2)}
        global_load_dword v251, v3, {sr(PTR(13),2)}""")
    p(f"""s_cmp_ge_u32 s2, 256
    s_cbranch_scc1 L_role_A""")
    if cfg.only == 'A':
        p("s_endpgm"); hb = 0
    else:
        import roleB
        hb = roleB.role_B(p, 2, sys.modules[__name__])
    p("L_role_A:")
    ha = 0
    if cfg.only != 'B':
        import roleA
        ha = roleA.role_A(p, 2, sys.modules[__name__])
    p("L_exit:\n s_endpgm")
    n = p.fix_hazards()
    print("vgprs B %d A %d, nops inserted %d, instrs %d" % (hb, ha, n, len(p.ins)), file=sys.stderr)
    import subprocess, re as _re
    body = p.text()
    if cfg.cpf:
        tmp = '.amdgcn_target "amdgcn-amd-amdhsa--gfx950"\n.text\n' + body.replace('CODE_END_OFF', '0x12345')
        open('_sz.s', 'w').write(tmp)
        subprocess.run(['clang', '-x', 'assembler', '-target', 'amdgcn-amd-amdhsa', '-mcpu=gfx950', '-c', '_sz.s', '-o', '_sz.o'], check=True)
        o = subprocess.run(['llvm-objdump', '-h', '_sz.o'], capture_output=True, text=True).stdout
        sz = int(_re.search(r'\.text\s+([0-9a-f]+)', o).group(1), 16)
        print("code bytes", sz, file=sys.stderr)
        body = body.replace('CODE_END_OFF', str((sz - 64) & ~15))
    hdr = open('cdna_kernels/' + NAME + '.s.ref').read().split('; Override launch')[0]
    hdr += f"; @launch kernel={name} grid=(512,1,1) block=(256,1,1) lds={LDS_BYTES}\n"
    hdr += '.amdgcn_target "amdgcn-amd-amdhsa--gfx950"\n.text\n'
    return hdr + body + '.section .rodata,"a"\n.p2align 6\n' + kernel_desc(name, 256)

if __name__ == '__main__':
    import __main__
    out = sys.argv[1]
    for o in sys.argv[2:]:
        if o == 'ts': cfg.ts = True
        elif o == 'dumpK': cfg.dumpK = True
        elif o.startswith('only='): cfg.only = o[5:]
        elif o.startswith('spin='): SPIN_MAX = int(o[5:])
        elif '=' in o: setattr(cfg, o.split('=')[0], int(o.split('=')[1]))
    open(out, 'w').write(build())
```

```python
from asmlib import *
import math, sys
from collections import deque

class Cnt:
    def __init__(self, p, name, cap):
        self.p = p; self.name = name; self.cap = cap; self.ops = []; self.done = 0
    def issue(self, tag): self.ops.append(tag)
    def wait(self, tag):
        idx = max((i for i, t in enumerate(self.ops) if t == tag), default=-1)
        assert idx >= 0, ('wait for never-issued', tag)
        if idx < self.done: return
        n = min(len(self.ops) - 1 - idx, self.cap)
        self.p(f"s_waitcnt {self.name}({n})")
        self.done = len(self.ops) - n
    def wait_all(self):
        self.p(f"s_waitcnt {self.name}(0)"); self.done = len(self.ops)

def role_A(p, vgen, G):
    S_WAVE, S_TAGA, S_TAGB = G.S_WAVE, G.S_TAGA, G.S_TAGB
    f32 = G.f32; cfg = G.cfg; stamp = G.stamp; srd = G.srd; PTR = G.PTR
    REGS = 20480; NU = 10
    NXP = cfg.nxp
    V = Regs('v', 4, 256); a = V.alloc
    lane = 1
    vm = Cnt(p, 'vmcnt', 63); lg = Cnt(p, 'lgkmcnt', 15)
    vm.issue('cpf'); vm.issue('gen')
    if cfg.tlb:
        for _ in range(4): vm.issue('tlb')
    t0 = a(); t1 = a(); t2 = a(); t3 = a()
    S2 = a(12, 4)
    CFR = S2; vA = S2 + 8
    TG = S2 + 2; FL = S2 + 4; vB2o = S2 + 6; vOo = S2 + 8; vSo = S2 + 9; vSw = S2 + 10; vSr = S2 + 11; vH = [S2, S2 + 1]
    vW2o = a(2); vHo = a(); vABo = a()
    X = a(128, 4)
    vXr = a(4, 2); vXo = a(4); vWo = a(2); AB_ = a(4, 4)
    vT = vXr; vFo = vXr + 2
    ACC = a(64, 4); FR = a(24, 4)
    if cfg.prio: p(f"s_setprio {cfg.prio}")
    p(f"""s_sub_u32 s60, s2, 256
    s_and_b32 s61, s60, 7
    s_lshr_b32 s62, s60, 3""")
    srd(p, 8, 0, 2048 * 1024)
    srd(p, 12, 10, 512 * 3584)
    p(f"""s_mul_i32 s71, s{S_WAVE}, {REGS}
    v_lshrrev_b32 v{t0}, 3, v{lane}
    v_and_b32 v{t1}, 7, v{lane}
    v_mul_u32_u24 v{vWo}, 3584, v{t0}
    v_bfe_u32 v{t2}, v{lane}, 4, 1
    v_lshlrev_b32 v{t2}, 2, v{t2}
    v_xor_b32 v{t2}, v{t1}, v{t2}
    v_lshl_add_u32 v{vWo}, v{t2}, 4, v{vWo}
    v_add_u32 v{vWo+1}, {8*3584 - 1024}, v{vWo}
    s_cmp_ge_u32 s62, 28
    s_cbranch_scc1 L_a_nog1""")
    for _ in range(cfg.dA): p("s_sleep 32")
    p(f"""s_mul_i32 s63, s62, 37
    s_lshr_b32 s63, s63, 8
    s_mul_i32 s64, s63, 7
    s_sub_u32 s64, s62, s64
    s_lshr_b32 s65, s61, 1
    s_lshl_b32 s65, s65, 2
    s_add_u32 s63, s63, s65
    s_and_b32 s65, s61, 1
    s_mul_i32 s65, s65, 7
    s_add_u32 s64, s64, s65
    v_lshrrev_b32 v{t2}, 4, v{lane}
    v_xor_b32 v{t2}, v{t1}, v{t2}
    v_lshlrev_b32 v{t2}, 4, v{t2}
    v_lshl_add_u32 v{vXo}, v{t0}, 10, v{t2}
    v_xor_b32 v{vXo+1}, 64, v{vXo}
    v_add_u32 v{vXo+1}, {7168}, v{vXo+1}
    v_add_u32 v{vXo+2}, {2*7168}, v{vXo}
    v_add_u32 v{vXo+3}, {2*7168}, v{vXo+1}
    s_lshl_b32 s68, s63, 17
    s_lshl_b32 s65, s{S_WAVE}, 15
    s_add_u32 s68, s68, s65
    s_add_u32 s69, s62, s61
    s_and_b32 s69, s69, {cfg.rot}
    s_lshl_b32 s65, s69, 7
    s_add_u32 s77, s68, s65
    s_mul_i32 s70, s{S_WAVE}, {16*3584}
    s_lshl_b32 s65, s64, 8
    s_add_u32 s70, s70, s65""")
    def xr(kc, sg): return X + (kc * 4 + sg) * 4
    SK = 18
    hi = deque(); lo = deque()
    def pump(n, nlo=0):
        k = 0
        while k < n and hi: hi.popleft()(); k += 1
        while nlo > 0 and lo: lo.popleft()(); nlo -= 1
    def drain_q():
        while hi: hi.popleft()()
        while lo: lo.popleft()()
    unit_of = {}
    free_units = deque(range(2 * NXP, NU))
    pend = deque([('w1', t) for t in range(16)] + [('w2', k) for k in range(cfg.nkr, cfg.nkr + 10)])
    def g2_phys(k): return 2 * k if k < 14 else 2 * (k - 14) + 1
    sk_done = set(); wseq = [0]; hseq = [0]
    def dma_item(item, u, cnt):
        kind, t = item
        unit_of[item] = u
        kc = t & 7
        def f():
            p(f"s_add_u32 m0, s71, {u*2048}")
            if kind == 'w1':
                if kc not in sk_done:
                    sk_done.add(kc)
                    p(f"""s_xor_b32 s65, s69, {kc}
                    s_mul_i32 s65, s65, {64*3584}
                    s_add_u32 s{SK+kc}, s65, s70""")
                else:
                    p(f"s_add_u32 s{SK+kc}, s{SK+kc}, 128")
                p(f"buffer_load_dwordx4 v{vWo}, s[12:15], s{SK+kc} offen lds")
            else:
                p(f"""s_add_u32 s35, s73, {64*g2_phys(t)*1024}
                buffer_load_dwordx4 v{vW2o}, s[52:55], s35 offen lds""")
            cnt.issue(item)
        def g():
            if kind == 'w1': p(f"buffer_load_dwordx4 v{vWo+1}, s[12:15], s{SK+kc} offen offset:1024 lds")
            else: p(f"buffer_load_dwordx4 v{vW2o+1}, s[52:55], s35 offen offset:1024 lds")
            cnt.issue(item)
        return [f, g]
    def refill(q, cnt):
        while free_units and pend:
            for f in dma_item(pend.popleft(), free_units.popleft(), cnt): q.append(f)
    def dma_x(t):
        out = []
        for i in range(4):
            def f(i=i):
                if i == 0:
                    p(f"s_add_u32 m0, s71, {(t % NXP)*4096}")
                    p(f"s_xor_b32 s35, s77, {t*128}")
                p(f"buffer_load_dwordx4 v{vXo+i}, s[8:11], s35 offen offset:{i*1024} lds")
                vm.issue(('x', t))
            out.append(f)
        return out
    for t in range(NXP):
        for f in dma_x(t): f()
        for f in dma_item(pend.popleft(), free_units.popleft(), vm): f()
    refill(hi, vm)
    for _ in range(cfg.ni): hi.popleft()()
    def g2_setup():
        srd(p, 52, 12, 1792 * 1024)
        srd(p, 56, 14, 2048 * 1024)
        p(f"""s_lshl_b32 s78, s61, 2
        s_lshr_b32 s65, s62, 3
        s_add_u32 s78, s78, s65
        s_and_b32 s79, s62, 7
        s_lshr_b32 s66, s{S_WAVE}, 1
        s_and_b32 s67, s{S_WAVE}, 1
        v_lshrrev_b32 v{t0}, 3, v{lane}
        v_lshlrev_b32 v{vW2o}, 10, v{t0}
        v_and_b32 v{t0}, 7, v{lane}
        v_bfe_u32 v{t1}, v{lane}, 4, 1
        v_lshlrev_b32 v{t1}, 1, v{t1}
        v_xor_b32 v{t0}, v{t0}, v{t1}
        v_lshl_add_u32 v{vW2o}, v{t0}, 4, v{vW2o}
        v_add_u32 v{vW2o+1}, 7168, v{vW2o}
        s_lshl_b32 s73, s{S_WAVE}, 14
        s_lshl_b32 s65, s79, 7
        s_add_u32 s73, s73, s65
        v_lshlrev_b32 v{vHo}, 4, v{lane}""")
    def va_setup(dst):
        p(f"""v_lshrrev_b32 v{t0}, 5, v{lane}
        v_lshlrev_b32 v{t0}, 10, v{t0}
        v_bfe_u32 v{t1}, v{lane}, 2, 2
        v_lshl_add_u32 v{t0}, v{t1}, 7, v{t0}
        v_bfe_u32 v{t1}, v{lane}, 4, 1
        v_lshl_add_u32 v{t0}, v{t1}, 5, v{t0}
        v_and_b32 v{t1}, 3, v{lane}
        v_lshl_add_u32 v{t0}, v{t1}, 3, v{t0}
        v_bfe_u32 v{t1}, v{lane}, 3, 1
        v_lshl_add_u32 v{dst}, v{t1}, 6, v{t0}""")
    g2_setup()
    va_setup(vA)
    p(f"""v_xor_b32 v{vA+1}, 64, v{vA}
    v_add_u32 v{vA+2}, {REGS}, v{vA}
    v_add_u32 v{vA+3}, {REGS}, v{vA+1}
    v_and_b32 v{t0}, 31, v{lane}
    v_lshlrev_b32 v{vABo}, 4, v{t0}
    v_bfe_u32 v{t1}, v{lane}, 1, 3
    v_lshrrev_b32 v{t2}, 5, v{lane}
    v_xor_b32 v{t1}, v{t1}, v{t2}
    v_lshlrev_b32 v{t1}, 4, v{t1}
    v_lshl_add_u32 v{t1}, v{t0}, 7, v{t1}
    v_add_u32 v{vXr}, s71, v{t1}
    v_xor_b32 v{vXr+1}, 32, v{vXr}
    v_xor_b32 v{vXr+2}, 64, v{vXr}
    v_xor_b32 v{vXr+3}, 96, v{vXr}
    s_lshr_b32 s72, s68, 6
    s_add_u32 s72, s72, {G.AB}
    s_lshl_b32 s76, s64, 12
    s_add_u32 s76, s76, {G.CF}""")
    def acc(phi, mu): return ACC + (phi * 2 + mu) * 16
    PF = 2
    def rd_frag(n, mus=(0, 1)):
        t, sg = n >> 2, n & 3
        b = FR + (n % 3) * 8
        u = unit_of[('w1', t)]
        for mu in mus:
            for rho in range(2):
                p(f"ds_read_b64_tr_b16 {vr(b + mu*4 + rho*2, 2)}, v{vA + (sg&1)*2 + mu} offset:{(sg>>1)*2*REGS + u*2048 + rho*512}")
                lg.issue(('fr', n))
    def x_drain(t):
        out = []
        for h in range(2):
            def r(h=h):
                if h == 0:
                    assert vm.ops.count(('x', t)) == 4
                    vm.wait(('x', t))
                for sg in range(2 * h, 2 * h + 2):
                    p(f"ds_read_b128 {vr(xr(t,sg),4)}, v{vXr+sg} offset:{(t % NXP)*4096}")
                    lg.issue(('xr', t) if h else ('xr0', t))
            out.append(r)
        return out
    def x_next(t):
        def w():
            lg.wait(('xr', t))
            if t + NXP < 8:
                for f in dma_x(t + NXP): hi.append(f)
            else:
                free_units.append((t % NXP) * 2); free_units.append((t % NXP) * 2 + 1)
                refill(hi, vm)
        return w
    C1 = -2 * 0.7978845608028654 * G.LOG2E; C2 = C1 * 0.044715
    K1 = vXo; K2 = vXo + 1; IA = vXo + 2
    def ld_cf(phi, withab):
        if withab: p(f"buffer_load_dwordx4 {vr(AB_,4)}, v{vABo}, s[4:7], s72 offen sc1")
        for mu in range(2):
            p(f"buffer_load_dwordx4 {vr(CFR+4*mu,4)}, v{vHo}, s[4:7], s76 offen offset:{phi*2048 + mu*1024} sc1")
    def corr(phi):
        p(f"s_mov_b32 s69, 0\nL_a_cfpoll{phi}:")
        vm.wait(('cf', phi))
        p(f"""v_xor_b32 v{t0}, s{S_TAGA}, v{CFR+3}
        v_xor_b32 v{t1}, s{S_TAGA}, v{CFR+7}""")
        if phi == 0: p(f"v_xor_b32 v{t2}, s{S_TAGA}, v{AB_+3}\n v_or3_b32 v{t0}, v{t0}, v{t1}, v{t2}")
        else: p(f"v_or_b32 v{t0}, v{t0}, v{t1}")
        p(f"""v_cmp_ne_u32 vcc, 0, v{t0}
        s_add_u32 s69, s69, 1
        s_cmp_eq_u64 vcc, 0
        s_cbranch_scc1 L_a_cfok{phi}
        s_cmp_ge_u32 s69, {G.SPIN_MAX}
        s_cbranch_scc1 L_a_cfok{phi}
        s_sleep 1""")
        ld_cf(phi, phi == 0)
        p(f"""s_waitcnt vmcnt(0)
        s_branch L_a_cfpoll{phi}
L_a_cfok{phi}:
        v_mov_b32 v{CFR+3}, 0
        v_mov_b32 v{CFR+7}, 0""")
        if phi == 0:
            p(f"""v_and_b32 v{IA}, 0xffff0000, v{AB_+1}
            v_lshlrev_b32 v{t0}, 16, v{AB_+2}
            v_add_f32 v{IA}, v{IA}, v{t0}
            v_rcp_f32 v{t0}, v{IA}
            v_mov_b32 v{AB_+3}, 0
            v_mul_f32 v{K1}, {f32(C1)}, v{t0}
            v_mul_f32 v{t1}, v{t0}, v{t0}
            v_mul_f32 v{t1}, v{t1}, v{t0}
            v_mul_f32 v{K2}, {f32(C2)}, v{t1}
            s_lshl_b32 s72, s63, 2
            s_add_u32 s72, s72, s{S_WAVE}
            s_mul_i32 s72, s72, {112*1024}
            s_lshl_b32 s65, s64, 13
            s_add_u32 s72, s72, s65
            s_add_u32 s72, s72, {G.HB}""")
        else:
            p("s_add_u32 s72, s72, 4096")
        for mu in range(2):
            p(f"v_mfma_f32_32x32x16_bf16 {vr(acc(phi,mu),16)}, {vr(CFR+4*mu,4)}, {vr(AB_,4)}, {vr(acc(phi,mu),16)}")
    GT = X
    def gelu_ops(phi):
        ops = []
        quarters = [(mu, q) for mu in range(2) for q in range(4)]
        for k, (mu, q) in enumerate(quarters):
            tm = GT + (k & 1) * 4; ac = acc(phi, mu) + 4 * q; ho = GT + 8 + ((k >> 1) & 1) * 4
            L = []
            for j in range(4): L.append(f"v_mul_f32 v{tm+j}, v{ac+j}, v{ac+j}")
            for j in range(4): L.append(f"v_fma_f32 v{tm+j}, v{tm+j}, v{K2}, v{K1}")
            for j in range(4): L.append(f"v_mul_f32 v{tm+j}, v{tm+j}, v{ac+j}")
            for j in range(4): L.append(f"v_exp_f32 v{tm+j}, v{tm+j}")
            for j in range(4): L.append(f"v_fma_f32 v{tm+j}, v{tm+j}, v{IA}, v{IA}")
            for j in range(4): L.append(f"v_rcp_f32 v{tm+j}, v{tm+j}")
            for j in range(4): L.append(f"v_mul_f32 v{tm+j}, v{tm+j}, v{ac+j}")
            for j in range(2): L.append(f"v_cvt_pk_bf16_f32 v{ho + (q&1)*2 + j}, v{tm+2*j}, v{tm+2*j+1}")
            for l in L: ops.append(lambda l=l: p(l))
            if q & 1:
                def st(mu=mu, q=q, ho=ho):
                    p(f"buffer_store_dwordx4 {vr(ho,4)}, v{vHo}, s[4:7], s72 offen offset:{mu*2048 + (q>>1)*1024} sc1")
                    vm.issue(('hst', phi))
                ops.append(st)
        return ops
    def flag(phi, cnt, tg):
        p(f"""v_mov_b32 v{tg}, s{S_TAGA}
        v_mov_b32 v{tg+1}, s{S_TAGB}
        s_lshl_b32 s65, s60, 2
        s_add_u32 s65, s65, s{S_WAVE}
        s_lshl_b32 s65, s65, 6
        s_add_u32 s65, s65, {G.HFLAG + phi*G.HFLAG1}
        v_mov_b32 v{t0}, 0
        s_mov_b64 exec, 1
        buffer_store_dwordx2 {vr(tg,2)}, v{t0}, s[4:7], s65 offen sc1
        s_mov_b64 exec, -1""")
        cnt.issue(('flag', phi))
    def lines(txt): return [(lambda l=l: p(l)) for l in txt.strip().split('\n')]
    vt_txt = f"""v_lshrrev_b32 v{t2}, 5, v{lane}
        v_lshlrev_b32 v{t2}, 9, v{t2}
        v_bfe_u32 v{t3}, v{lane}, 2, 2
        v_lshl_add_u32 v{t2}, v{t3}, 7, v{t2}
        v_and_b32 v{t3}, 1, v{lane}
        v_lshl_add_u32 v{t2}, v{t3}, 6, v{t2}
        v_bfe_u32 v{t3}, v{lane}, 4, 1
        v_lshl_add_u32 v{t2}, v{t3}, 4, v{t2}
        v_bfe_u32 v{t3}, v{lane}, 1, 1
        v_lshl_add_u32 v{t2}, v{t3}, 3, v{t2}
        v_bfe_u32 v{t3}, v{lane}, 3, 1
        v_xor_b32 v{t3}, s67, v{t3}
        v_lshl_add_u32 v{t2}, v{t3}, 5, v{t2}
        v_add_u32 v{vT}, s71, v{t2}
        v_xor_b32 v{vT+1}, 32, v{vT}
        v_min_u32 v{t3}, 27, v{lane}
        v_lshrrev_b32 v{t2}, 1, v{t3}
        v_mul_u32_u24 v{vFo}, 37, v{t2}
        v_lshrrev_b32 v{vFo}, 8, v{vFo}
        v_mul_u32_u24 v{vFo+1}, 7, v{vFo}
        v_sub_u32 v{t2}, v{t2}, v{vFo+1}
        s_lshr_b32 s28, s78, 1
        s_and_b32 s29, s28, 3
        s_mul_i32 s29, s29, 7
        v_add_u32 v{t2}, s29, v{t2}
        s_lshr_b32 s28, s28, 2
        s_lshl_b32 s28, s28, 1
        v_add_u32 v{vFo}, s28, v{vFo}
        v_lshl_add_u32 v{t2}, v{t2}, 3, v{vFo}
        s_and_b32 s28, s78, 1
        s_lshl_b32 s28, s28, 1
        v_and_b32 v{t3}, 1, v{t3}
        v_add_u32 v{t3}, s28, v{t3}
        v_lshl_add_u32 v{t2}, v{t2}, 2, v{t3}
        v_lshlrev_b32 v{vFo}, 6, v{t2}
        s_mul_i32 s30, s78, {2*112*1024}
        s_lshl_b32 s28, s{S_WAVE}, 10
        s_add_u32 s30, s30, s28
        s_add_u32 s30, s30, {G.HB}
        s_mul_i32 s31, s66, {112*1024}
        s_sub_u32 s32, {112*1024}, s31"""
    NK_R = cfg.nkr
    BLK = lambda i: X + 8 * i
    wblk = {k: BLK(2 + k) for k in range(NK_R)}
    def rd_w2(k, dst, lgc, mds=(0, 1)):
        u = unit_of[('w2', k)]
        for md in mds:
            for rho in range(2):
                p(f"ds_read_b64_tr_b16 {vr(dst + md*4 + rho*2, 2)}, v{vT+md} offset:{u*2048 + rho*1024}")
                lgc.issue(('w2r', k))
    isL = lambda k: NK_R <= k < NK_R + 10
    def ld_raw(k, cnt):
        def f():
            p(f"""s_add_u32 s37, s73, {64*g2_phys(k)*1024}
            buffer_load_dwordx4 {vr(wblk[k],4)}, v{vW2o}, s[52:55], s37 offen""")
            cnt.issue(('w2', k))
        def g():
            p(f"buffer_load_dwordx4 {vr(wblk[k]+4,4)}, v{vW2o+1}, s[52:55], s37 offen offset:1024")
            cnt.issue(('w2', k))
        return [f, g]
    SCR = []
    def bounce_w(k):
        u = SCR[k & 1]; unit_of[('w2', k)] = u
        for i in range(2):
            p(f"ds_write_b128 v{vBw}, {vr(wblk[k]+4*i,4)} offset:{u*2048 + i*1024}"); lg.issue(('w2w', k))
    def mv(k):
        def f():
            while vm.ops.count(('w2', k)) < 2: hi.popleft()()
            vm.wait(('w2', k)); rd_w2(k, wblk[k], lg)
        def g():
            lg.wait(('w2r', k)); free_units.append(unit_of[('w2', k)]); refill(hi, vm)
        return f, g
    FB_ = {0: (G.HFLAG, vFo), 1: (G.HFLAG + G.HFLAG1, vFo), 2: (G.SFLAG, vFo + 1)}
    def poll_issue(phi, cnt):
        p(f"s_mov_b32 s65, {FB_[phi][0]}\n buffer_load_dwordx2 {vr(FL,2)}, v{FB_[phi][1]}, s[4:7], s65 offen sc1")
        cnt.issue(('poll', phi))
    def poll_check(phi, cnt, sfx=''):
        p(f"s_mov_b32 s69, 0\nL_a_hpoll{phi}{sfx}:")
        cnt.wait(('poll', phi))
        p(f"""v_xor_b32 v{t0}, s{S_TAGA}, v{FL}
        v_xor_b32 v{t1}, s{S_TAGB}, v{FL+1}
        v_or_b32 v{t0}, v{t0}, v{t1}
        v_cmp_ne_u32 vcc, 0, v{t0}
        s_add_u32 s69, s69, 1
        s_cmp_eq_u64 vcc, 0
        s_cbranch_scc1 L_a_hok{phi}{sfx}
        s_cmp_ge_u32 s69, {G.SPIN_MAX}
        s_cbranch_scc1 L_a_hok{phi}{sfx}
        s_mov_b32 s65, {FB_[phi][0]}
        s_sleep 1
        buffer_load_dwordx2 {vr(FL,2)}, v{FB_[phi][1]}, s[4:7], s65 offen sc1
        s_waitcnt vmcnt(0)
        s_branch L_a_hpoll{phi}{sfx}
L_a_hok{phi}{sfx}:""")
    hblk = {}; nh = [0]; lim = [14]
    hfree = deque([FR, FR + 8, FR + 16] + [BLK(i) for i in range(2 + NK_R, 16)])
    WF = [hfree.pop() for _ in range(cfg.wd + 1)]
    def ld_h1(k, r, cnt, nt):
        if nt == 0: p(f"s_add_u32 s36, s30, {g2_phys(k)*4096}")
        p(f"buffer_load_dwordx4 {vr(r + nt*4, 4)}, v{vH[nt]}, s[4:7], s36 offen sc1")
        cnt.issue(('h', k))
    def ld_h(k, r, cnt):
        ld_h1(k, r, cnt, 0); ld_h1(k, r, cnt, 1)
    def ld_h_all():
        while hfree and nh[0] < lim[0]:
            k = nh[0]; nh[0] += 1
            r = hfree.popleft(); hblk[k] = r
            hi.append(lambda k=k, r=r: ld_h1(k, r, vm, 0))
            hi.append(lambda k=k, r=r: ld_h1(k, r, vm, 1))
    vBw = S2 + 7
    vh_txt = f"""v_add_u32 v{vBw}, s71, v{vHo}
        v_add_u32 v{vH[0]}, s31, v{vHo}
        v_add_u32 v{vH[1]}, s32, v{vHo}"""
    vm.wait('gen')
    G.make_tags(p, vgen)
    for f in x_drain(0): f()
    stamp(p, 1)
    vm.wait(('w1', 0))
    p("s_barrier")
    for n in range(PF): rd_frag(n)
    x_next(0)()
    flagged = [False]; mvd = [0]; issued_at = {}; delayed = deque()
    for n in range(64):
        t, sg = n >> 2, n & 3
        phi, kc = t >> 3, t & 7
        if sg == 0 and t + 1 < 8:
            for f in x_drain(t + 1): hi.append(f)
        if sg == 2 and t + 1 < 8: hi.append(x_next(t + 1))
        if n == cfg.gstart - 8:
            def l0():
                ld_cf(0, True)
                for _ in range(3): vm.issue(('cf', 0))
            hi.append(l0)
        if n == 29:
            for f in lines(vt_txt): lo.append(f)
        if n == cfg.gstart:
            while lo: lo.popleft()()
            lo.append(lambda: corr(0))
            def l1():
                ld_cf(1, False)
                for _ in range(2): vm.issue(('cf', 1))
            for _ in range(4): lo.append(lambda: None)
            lo.append(l1)
            for f in gelu_ops(0): lo.append(f)
        if phi == 1:
            while mvd[0] < NK_R and 2 + mvd[0] < 2 * kc:
                for f in ld_raw(mvd[0], vm): hi.append(f)
                mvd[0] += 1
        m = n + PF
        if m < 64 and (m & 3) == 0:
            tn = m >> 2
            while vm.ops.count(('w1', tn)) < 2: pump(1)
            vm.wait(('w1', tn))
            p("s_barrier")
            if tn >= 2:
                free_units.append(unit_of[('w1', tn - 2)]); refill(hi, vm)
        if phi == 0 and sg == 0:
            while ('xr', t) not in lg.ops: pump(1)
            lg.wait(('xr', t))
        lg.wait(('fr', n))
        b = FR + (n % 3) * 8
        first = (kc == 0 and sg == 0)
        for mu in range(2):
            cc = '0' if first else vr(acc(phi, mu), 16)
            p(f"v_mfma_f32_32x32x16_bf16 {vr(acc(phi,mu),16)}, {vr(b+mu*4,4)}, {vr(xr(kc, sg),4)}, {cc}")
            if m < 64: rd_frag(m, (mu,))
            if hi: pump(1, max(0, cfg.glo - 2))
            else: pump(0, cfg.glo)
        if n >= cfg.fl0 and not lo and not flagged[0]:
            vm.wait(('hst', 0)); flag(0, vm, GT); flagged[0] = True
        if cfg.fine and sg == 3 and t % 2 == 1 and t < 15: stamp(p, 2 + t // 2)
    while lo: lo.popleft()()
    if cfg.fine:
        stamp(p, 9)
        stamp = lambda p, k: None
    corr(1)
    if not flagged[0]:
        vm.wait(('hst', 0)); flag(0, vm, FR)
    p("s_barrier")
    stamp(p, 2)
    SCR += [unit_of[('w1', 14)], unit_of[('w1', 15)]]
    while mvd[0] < NK_R:
        for f in ld_raw(mvd[0], vm): hi.append(f)
        mvd[0] += 1
    p(vh_txt)
    g1 = gelu_ops(1)
    pc = len(g1) * cfg.p0c // 100
    poll_issue(0, vm)
    for gi, g in enumerate(g1):
        if gi == pc:
            poll_check(0, vm)
            dm = list(hi); hi.clear(); ld_h_all()
            for f in dm: hi.append(f)
        g()
        if hi and gi % cfg.gdm == 0: hi.popleft()()
    while any(vm.ops.count(o) == 1 for o in vm.ops if isinstance(o, tuple) and o[0] in ('w2', 'h')): hi.popleft()()
    for _ in range(2 * cfg.nh0):
        if hi: hi.popleft()()
    if cfg.kfl1 < 0:
        vm.wait(('hst', 1)); flag(1, vm, TG)
        hfree.append(BLK(1))
    hfree.append(BLK(0))
    ld_h_all()
    emitted = set(vm.ops)
    if cfg.fine2:
        stamp(p, 7)
        stamp = lambda p, k: None
    stamp(p, 3)
    p("s_branch L_a_g2")
    p("L_a_nog1:")
    for _ in range(cfg.dI): p("s_sleep 32")
    vm2 = Cnt(p, 'vmcnt', 63); lg2 = Cnt(p, 'lgkmcnt', 15)
    p(f"""s_sub_u32 s63, s62, 28
    s_lshl_b32 s63, s63, 3
    s_add_u32 s63, s63, s61
    s_cmp_ge_u32 s63, 28
    s_cbranch_scc1 L_a_nocf
    s_lshr_b32 s64, s63, 1
    s_and_b32 s66, s63, 1
    s_lshl_b32 s70, s66, 2
    s_add_u32 s70, s70, s{S_WAVE}
    s_mul_i32 s70, s70, {64*3584}
    s_lshl_b32 s65, s64, 8
    s_add_u32 s70, s70, s65""")
    for u in range(8):
        p(f"""s_add_u32 m0, s71, {u*2048}
        s_add_u32 s28, s70, {(u & 3)*16*3584 + (u >> 2)*128}
        buffer_load_dwordx4 v{vWo}, s[12:15], s28 offen lds
        buffer_load_dwordx4 v{vWo+1}, s[12:15], s28 offen offset:1024 lds""")
        vm2.issue(('c', u)); vm2.issue(('c', u))
        if u == 3:
            vb = X + 12
            p(f"""v_lshl_add_u32 v{t0}, v{lane}, 1, s65
            global_load_ushort v{vb}, v{t0}, {sr(PTR(11),2)}
            global_load_ushort v{vb+1}, v{t0}, {sr(PTR(11),2)} offset:128""")
            vm2.issue('b1'); vm2.issue('b1')
    SEL = X; ONE = X + 4; CB = X + 24; vj = X + 14; vq = X + 15; vcw = X + 16; vcr = X + 17; vco = X + 19
    va_setup(vA)
    p(f"""v_add_u32 v{vA}, s71, v{vA}
    v_xor_b32 v{vA+1}, 64, v{vA}
    v_and_b32 v{vj}, 15, v{lane}
    v_lshrrev_b32 v{vq}, 4, v{lane}
    v_xor_b32 v{t0}, v{vq}, v{vj}
    v_and_b32 v{t0}, 1, v{t0}
    v_cmp_eq_u32 vcc, 0, v{t0}
    v_mov_b32 v{t1}, 0x3f803f80
    v_cndmask_b32 v{SEL}, 0, v{t1}, vcc
    v_mov_b32 v{SEL+1}, v{SEL}
    v_mov_b32 v{SEL+2}, v{SEL}
    v_mov_b32 v{SEL+3}, v{SEL}
    v_lshlrev_b32 v{vcw}, 6, v{vj}
    v_lshl_add_u32 v{vcw}, v{vq}, 4, v{vcw}
    v_add_u32 v{vcw}, s71, v{vcw}
    v_lshlrev_b32 v{vcr}, 2, v{lane}
    v_add_u32 v{vcr+1}, {2*REGS}, v{vcr}
    v_and_b32 v{t0}, 31, v{lane}
    v_lshlrev_b32 v{vco}, 4, v{t0}
    v_lshrrev_b32 v{t0}, 5, v{lane}
    v_lshl_add_u32 v{vco}, v{t0}, 10, v{vco}
    s_lshl_b32 s29, s64, 12
    s_lshl_b32 s28, s66, 9
    s_add_u32 s29, s29, s28
    s_add_u32 s29, s29, {G.CF}
    s_mov_b32 s74, 0x00030003
    s_mov_b32 s75, 0x00030003
    s_sub_u32 s28, s66, 1""")
    for ph in range(2):
        for u in range(4 * ph, 4 * ph + 4):
            vm2.wait(('c', u))
            for mu in range(2):
                for rho in range(2):
                    p(f"ds_read_b64_tr_b16 {vr(CB + (u&3)*8 + mu*4 + rho*2, 2)}, v{vA+mu} offset:{u*2048 + rho*512}")
                    lg2.issue(('cr', u))
        for u in range(4 * ph, 4 * ph + 4):
            lg2.wait(('cr', u))
            for mu in range(2):
                cc = '0' if (u & 3) == 0 else vr(ONE + 4 * mu, 4)
                p(f"v_mfma_f32_16x16x32_bf16 {vr(ONE+4*mu,4)}, {vr(CB + (u&3)*8 + mu*4,4)}, {vr(SEL,4)}, {cc}")
        if ph == 0:
            vm2.wait('b1'); G.make_tags(p, vgen)
        off = (8 + ph) * 2048
        p(f"""s_mov_b64 exec, s[74:75]
        ds_write_b128 v{vcw}, {vr(ONE,4)} offset:{off}
        ds_write_b128 v{vcw}, {vr(ONE+4,4)} offset:{off+128}
        s_mov_b64 exec, -1
        v_and_b32 v{vb+ph}, s28, v{vb+ph}
        s_waitcnt lgkmcnt(0)
        s_barrier
        ds_read_b32 v{CB}, v{vcr} offset:{off}
        ds_read_b32 v{CB+1}, v{vcr} offset:{off + REGS}
        ds_read_b32 v{CB+2}, v{vcr+1} offset:{off}
        ds_read_b32 v{CB+3}, v{vcr+1} offset:{off + REGS}
        s_waitcnt lgkmcnt(0)
        v_add_f32 v{CB}, v{CB}, v{CB+1}
        v_add_f32 v{CB+2}, v{CB+2}, v{CB+3}
        v_add_f32 v{CB}, v{CB}, v{CB+2}
        v_cvt_pk_bf16_f32 v{CB+1}, v{CB}, v{CB}
        v_and_b32 v{CB+2}, 0xffff0000, v{CB+1}
        v_sub_f32 v{CB+3}, v{CB}, v{CB+2}
        v_cvt_pk_bf16_f32 v{CB+36}, v{CB}, v{CB+3}
        v_and_b32 v{CB+1}, 0xffff, v{CB+1}
        v_lshl_or_b32 v{CB+37}, v{vb+ph}, 16, v{CB+1}
        v_mov_b32 v{CB+38}, v{vb+ph}
        v_mov_b32 v{CB+39}, s{S_TAGA}
        s_cmp_lg_u32 s{S_WAVE}, {ph}
        s_cbranch_scc1 L_a_nocf2{ph}
        buffer_store_dwordx4 {vr(CB+36,4)}, v{vco}, s[4:7], s29 offen offset:{ph*2048} sc1
L_a_nocf2{ph}:""")
        lg2.done = len(lg2.ops)
        stamp(p, 1 + ph)
    p(f"""s_barrier
L_a_nocf:
    s_waitcnt vmcnt(0)
    s_barrier""")
    G.make_tags(p, vgen)
    g2_setup()
    p(vt_txt); p(vh_txt)
    vm2 = Cnt(p, 'vmcnt', 63); lg2 = Cnt(p, 'lgkmcnt', 15)
    save_units = dict(unit_of)
    flag(0, vm2, TG)
    if cfg.kfl1 < 0: flag(1, vm2, TG)
    for k in range(NK_R):
        if ('w2', k) in emitted:
            for f in ld_raw(k, vm2): f()
    unit_of.update(save_units)
    for (kind, k), u in sorted(save_units.items()):
        if kind == 'w2' and k >= NK_R and ('w2', k) in emitted:
            for f in dma_item(('w2', k), u, vm2): f()
    poll_issue(0, vm2); poll_check(0, vm2, 'i')
    for k in sorted(hblk):
        if ('h', k) in emitted: ld_h(k, hblk[k], vm2)
    vm2.wait_all()
    p("L_a_g2:")
    ACC2 = ACC
    for r, n in ((vXo, 4), (vWo, 2), (AB_, 4)): V.free(r, n)
    fin_txt = f"""v_and_b32 v{t2}, 31, v{lane}
    v_lshlrev_b32 v{vOo}, 10, v{t2}
    v_lshrrev_b32 v{t2}, 5, v{lane}
    v_lshl_add_u32 v{vOo}, v{t2}, 6, v{vOo}
    s_lshl_b32 s26, s78, 16
    s_lshl_b32 s28, s66, 15
    s_add_u32 s26, s26, s28
    s_lshl_b32 s29, s79, 7
    s_lshl_b32 s28, s67, 5
    s_add_u32 s29, s29, s28
    s_add_u32 s26, s26, s29
    v_lshl_add_u32 v{vB2o}, v{t2}, 6, s29
    v_lshrrev_b32 v{t2}, 2, v{lane}
    v_lshlrev_b32 v{vSo}, 12, v{t2}
    v_and_b32 v{t2}, 3, v{lane}
    v_lshl_add_u32 v{vSo}, v{t2}, 4, v{vSo}
    s_lshl_b32 s27, s79, 18
    s_lshl_b32 s28, s67, 16
    s_add_u32 s27, s27, s28
    s_lshl_b32 s28, s78, 7
    s_add_u32 s27, s27, s28
    s_lshl_b32 s28, s66, 6
    s_add_u32 s27, s27, s28
    s_add_u32 s27, s27, {G.ST}
    v_add_u32 v{vSw}, s71, v{vHo}
    v_and_b32 v{t2}, 15, v{lane}
    v_bfe_u32 v{t3}, v{lane}, 4, 1
    v_lshl_add_u32 v{t2}, v{t3}, 5, v{t2}
    s_lshl_b32 s28, s79, 6
    s_lshl_b32 s29, s67, 4
    s_add_u32 s28, s28, s29
    v_add_u32 v{t2}, s28, v{t2}
    s_lshr_b32 s28, s78, 4
    s_lshl_b32 s28, s28, 6
    v_lshl_add_u32 v{vFo+1}, v{t2}, 7, s28
    v_lshrrev_b32 v{t2}, 5, v{lane}
    v_lshlrev_b32 v{t2}, 10, v{t2}
    v_bfe_u32 v{t3}, v{lane}, 2, 2
    v_lshl_add_u32 v{t2}, v{t3}, 6, v{t2}
    v_bfe_u32 v{t3}, v{lane}, 4, 1
    v_lshl_add_u32 v{t2}, v{t3}, 5, v{t2}
    v_and_b32 v{t3}, 3, v{lane}
    v_lshl_add_u32 v{t2}, v{t3}, 3, v{t2}
    v_add_u32 v{vSr}, s71, v{t2}"""
    for f in lines(fin_txt): lo.append(f)
    def ld_s(dst):
        for i in range(2):
            p(f"s_add_u32 s65, s27, {i*32*4096}\n buffer_load_dwordx4 {vr(dst+4*i,4)}, v{vSo}, s[4:7], s65 offen sc1")
            vm.issue('s')
    def a2(md, nt): return ACC2 + (nt * 2 + md) * 16
    def unpack_l(dst, src, n):
        out = []
        for q in range(n):
            out.append(f"v_lshlrev_b32 v{dst(2*q)}, 16, v{src+q}"); out.append(f"v_and_b32 v{dst(2*q+1)}, 0xffff0000, v{src+q}")
        return out
    lateR = deque(range(NK_R + 10, 28))
    def wsrc(k): return WF[k % (cfg.wd + 1)]
    XE = B2E = SG = None
    def prep(k):
        out = []
        def w():
            while vm.ops.count(('w2', k)) < 2: hi.popleft()()
            vm.wait(('w2', k))
            if not isL(k):
                bounce_w(k); hfree.append(wblk[k])
        out.append(w)
        out.append(lambda: rd_w2(k, wsrc(k), lg, (1,)))
        out.append(lambda: rd_w2(k, wsrc(k), lg, (0,)))
        return out
    for k in range(cfg.wd):
        for f in prep(k): f()
    for k in range(28):
        if k == cfg.kfl1:
            vm.wait(('hst', 1)); flag(1, vm, TG)
            hfree.append(BLK(1)); ld_h_all()
        if k == cfg.kpoll:
            while hi: hi.popleft()()
            stamp(p, 4)
            poll_issue(1, vm)
        if k == min(cfg.kpoll + 2, 14):
            while hi: hi.popleft()()
            assert not lateR and XE is not None, (lateR, XE)
            poll_check(1, vm); lim[0] = 28; ld_h_all()
            for _ in range(2 * cfg.nh1):
                if hi: hi.popleft()()
            stamp(p, 5)
        if k == 15:
            vm.wait('xe')
            for q in range(8):
                p(f"""v_lshlrev_b32 v{t2}, 16, v{B2E+q}
                v_and_b32 v{t3}, 0xffff0000, v{B2E+q}
                v_add_f32 v{ACC2+2*q}, v{ACC2+2*q}, v{t2}
                v_add_f32 v{ACC2+2*q+1}, v{ACC2+2*q+1}, v{t3}""")
            hfree.append(B2E)
        nx = deque(prep(k + cfg.wd)) if k + cfg.wd < 28 else deque()
        while vm.ops.count(('h', k)) < 2: hi.popleft()()
        vm.wait(('h', k))
        lg.wait(('w2r', k))
        if isL(k):
            free_units.append(unit_of[('w2', k)]); refill(hi, vm)
        for nt in (1, 0):
            for md in (1, 0):
                cc = '0' if k == 0 else vr(a2(md, nt), 16)
                p(f"v_mfma_f32_32x32x16_bf16 {vr(a2(md,nt),16)}, {vr(wsrc(k)+md*4,4)}, {vr(hblk[k] + nt*4, 4)}, {cc}")
                if nx: nx.popleft()()
                if hi: pump(1, 1)
                else: pump(0, 4)
        hfree.append(hblk[k])
        ld_h_all()
        if lim[0] == 14 and nh[0] == 14:
            while lateR and hfree:
                k2 = lateR.popleft(); wblk[k2] = hfree.popleft()
                for f in ld_raw(k2, vm): hi.append(f)
            if not lateR and XE is None and len(hfree) >= 3 and not lo:
                SG = hfree.popleft(); XE = hfree.popleft(); B2E = hfree.popleft()
                for l in f"""buffer_load_dwordx4 {vr(XE,4)}, v{vOo}, s[8:11], s26 offen
                buffer_load_dwordx4 {vr(XE+4,4)}, v{vOo}, s[8:11], s26 offen offset:16
                global_load_dwordx4 {vr(B2E,4)}, v{vB2o}, {sr(PTR(13),2)}
                global_load_dwordx4 {vr(B2E+4,4)}, v{vB2o}, {sr(PTR(13),2)} offset:16""".split('\n'):
                    hi.append(lambda l=l: (p(l), vm.issue('xe')))
        if k == cfg.ks:
            drain_q(); poll_issue(2, vm)
        if k == cfg.ks + 3:
            drain_q(); poll_check(2, vm); ld_s(SG)
        if k == 24:
            XF = [hfree.popleft(), hfree.popleft()]
            xf = lambda i: XF[i >> 3] + (i & 7)
            for l in unpack_l(xf, XE, 8): lo.append(lambda l=l: p(l))
    drain_q()
    stamp(p, 6)
    SV = hfree.popleft(); OUT = hfree.popleft()
    TMb = [hfree.popleft(), hfree.popleft()]; tm = lambda i: TMb[i >> 3] + (i & 7)
    SFb = [hfree.popleft(), hfree.popleft()]; sf = lambda i: SFb[i >> 3] + (i & 7)
    OWN = ACC2
    p(f"v_add_u32 v{t1}, s71, v{vHo}")
    for T in (3, 2, 1):
        for q in range(4): p(f"ds_write_b128 v{t1}, {vr(ACC2 + T*16 + 4*q, 4)} offset:{T*4096 + q*1024}")
    vm.wait('s')
    for i in range(2): p(f"ds_write_b128 v{vSw}, {vr(SG+4*i,4)} offset:{i*1024}")
    for q in range(4): p(f"ds_read_b64_tr_b16 {vr(SV+2*q,2)}, v{vSr} offset:{q*256}")
    for k in range(1, 4):
        p(f"""s_xor_b32 s65, s{S_WAVE}, {k}
        s_mul_i32 s65, s65, {REGS}
        v_add_u32 v{t0+k}, s65, v{vHo}""")
    p("s_waitcnt lgkmcnt(0)\n s_barrier")
    for k in range(1, 4):
        for q in range(4): p(f"ds_read_b128 {vr(ACC2 + k*16 + 4*q, 4)}, v{t0+k} offset:{k*4096 + q*1024}")
    for l in unpack_l(sf, SV, 8): p(l)
    for k in range(1, 4):
        p(f"s_waitcnt lgkmcnt({12 - 4*k})")
        for q in range(16): p(f"v_add_f32 v{OWN+q}, v{OWN+q}, v{ACC2+k*16+q}")
    for q in range(16): p(f"v_mul_f32 v{tm(q)}, {f32(-G.LOG2E)}, v{OWN+q}")
    for q in range(16): p(f"v_exp_f32 v{tm(q)}, v{tm(q)}")
    for q in range(16): p(f"v_mul_f32 v{OWN+q}, v{OWN+q}, v{sf(q)}")
    for q in range(16): p(f"v_add_f32 v{tm(q)}, 1.0, v{tm(q)}")
    for q in range(16): p(f"v_rcp_f32 v{tm(q)}, v{tm(q)}")
    for h in range(2):
        for q in range(8 * h, 8 * h + 8): p(f"v_fma_f32 v{OWN+q}, v{OWN+q}, v{tm(q)}, v{xf(q)}")
        for q in range(4 * h, 4 * h + 4): p(f"v_cvt_pk_bf16_f32 v{OUT+q}, v{OWN+2*q}, v{OWN+2*q+1}")
        p(f"buffer_store_dwordx4 {vr(OUT+4*h,4)}, v{vOo}, s[56:59], s26 offen offset:{16*h}")
    stamp(p, 7)
    G.stamps_out(p, 10 if cfg.fine else 8, ACC2 + 16)
    p("s_endpgm")
    return V.hi_used
```

```python
from asmlib import *
import math
from collections import deque
from roleA import Cnt

XBL = 0; XCH = 4608
TT = 9216 + 16; TCH = 1344
KC = 12288; KCS = 4160; KCH = 4 * KCS
LNB = 81920 - 8192
EI = KC; ERS = 528; ECH = 53 * ERS + 48
assert EI + 2 * ECH <= LNB

def role_B(p, vgen, G):
    S_WAVE, S_TAGA, S_TAGB = G.S_WAVE, G.S_TAGA, G.S_TAGB
    f32 = G.f32; cfg = G.cfg; stamp = G.stamp; srd = G.srd; PTR = G.PTR; LOG2E = G.LOG2E
    V = Regs('v', 4, 240); a = V.alloc
    DUMH = 240
    lane = 1
    vm = Cnt(p, 'vmcnt', 63); lg = Cnt(p, 'lgkmcnt', 15)
    vm.issue('cpf'); vm.issue('gen')
    if cfg.tlb:
        for _ in range(4): vm.issue('tlb')
    t0 = a(); t1 = a(); t2 = a(); t3 = a()
    vL16 = a(); vLd = a(); vDk = a(); vi = a(); vg = a(); vXo = a(); vKW = a(2); vA = a(); vB = a()
    XA = a(4, 2); XB = a(4, 2); PR = a(6); PQ = a(4)
    srd(p, 8, 0, 2048 * 1024)
    p(f"""s_and_b32 s53, s2, 7
    s_lshl_b32 s53, s53, 5
    s_lshr_b32 s60, s2, 3
    s_add_u32 s53, s53, s60
    s_lshl_b32 s61, s53, 3
    s_lshl_b32 s62, s{S_WAVE}, 1
    s_add_u32 s61, s61, s62
    s_lshl_b32 s62, s61, 10
    v_lshlrev_b32 v{vL16}, 4, v{lane}
    buffer_load_dwordx4 {vr(XA,4)}, v{vL16}, s[8:11], s62 offen
    buffer_load_dwordx4 {vr(XB,4)}, v{vL16}, s[8:11], s62 offen offset:1024
    s_and_b32 s59, s2, 7
    s_lshl_b32 s59, s59, 5
    s_lshr_b32 s60, s2, 3
    s_add_u32 s59, s59, s60
    s_lshr_b32 s57, s{S_WAVE}, 1
    s_and_b32 s58, s{S_WAVE}, 1
    s_lshl_b32 s63, s59, 1
    s_add_u32 s63, s63, s57
    s_lshl_b32 s60, s63, 8
    s_lshl_b32 s62, s58, 7
    s_add_u32 s62, s62, s60
    v_lshl_add_u32 v{t0}, v{lane}, 1, s62
    v_xor_b32 v{t2}, 128, v{t0}
    s_lshl_b32 s60, s63, 1
    v_mov_b32 v{t1}, s60""")
    vm.issue('x'); vm.issue('x')
    if cfg.touch1:
        DUM1 = DUMH + 8
        srd(p, 12, 10, 512 * 3584)
        p(f"""s_mul_i32 s54, s2, 7168
        s_lshl_b32 s55, s{S_WAVE}, 11
        s_add_u32 s54, s54, s55
        buffer_load_dwordx4 {vr(DUM1,4)}, v{vL16}, s[12:15], s54 offen
        buffer_load_dwordx4 {vr(DUM1+4,4)}, v{vL16}, s[12:15], s54 offen offset:1024""")
        vm.issue('touch'); vm.issue('touch')
    vPa = a(3)
    p(f"v_mov_b32 v{vPa}, v{t0}\n v_mov_b32 v{vPa+1}, v{t1}\n v_mov_b32 v{vPa+2}, v{t2}")
    def par_loads():
        for k in range(6):
            p(f"global_load_ushort v{PR+k}, v{vPa}, {sr(PTR(1+k),2)}"); vm.issue('par')
        for k in range(4):
            p(f"global_load_ushort v{PQ+k}, v{vPa+2}, {sr(PTR(3+k),2)}"); vm.issue('par')
        p(f"global_load_ushort v{vLd}, v{vPa+1}, {sr(PTR(7),2)}"); vm.issue('par')
        p(f"global_load_ushort v{vDk}, v{vPa+1}, {sr(PTR(8),2)}"); vm.issue('par')
    if not cfg.parlate: par_loads()
    def touch2():
        if True:
            DUM = DUMH
            srd(p, 12, 12, 1792 * 1024)
            p(f"""s_mul_i32 s60, s2, 7168
            s_lshl_b32 s62, s{S_WAVE}, 11
            s_add_u32 s60, s60, s62
            buffer_load_dwordx4 {vr(DUM,4)}, v{vL16}, s[12:15], s60 offen
            buffer_load_dwordx4 {vr(DUM+4,4)}, v{vL16}, s[12:15], s60 offen offset:1024""")
            vm.issue('touch'); vm.issue('touch')
    if cfg.touch == 1 and not cfg.parlate: touch2()
    GA = a(11); aT = a(4); vEw = a(); vEr = a(2); vXw = a(); vXe = a(); vSo = a(); vLr = a(); vLw = a(); ZR = a(4, 2)
    p(f"""v_and_b32 v{vi}, 15, v{lane}
    v_lshrrev_b32 v{vg}, 4, v{lane}
    v_lshlrev_b32 v{vKW}, 4, v0
    s_lshl_b32 s60, s{S_WAVE}, 11
    s_add_u32 s60, s60, {LNB}
    v_lshl_add_u32 v{vLw}, v{lane}, 5, s60
    v_lshlrev_b32 v{vLr}, 2, v0
    v_add_u32 v{vLr}, {LNB}, v{vLr}
    s_mov_b32 s70, 0xffff0000
    s_mov_b32 s71, 0xffff0000""")
    def late_consts():
        p(f"v_lshlrev_b32 v{t3}, 3, v0")
        for e in range(0, 12, 2):
            hs = [h for h in range(2) if e + h < 11]
            for h in hs:
                p(f"v_sub_u32 v{GA+e+h}, {2047 - (e + h)}, v{t3}")
                p(f"v_max_i32 v{t0+h}, 128, v{GA+e+h}")
                p(f"v_cvt_f32_i32 v{t0+h}, v{t0+h}")
            p(f"""v_cvt_pk_bf16_f32 v{t0}, v{t0}, v{t1}
            v_lshrrev_b32 v{t1}, 16, v{t0}
            v_and_b32 v{t0}, 0xffff, v{t0}""")
            for h in hs:
                p(f"v_subrev_u32 v{t0+h}, 0x4280, v{t0+h}")
                p(f"v_min_i32 v{GA+e+h}, v{t0+h}, v{GA+e+h}")
                p(f"v_lshl_add_u32 v{GA+e+h}, v{GA+e+h}, 1, 16")
        p(f"""s_lshl_b32 s60, s58, 4
        v_add_u32 v{t3}, s60, v{vi}
        s_mul_i32 s60, s57, {TCH}
        v_lshlrev_b32 v{t0}, 4, v{t3}
        v_lshl_add_u32 v{aT}, v{vg}, 3, v{t0}
        v_lshlrev_b32 v{t0}, 3, v{t3}
        v_add_u32 v{t0}, 512, v{t0}
        v_cmp_eq_u32 vcc, 2, v{vg}
        v_cndmask_b32 v{aT}, v{aT}, v{t0}, vcc
        v_lshlrev_b32 v{t0}, 2, v{t3}
        v_add_u32 v{t0}, 768, v{t0}
        v_cmp_eq_u32 vcc, 3, v{vg}
        v_cndmask_b32 v{aT}, v{aT}, v{t0}, vcc
        v_add_u32 v{aT}, s60, v{aT}
        v_mov_b32 v{t1}, 128
        v_cndmask_b32 v{t1}, 4, v{t1}, vcc
        v_add_u32 v{aT+1}, v{aT}, v{t1}
        v_lshlrev_b32 v{t0}, 1, v{t3}
        v_add_u32 v{t0}, 1024, v{t0}
        v_mov_b32 v{t1}, {2*648 - 192}
        v_cmp_eq_u32 vcc, 0, v{vg}
        v_cndmask_b32 v{aT+3}, v{t1}, v{t0}, vcc
        v_mov_b32 v{t1}, {2*648}
        v_cndmask_b32 v{aT+2}, v{t1}, v{t0}, vcc
        v_lshl_add_u32 v{t0}, v{t3}, 2, v{vg}
        v_mov_b32 v{t1}, 1280
        v_cmp_eq_u32 vcc, 1, v{t0}
        v_cndmask_b32 v{aT+2}, v{aT+2}, v{t1}, vcc
        v_add_u32 v{aT+2}, s60, v{aT+2}
        v_add_u32 v{aT+3}, s60, v{aT+3}
        s_mul_i32 s60, s57, {ECH}
        s_lshl_b32 s62, s58, 8
        s_add_u32 s62, s62, s60
        v_lshl_add_u32 v{vEw}, v{lane}, 2, s62
        v_mul_u32_u24 v{t0}, {ERS}, v{vi}
        v_lshl_add_u32 v{t0}, v{vg}, 4, v{t0}
        v_add_u32 v{vEr+1}, s60, v{t0}
        s_mul_i32 s62, s58, {16*ERS}
        v_add_u32 v{vEr}, s62, v{vEr+1}
        v_lshrrev_b32 v{vXo}, 1, v{lane}
        v_lshlrev_b32 v{vXw}, 4, v{vXo}
        v_lshlrev_b32 v{vXo}, 13, v{vXo}
        v_and_b32 v{t0}, 1, v{lane}
        v_lshl_add_u32 v{vXo}, v{t0}, 4, v{vXo}
        v_mul_u32_u24 v{t1}, {XCH}, v{t0}
        s_lshl_b32 s60, s{S_WAVE}, 10
        v_add3_u32 v{vXw}, v{vXw}, v{t1}, s60
        s_lshl_b32 s74, s{S_WAVE}, 19
        s_lshl_b32 s60, s59, 5
        s_add_u32 s74, s74, s60
        s_add_u32 s74, s74, {G.XNT}
        s_lshr_b32 s55, s59, 5
        s_and_b32 s55, s55, 3
        s_lshl_b32 s55, s55, 14
        s_add_u32 s55, s55, {G.XFLAG}
        v_lshlrev_b32 v{vLr}, 6, v0
        s_lshl_b32 s62, s58, 8
        v_and_b32 v{vA}, 3, v{vi}
        v_mul_u32_u24 v{vA}, {KCS}, v{vA}
        v_lshl_add_u32 v{vA}, v{vg}, 4, v{vA}
        v_lshrrev_b32 v{t0}, 2, v{vi}
        v_lshlrev_b32 v{t0}, 3, v{t0}
        v_sub_u32 v{vA}, v{vA}, v{t0}
        s_mul_i32 s75, s57, {KCH}
        s_sub_u32 s75, s75, s62
        s_add_u32 s75, s75, 280
        v_add_u32 v{vA}, s75, v{vA}
        v_lshlrev_b32 v{vB}, 5, v{vi}
        v_lshl_add_u32 v{vXe}, v{vg}, 3, v{vB}
        v_lshl_add_u32 v{vB}, v{vg}, 4, v{vB}
        s_mul_i32 s75, s57, {XCH}
        s_lshl_b32 s60, s58, 11
        s_add_u32 s60, s60, s75
        v_add_u32 v{vXe}, s60, v{vXe}
        s_sub_u32 s75, s75, s62
        s_add_u32 s75, s75, {XBL + 480 - 192}
        v_add_u32 v{vB}, s75, v{vB}
        v_lshlrev_b32 v{vSo}, 5, v{vi}
        v_lshrrev_b32 v{t0}, 1, v{vg}
        v_lshl_add_u32 v{vSo}, v{t0}, 4, v{vSo}
        v_and_b32 v{t0}, 1, v{vg}
        v_lshl_add_u32 v{vSo}, v{t0}, 9, v{vSo}
        s_lshl_b32 s56, s63, 12
        s_lshl_b32 s60, s58, 11
        s_add_u32 s56, s56, s60
        s_add_u32 s56, s56, {G.ST}""")
        p(f"""v_mov_b32 v{ZR}, 0
        v_mov_b32 v{ZR+1}, 0
        v_mov_b32 v{ZR+2}, 0
        v_mov_b32 v{ZR+3}, 0
        s_mul_i32 s75, s57, {XCH}
        v_lshl_add_u32 v{t0}, v{lane}, 3, s75
        ds_write_b64 v{t0}, {vr(ZR,2)} offset:{XBL}
        s_mul_i32 s75, s57, {TCH}
        v_mov_b32 v{t0}, s75
        ds_write_b128 v{t0}, {vr(ZR,4)} offset:{TT-16}""")
        lg.issue('z'); lg.issue('z')
    P = a(16, 2); D = a(16, 2); A1 = a(2, 2); A2 = a(2, 2); B1 = a(2, 2); B2 = a(2, 2); Z2 = a(); vC0 = a(); vM = a(); vR = a(); vSD = a()
    F = a(8, 2); Gr = a(16, 2)
    if cfg.bprio: p(f"s_setprio {cfg.bprio}")
    vm.wait('x')
    if cfg.parlate:
        par_loads()
        if cfg.touch == 1: touch2()
    stamp(p, 1)
    for q in range(4):
        p(f"""v_lshlrev_b32 v{P+4*q}, 16, v{XA+q}
        v_lshlrev_b32 v{P+4*q+1}, 16, v{XB+q}
        v_and_b32 v{P+4*q+2}, 0xffff0000, v{XA+q}
        v_and_b32 v{P+4*q+3}, 0xffff0000, v{XB+q}""")
        if q == 0: p(f"v_readfirstlane_b32 s64, v{P}\n v_readfirstlane_b32 s65, v{P+1}")
    G.make_tags(p, vgen)
    for c in range(16): p(f"v_subrev_f32 v{D+c}, s{64 + (c & 1)}, v{P+c}")
    for h in range(2):
        p(f"""v_add_f32 v{A1+h}, v{D+h}, v{D+2+h}
        v_add_f32 v{B1+h}, v{D+4+h}, v{D+6+h}
        v_mul_f32 v{A2+h}, v{D+h}, v{D+h}
        v_mul_f32 v{B2+h}, v{D+2+h}, v{D+2+h}""")
    for c in range(2, 8):
        for h in range(2):
            if c >= 4: p(f"v_add_f32 v{(A1 if c % 2 == 0 else B1)+h}, v{(A1 if c % 2 == 0 else B1)+h}, v{D+2*c+h}")
            p(f"v_fmac_f32 v{(A2 if c % 2 == 0 else B2)+h}, v{D+2*c+h}, v{D+2*c+h}")
    for h in range(2):
        p(f"v_add_f32 v{A1+h}, v{A1+h}, v{B1+h}\n v_add_f32 v{A2+h}, v{A2+h}, v{B2+h}")
    p(f"""v_mov_b32 v{vC0}, s64
    s_mov_b64 exec, s[70:71]
    v_mov_b32 v{vC0}, s65
    s_mov_b64 exec, -1""")
    G.reduce4(p, A1, A2, Z2)
    def sd_of(vvar_bf, vsd):
        p(f"""v_add_f32 v{t0}, {f32(1e-5)}, v{vvar_bf}
        v_cvt_pk_bf16_f32 v{t0}, v{t0}, v{t0}
        v_lshlrev_b32 v{t0}, 16, v{t0}
        v_sqrt_f32 v{t0}, v{t0}
        v_cvt_pk_bf16_f32 v{t0}, v{t0}, v{t0}
        v_lshlrev_b32 v{vsd}, 16, v{t0}""")
    p(f"""v_mul_f32 v{A1}, {f32(1/512)}, v{A1}
    v_mul_f32 v{Z2}, {f32(1/512)}, v{Z2}
    v_fma_f32 v{Z2}, -v{A1}, v{A1}, v{Z2}
    v_max_f32 v{Z2}, 0, v{Z2}
    v_add_f32 v{A1}, v{vC0}, v{A1}
    v_cvt_pk_bf16_f32 v{t1}, v{A1}, v{Z2}
    v_lshlrev_b32 v{vM}, 16, v{t1}
    v_and_b32 v{t1}, 0xffff0000, v{t1}""")
    sd_of(t1, vSD)
    p(f"""v_rcp_f32 v{vR}, v{vSD}
    v_sub_f32 v{t2}, v{A1}, v{vM}
    v_mul_f32 v{t3}, v{vM}, -v{vR}
    v_readlane_b32 s68, v{vR}, 0
    v_readlane_b32 s69, v{vR}, 16
    v_readlane_b32 s66, v{t3}, 0
    v_readlane_b32 s67, v{t3}, 16
    v_mul_f32 v{t2}, v{t2}, v{vR}
    v_mul_f32 v{Z2}, v{Z2}, v{vR}
    v_mul_f32 v{Z2}, v{Z2}, v{vR}
    v_mov_b32 v{B1}, s66
    v_mov_b32 v{B1+1}, s67""")
    for c in range(16): p(f"v_fma_f32 v{D+c}, v{P+c}, s{68 + (c & 1)}, v{B1 + (c & 1)}")
    for c in range(8): p(f"v_cvt_pk_f16_f32 v{F+c}, v{D+2*c}, v{D+2*c+1}")
    p(f"""ds_write_b128 v{vLw}, {vr(F,4)}
    ds_write_b128 v{vLw}, {vr(F+4,4)} offset:16
    v_cvt_pk_bf16_f32 v{t1}, v{t2}, v{Z2}
    v_lshlrev_b32 v{B2}, 16, v{t1}
    v_and_b32 v{t1}, 0xffff0000, v{t1}""")
    sd_of(t1, B2 + 1)
    p(f"""v_fma_f32 v{t0}, -v{B2}, v{vSD}, -v{vM}
    v_mul_f32 v{t1}, v{vSD}, v{B2+1}
    v_cvt_pk_bf16_f32 v{Gr}, v{t0}, v{t0}
    v_cvt_pk_bf16_f32 v{t2}, v{t1}, v{t1}
    v_and_b32 v{t3}, 0xffff0000, v{Gr}
    v_sub_f32 v{t0}, v{t0}, v{t3}
    v_and_b32 v{t3}, 0xffff0000, v{t2}
    v_sub_f32 v{t2}, v{t1}, v{t3}
    v_cvt_pk_bf16_f32 v{Gr+1}, v{t0}, v{t1}
    v_cvt_pk_bf16_f32 v{Gr+2}, v{t2}, 0
    v_mov_b32 v{Gr+3}, s{S_TAGA}
    v_lshlrev_b32 v{t0}, 4, v{vg}
    s_lshl_b32 s60, s61, 4
    s_add_u32 s60, s60, {G.AB}
    s_mov_b64 exec, 0x10001
    buffer_store_dwordx4 {vr(Gr,4)}, v{t0}, s[4:7], s60 offen sc1
    s_mov_b64 exec, -1
    s_waitcnt lgkmcnt(0)
    s_barrier""")
    vm.issue('st'); lg.done = len(lg.ops)
    if cfg.bcut == 1:
        p("s_endpgm"); return V.hi_used
    G2 = P
    for i in range(2):
        p(f"ds_read2st64_b32 {vr(G2+4*i,2)}, v{vLr} offset0:{i*4} offset1:{i*4 + 8}")
        p(f"ds_read2st64_b32 {vr(G2+4*i+2,2)}, v{vLr} offset0:{i*4 + 16} offset1:{i*4 + 24}")
    p(f"""s_lshl_b32 s60, s53, 13
    s_add_u32 s60, s60, {G.XNT}
    s_add_u32 s62, s60, 4096""")
    for i in range(2):
        p(f"s_waitcnt lgkmcnt({2-2*i})")
        p(f"buffer_store_dwordx4 {vr(G2+4*i,4)}, v{vKW}, s[4:7], s{60+2*i} offen sc1"); vm.issue('st')
    stamp(p, 2)
    for r, n in ((D, 16), (A1, 2), (A2, 2), (B1, 2), (B2, 2), (Z2, 1), (vC0, 1), (vM, 1), (vR, 1), (vSD, 1), (F, 8), (Gr, 16), (XA, 4), (XB, 4)): V.free(r, n)
    if cfg.bcut == 2:
        p("s_endpgm"); return V.hi_used
    vm.wait('par')
    if cfg.touch == 2: touch2()
    if cfg.bprio: p('s_setprio 0')
    warm = deque()
    if cfg.warm:
        DUM = DUMH
        srd(p, 12, 12, 1792 * 1024)
        p(f"""s_lshr_b32 s54, s2, 3
        s_lshl_b32 s54, s54, 2
        s_add_u32 s54, s54, s{S_WAVE}
        s_mul_i32 s54, s54, {14*1024}""")
        for i in range(14):
            def f(i=i):
                if i and i % 4 == 0: p("s_add_u32 s54, s54, 4096")
                p(f"buffer_load_dwordx4 {vr(DUM+4*(i&3),4)}, v{vL16}, s[12:15], s54 offen offset:{(i%4)*1024}"); vm.issue('warm')
            warm.append(f)
    if cfg.bcut == 3:
        p("s_endpgm"); return V.hi_used
    vdt = a(); a2 = a(); b2 = a(); C = a(2)
    p(f"""v_lshlrev_b32 v{vdt}, 16, v{vLd}
    v_mul_f32 v{vdt}, {f32(LOG2E)}, v{vdt}
    v_exp_f32 v{vdt}, v{vdt}
    v_lshlrev_b32 v{vDk}, 16, v{vDk}""")
    for k in range(6): p(f"v_lshlrev_b32 v{PR+k}, 16, v{PR+k}")
    for k in range(4): p(f"v_lshlrev_b32 v{PQ+k}, 16, v{PQ+k}")
    p(f"""v_cvt_pk_bf16_f32 v{vdt}, v{vdt}, v{vdt}
    v_lshlrev_b32 v{vdt}, 16, v{vdt}
    v_mul_f32 v{C}, v{PR+4}, v{PR+2}
    v_mul_f32 v{C+1}, v{PR+4}, v{PR+3}
    v_mul_f32 v{t0}, v{PQ+2}, v{PQ}
    v_mul_f32 v{t1}, v{PQ+2}, v{PQ+1}
    v_fma_f32 v{C}, -v{PR+5}, v{PR+3}, v{C}
    v_fma_f32 v{C+1}, v{PR+5}, v{PR+2}, v{C+1}
    v_fma_f32 v{t0}, -v{PQ+3}, v{PQ+1}, v{t0}
    v_fma_f32 v{t1}, v{PQ+3}, v{PQ}, v{t1}
    v_mul_f32 v{a2}, v{vdt}, v{PR}
    v_mul_f32 v{b2}, v{vdt}, v{PR+1}
    v_max_f32 v{t0}, |v{t0}|, |v{t1}|
    v_max3_f32 v{t0}, |v{C}|, |v{C+1}|, v{t0}
    v_mul_f32 v{a2}, {f32(LOG2E)}, v{a2}
    v_mul_f32 v{b2}, {f32(1/(2*math.pi))}, v{b2}
    v_max_f32_dpp v{t0}, v{t0}, v{t0} quad_perm:[1,0,3,2] row_mask:0xf bank_mask:0xf""")
    AN = {1: a(2), 8: a(2), 64: a(2), 256: a(2)}
    red = deque([f"v_max_f32_dpp v{t0}, v{t0}, v{t0} quad_perm:[2,3,0,1] row_mask:0xf bank_mask:0xf",
           f"v_max_f32_dpp v{t0}, v{t0}, v{t0} row_half_mirror row_mask:0xf bank_mask:0xf",
           f"v_max_f32_dpp v{t0}, v{t0}, v{t0} row_mirror row_mask:0xf bank_mask:0xf",
           f"v_max_f32_dpp v{t0}, v{t0}, v{t0} row_bcast:15 row_mask:0xa bank_mask:0xf",
           f"v_max_f32_dpp v{t0}, v{t0}, v{t0} row_bcast:31 row_mask:0xc bank_mask:0xf",
           f"v_frexp_exp_i32_f32 v{t0}, v{t0}",
           f"v_readlane_b32 s72, v{t0}, 63\n s_sub_u32 s73, 0, s72"])
    W_ = a(8)
    ks = [8, 64, 1, 256]
    for j, tt in enumerate(ks):
        p(f"v_mul_f32 v{W_+2*j}, {f32(float(tt))}, v{a2}\n v_mul_f32 v{W_+2*j+1}, {f32(float(tt))}, v{b2}"); p(red.popleft())
    for j, tt in enumerate(ks): p(f"v_fract_f32 v{W_+2*j+1}, v{W_+2*j+1}")
    p(red.popleft())
    for j, tt in enumerate(ks):
        p(f"v_exp_f32 v{W_+2*j}, v{W_+2*j}\n v_cos_f32 v{AN[tt]}, v{W_+2*j+1}\n v_sin_f32 v{AN[tt]+1}, v{W_+2*j+1}")
        if red: p(red.popleft())
    for j, tt in enumerate(ks):
        p(f"v_mul_f32 v{AN[tt]}, v{AN[tt]}, v{W_+2*j}\n v_mul_f32 v{AN[tt]+1}, v{AN[tt]+1}, v{W_+2*j}")
    assert not red
    p(f"""v_ldexp_f32 v{C}, v{C}, s73
    v_ldexp_f32 v{C+1}, v{C+1}, s73
    v_ldexp_f32 v{vdt}, v{vdt}, s72
""")
    V.free(W_, 8); V.free(PR, 6); V.free(PQ, 4)
    def xflag():
        vm.wait('st')
        p(f"""v_mov_b32 v{t2}, s{S_TAGA}
        v_mov_b32 v{t3}, s{S_TAGB}
        s_lshl_b32 s60, s{S_WAVE}, 8
        s_add_u32 s60, s60, s53
        s_lshl_b32 s60, s60, 6
        s_add_u32 s60, s60, {G.XFLAG}
        v_mov_b32 v{t1}, 0
        s_mov_b64 exec, 1
        buffer_store_dwordx2 {vr(t2,2)}, v{t1}, s[4:7], s60 offen sc1
        s_mov_b64 exec, -1""")
    NCV = 52 if cfg.defer else 4
    CV = a(NCV); cvi = [0]; later = []
    def emit_slot(row, r, conj):
        c = CV + (cvi[0] % NCV); cvi[0] += 1
        p(f"v_cvt_pk_f16_f32 v{c}, v{r}, {'-' if conj else ''}v{r+1}")
        w_ = f"ds_write_b32 v{vEw}, v{c} offset:{EI + row*ERS}"
        if cfg.defer: later.append(w_)
        else: p(w_)
        if cfg.warm == 1 and warm and cvi[0] % 3 == 0: warm.popleft()()
    def cmul_group(items):
        for d, x, y in items: p(f"v_mul_f32 v{d}, v{x}, v{y}\n v_mul_f32 v{d+1}, v{x}, v{y+1}")
        for d, x, y in items: p(f"v_fma_f32 v{d}, -v{x+1}, v{y+1}, v{d}\n v_fma_f32 v{d+1}, v{x+1}, v{y}, v{d+1}")
    Pw = {1: AN[8]}; Qw = {1: AN[64]}
    for i in range(2, 8): Pw[i] = a(2)
    for i in (2, 3): Qw[i] = a(2)
    Gv = {0: C}
    for j in range(1, 8): Gv[j] = a(2)
    Hv = [a(2), a(2)]; Iv = [a(2), a(2)]; TP = [a(2) for _ in range(4)]
    LROW = lambda idx: 32 + idx
    E1, E256 = AN[1], AN[256]
    emit_slot(1, Pw[1], False); emit_slot(8, Qw[1], False); emit_slot(LROW(0), C, True)
    cmul_group([(Pw[2], Pw[1], Pw[1]), (Qw[2], Qw[1], Qw[1]), (Gv[1], C, E1), (Hv[0], C, E256)])
    emit_slot(2, Pw[2], False); emit_slot(16, Qw[2], False); emit_slot(LROW(1), Gv[1], True); emit_slot(LROW(8), Hv[0], True)
    cmul_group([(Pw[3], Pw[2], Pw[1]), (Pw[4], Pw[2], Pw[2]), (Qw[3], Qw[2], Qw[1]), (Gv[2], Gv[1], E1), (Hv[1], Hv[0], E256)])
    emit_slot(3, Pw[3], False); emit_slot(4, Pw[4], False); emit_slot(24, Qw[3], False); emit_slot(LROW(2), Gv[2], True); emit_slot(LROW(12), Hv[1], True)
    cmul_group([(Pw[5], Pw[4], Pw[1]), (Pw[6], Pw[4], Pw[2]), (Pw[7], Pw[4], Pw[3]), (Gv[3], Gv[2], E1), (Hv[0], Hv[1], E256)])
    emit_slot(5, Pw[5], False); emit_slot(6, Pw[6], False); emit_slot(7, Pw[7], False); emit_slot(LROW(3), Gv[3], True); emit_slot(LROW(14), Hv[0], True)
    xflag()
    prods = deque([(i1, i0) for i1 in (1, 2, 3) for i0 in range(1, 8)])
    hcur = 0; hrows = deque([16, 17, 18, 19, 20]); gnext = 4; icur = None; irows = deque([10, 13, 15]); extra = deque([(2, 9), (6, 11)])
    while prods or hrows or gnext < 8 or irows or extra:
        items = []; outs = []; tp = 0
        if gnext < 8:
            items.append((Gv[gnext], Gv[gnext - 1], E1)); outs.append((LROW(gnext), Gv[gnext], True)); gnext += 1
        if hrows:
            items.append((Hv[1 - hcur], Hv[hcur], E256)); outs.append((LROW(hrows.popleft()), Hv[1 - hcur], True)); hcur = 1 - hcur
        if irows and gnext > 5:
            src = Gv[4] if icur is None else Iv[icur]; ni = 0 if icur is None else 1 - icur
            items.append((Iv[ni], src, E256)); outs.append((LROW(irows.popleft()), Iv[ni], True)); icur = ni
        if extra and gnext > extra[0][0] + 1:
            j, row = extra.popleft(); items.append((TP[tp], Gv[j], E256)); outs.append((LROW(row), TP[tp], True)); tp += 1
        while prods and tp < 4 and len(items) < 5:
            i1, i0 = prods.popleft(); items.append((TP[tp], Pw[i0], Qw[i1])); outs.append((8 * i1 + i0, TP[tp], False)); tp += 1
        cmul_group(items)
        for o in outs: emit_slot(*o)
    while cfg.warm == 1 and warm: warm.popleft()()
    for d in list(Pw.values()) + list(Qw.values()) + list(Gv.values()) + Hv + Iv + TP + [E1, E256]: V.free(d, 2)
    if cfg.bcut == 4:
        p("s_endpgm"); return V.hi_used
    late_consts()
    for _ in range(cfg.bdelay): p("s_sleep 16")
    p(f"v_mov_b32 v{t0}, 0x3c00\n ds_write_b32 v{vEw}, v{t0} offset:{EI}")
    for wi, w_ in enumerate(later):
        p(w_)
        if cfg.warm == 3 and warm and wi % 3 == 0: warm.popleft()()
    V.free(CV, NCV); V.free(a2); V.free(b2); V.free(P, 16)
    if cfg.bcut == 5:
        p("s_endpgm"); return V.hi_used
    XG = a(8, 4); XFL = a(2, 2)
    p(f"buffer_load_dwordx2 {vr(XFL,2)}, v{vLr}, s[4:7], s55 offen sc1")
    def xcheck():
        p(f"""s_mov_b32 s62, 0
L_b_poll:
        s_waitcnt vmcnt(0)
        v_xor_b32 v{t0}, s{S_TAGA}, v{XFL}
        v_xor_b32 v{t1}, s{S_TAGB}, v{XFL+1}
        v_or_b32 v{t0}, v{t0}, v{t1}
        v_cmp_ne_u32 vcc, 0, v{t0}
        s_add_u32 s62, s62, 1
        s_cmp_eq_u64 vcc, 0
        s_cbranch_scc1 L_b_got
        s_cmp_ge_u32 s62, {G.SPIN_MAX}
        s_cbranch_scc1 L_b_got
        s_sleep 1
        buffer_load_dwordx2 {vr(XFL,2)}, v{vLr}, s[4:7], s55 offen sc1
        s_branch L_b_poll
L_b_got:
        s_add_u32 s60, s74, {1 << 18}
        buffer_load_dwordx4 {vr(XG,4)}, v{vXo}, s[4:7], s74 offen sc1
        buffer_load_dwordx4 {vr(XG+4,4)}, v{vXo}, s[4:7], s60 offen sc1""")
    p("s_waitcnt lgkmcnt(0)\n s_barrier"); lg.done = len(lg.ops)
    stamp(p, 3)
    ACC = a(8, 4); FR = a(96, 4)
    for ks_ in range(8):
        p(f"ds_read_b128 {vr(FR+12*ks_,4)}, v{vEr} offset:{EI + ks_*64}")
        p(f"ds_read_b128 {vr(FR+12*ks_+4,4)}, v{vEr+1} offset:{EI + 32*ERS + ks_*64}")
        p(f"ds_read_b128 {vr(FR+12*ks_+8,4)}, v{vEr+1} offset:{EI + 48*ERS + ks_*64}")
        for _ in range(3): lg.issue(('e', ks_))
        if ks_ >= 3:
            k2 = ks_ - 3
            lg.wait(('e', k2))
            for tl in range(2):
                c = vr(ACC + 4 * tl, 4) if k2 else '0'
                p(f"v_mfma_f32_16x16x32_f16 {vr(ACC+4*tl,4)}, {vr(FR+12*k2+4+4*tl,4)}, {vr(FR+12*k2,4)}, {c}")
    for k2 in range(5, 8):
        lg.wait(('e', k2))
        for tl in range(2):
            p(f"v_mfma_f32_16x16x32_f16 {vr(ACC+4*tl,4)}, {vr(FR+12*k2+4+4*tl,4)}, {vr(FR+12*k2,4)}, {vr(ACC+4*tl,4)}")
    p(f"""v_cvt_pk_f16_f32 v{FR}, v{ACC}, v{ACC+1}
    v_cvt_pk_f16_f32 v{FR+1}, v{ACC+2}, v{ACC+3}
    v_cvt_pk_f16_f32 v{FR+2}, v{ACC+4}, v{ACC+5}
    v_cvt_pk_f16_f32 v{FR+3}, v{ACC+6}, v{ACC+7}
    ds_write_b32 v{aT}, v{FR} offset:{TT}
    ds_write_b32 v{aT+1}, v{FR+1} offset:{TT}
    ds_write_b16 v{aT+2}, v{FR+2} offset:{TT}
    s_mov_b64 exec, 0xffff
    ds_write_b16_d16_hi v{aT+3}, v{FR+2} offset:{TT+64}
    ds_write_b16 v{aT+3}, v{FR+3} offset:{TT+128}
    ds_write_b16_d16_hi v{aT+3}, v{FR+3} offset:{TT+192}
    s_mov_b64 exec, -1
    s_waitcnt lgkmcnt(0)
    s_barrier""")
    lg.done = len(lg.ops)
    V.free(ACC, 8); V.free(FR, 96); V.free(aT, 4)
    xcheck()
    WS_ = [a(16, 4), a(16, 4)]; EL = [a(11), a(11)]
    for ch in range(2):
        for e in range(11):
            p(f"ds_read_u16 v{EL[ch] + e}, v{GA+e} offset:{TT - 16 + ch*TCH}"); lg.issue(('el', ch))
    p(f"""v_lshrrev_b32 v{t0}, 1, v{vi}
    v_mul_u32_u24 v{t0}, {KCS}, v{t0}
    v_and_b32 v{t1}, 1, v{vi}
    v_lshl_add_u32 v{t0}, v{t1}, 4, v{t0}
    ds_write_b128 v{t0}, {vr(ZR,4)} offset:{KC + 4096}""")
    lg.issue('z2')
    for ch in range(2):
        el = EL[ch]
        lg.wait(('el', ch))
        for s_ in range(4):
            j0 = 3 - s_; w = WS_[ch] + 4 * s_
            for d in range(4): p(f"v_lshl_or_b32 v{w+d}, v{el+j0+2*d+1}, 16, v{el+j0+2*d}")
            p(f"ds_write_b128 v{vKW}, {vr(w,4)} offset:{KC + ch*KCH + s_*KCS}"); lg.issue('kw')
    for ch in range(2):
        V.free(WS_[ch], 16); V.free(EL[ch], 11)
    V.free(GA, 11)
    stamp(p, 4)
    if cfg.bcut == 6:
        p("s_endpgm"); return V.hi_used
    p("s_waitcnt vmcnt(0)")
    for i in range(2): p(f"ds_write_b128 v{vXw}, {vr(XG+4*i,4)} offset:{XBL + 512 + i*512}")
    V.free(XG, 8)
    p("s_waitcnt lgkmcnt(0)\n s_barrier"); lg.done = len(lg.ops)
    stamp(p, 5)
    if cfg.dumpK:
        Dm = a(4, 4)
        for ch in range(2):
            p(f"""ds_read_b128 {vr(Dm,4)}, v{vKW} offset:{KC + ch*KCH + 3*KCS}
            s_lshl_b32 s60, s59, 13
            s_add_u32 s60, s60, {G.DBG + ch*4096}
            s_waitcnt lgkmcnt(0)
            buffer_store_dwordx4 {vr(Dm,4)}, v{vKW}, s[4:7], s60 offen
            s_waitcnt vmcnt(0)""")
        p(f"""s_lshl_b32 s60, s63, 2
        s_add_u32 s60, s60, {G.DBG + 0x400000}
        v_mov_b32 v{Dm+1}, 0
        buffer_store_dword v{vdt}, v{Dm+1}, s[4:7], s60 offen
        s_waitcnt vmcnt(0)""")
        V.free(Dm, 4)
    CA = a(32, 4); FA = [a(32, 4), a(32, 4)]; FB = [a(32, 4), a(32, 4)]; XN = a(8, 2)
    def rds(rr):
        out = []
        for k in range(8):
            def fa(k=k):
                for h in range(2):
                    p(f"ds_read_b64 {vr(FA[rr&1]+4*k+2*h,2)}, v{vA} offset:{KC + 64*(3-rr) + 512*(7-k) + 8*h}"); lg.issue(('f', rr, k))
            def fb(k=k): p(f"ds_read_b128 {vr(FB[rr&1]+4*k,4)}, v{vB} offset:{192 - rr*64 + k*512}"); lg.issue(('f', rr, k))
            out += [fa, fb]
        return out
    pairs = sorted([(aa, bb) for aa in range(8) for bb in range(8 - aa)], key=lambda t: (max(t), t[0] + t[1]))
    q_ = deque(rds(0))
    for _ in range(8): q_.popleft()()
    seen = set()
    for rr in range(4):
        if rr < 3: nxt = deque(rds(rr + 1))
        else:
            nxt = deque()
            for k in range(4):
                def fx(k=k): p(f"ds_read_b64 {vr(XN+2*k,2)}, v{vXe} offset:{XBL + 512 + k*512}"); lg.issue('xn')
                nxt.append(fx)
        for n_, (aa, bb) in enumerate(pairs):
            m_ = max(aa, bb)
            while lg.ops.count(('f', rr, m_)) < 3: q_.popleft()()
            lg.wait(('f', rr, m_))
            J = aa + bb
            c = vr(CA + 4 * J, 4) if J in seen else '0'
            seen.add(J)
            p(f"v_mfma_f32_16x16x32_f16 {vr(CA+4*J,4)}, {vr(FA[rr&1]+4*aa,4)}, {vr(FB[rr&1]+4*bb,4)}, {c}")
            if cfg.warm == 4 and warm and n_ % 3 == 0: warm.popleft()()
            if q_: q_.popleft()()
            elif nxt and n_ % 2 == 1 and n_ >= 4: nxt.popleft()()
        q_ = nxt
    while q_: q_.popleft()()
    stamp(p, 6)
    p(f"""s_lshl_b32 s60, s{S_WAVE}, 12
    v_add_u32 v{t1}, s60, v{vL16}
    s_xor_b32 s60, s60, 4096
    v_add_u32 v{t2}, s60, v{vL16}
    s_cmp_eq_u32 s58, 0
    s_cbranch_scc1 L_b_e0""")
    for k in range(4): p(f"ds_write_b128 v{t1}, {vr(CA+4*k,4)} offset:{KC+2*KCH+k*1024}")
    for k in range(16): p(f"v_mov_b32 v{CA+k}, v{CA+16+k}")
    p("s_branch L_b_e1\nL_b_e0:")
    for k in range(4): p(f"ds_write_b128 v{t1}, {vr(CA+16+4*k,4)} offset:{KC+2*KCH+k*1024}")
    p("L_b_e1:\n s_waitcnt lgkmcnt(4)")
    for k in range(4):
        for r in range(4):
            p(f"v_fma_mix_f32 v{FB[1]+4*k+r}, v{XN+2*k+(r>>1)}, v{vDk}, 0 op_sel:[{r&1},0,0] op_sel_hi:[1,0,0]")
    O = FA[0]; GG = FB[0]
    p("s_waitcnt lgkmcnt(0)\n s_barrier")
    for k in range(4): p(f"ds_read_b128 {vr(O+4*k,4)}, v{t2} offset:{KC+2*KCH+k*1024}")
    for k in range(4):
        p(f"s_waitcnt lgkmcnt({3-k})")
        for r in range(4): p(f"v_add_f32 v{CA+4*k+r}, v{CA+4*k+r}, v{O+4*k+r}")
        for r in range(4): p(f"v_fma_f32 v{CA+4*k+r}, v{CA+4*k+r}, v{vdt}, v{FB[1]+4*k+r}")
        for h in range(2): p(f"v_cvt_pk_bf16_f32 v{GG+2*k+h}, v{CA+4*k+2*h}, v{CA+4*k+2*h+1}")
        if k & 1:
            g_ = GG + 2 * (k - 1)
            p(f"v_permlane16_swap_b32 v{g_}, v{g_+2}\n v_permlane16_swap_b32 v{g_+1}, v{g_+3}")
            p(f"buffer_store_dwordx4 {vr(g_,4)}, v{vSo}, s[4:7], s56 offen offset:{(k>>1)*1024} sc1")
    p(f"""v_mov_b32 v{t2}, s{S_TAGA}
    v_mov_b32 v{t3}, s{S_TAGB}
    s_lshl_b32 s60, s63, 1
    s_add_u32 s60, s60, s58
    s_lshl_b32 s60, s60, 6
    s_add_u32 s60, s60, {G.SFLAG}
    v_mov_b32 v{t1}, 0
    s_waitcnt vmcnt(0)
    s_mov_b64 exec, 1
    buffer_store_dwordx2 {vr(t2,2)}, v{t1}, s[4:7], s60 offen sc1
    s_mov_b64 exec, -1""")
    stamp(p, 7)
    p(f"""s_or_b32 s60, s2, s{S_WAVE}
    s_cmp_lg_u32 s60, 0
    s_cbranch_scc1 L_b_done""")
    if cfg.only != 'B':
        FL = FA[1]
        p(f"""v_lshlrev_b32 v{t3}, 8, v{lane}
        s_mov_b32 s62, 0
L_b_gpoll:""")
        for i in range(4):
            p(f"s_mov_b32 s60, {G.HFLAG + i*16384}\n buffer_load_dwordx2 {vr(FL+2*i,2)}, v{t3}, s[4:7], s60 offen sc1")
        p(f"s_waitcnt vmcnt(0)\n v_mov_b32 v{t0}, 0")
        for i in range(4):
            p(f"""v_xor_b32 v{t1}, s{S_TAGA}, v{FL+2*i}
            v_xor_b32 v{t2}, s{S_TAGB}, v{FL+2*i+1}
            v_or3_b32 v{t0}, v{t0}, v{t1}, v{t2}""")
        p(f"""v_cmp_ne_u32 vcc, 0, v{t0}
        s_add_u32 s62, s62, 1
        s_cmp_eq_u64 vcc, 0
        s_cbranch_scc1 L_b_gok
        s_cmp_ge_u32 s62, {G.SPIN_MAX}
        s_cbranch_scc1 L_b_gok
        s_sleep 8
        s_branch L_b_gpoll
L_b_gok:""")
    p(f"""v_mov_b32 v{t0}, s{S_TAGA}
    v_mov_b32 v{t1}, 0
    s_mov_b64 exec, 1
    buffer_store_dword v{t0}, v{t1}, s[4:7], 0 offen offset:{G.GEN}
    s_mov_b64 exec, -1
L_b_done:""")
    G.stamps_out(p, 8, CA)
    p("s_endpgm")
    return V.hi_used
```

```python
from asmlib import *
import math
from collections import deque
from roleA import Cnt

XBL = 0; XCH = 4608
TT = 9216 + 16; TCH = 1344
KC = 12288; KCS = 4160; KCH = 8 * KCS
LNB = 81920 - 8192
EI = KC; ERS = 528; ECH = 53 * ERS + 48
assert EI + 2 * ECH <= LNB

def role_B(p, vgen, G):
    S_WAVE, S_TAGA, S_TAGB = G.S_WAVE, G.S_TAGA, G.S_TAGB
    f32 = G.f32; cfg = G.cfg; stamp = G.stamp; srd = G.srd; PTR = G.PTR; LOG2E = G.LOG2E
    V = Regs('v', 4, 240); a = V.alloc
    DUMH = 240
    lane = 1
    vm = Cnt(p, 'vmcnt', 63); lg = Cnt(p, 'lgkmcnt', 15)
    vm.issue('cpf'); vm.issue('gen')
    if cfg.tlb:
        for _ in range(4): vm.issue('tlb')
    t0 = a(); t1 = a(); t2 = a(); t3 = a()
    vL16 = a(); vLd = a(); vDk = a(); vi = a(); vg = a(); vXo = a(); vKW = a(2); vA = a(); vB = a()
    XA = a(4, 2); XB = a(4, 2); PR = a(6); PQ = a(4)
    for _ in range(cfg.dB): p("s_sleep 32")
    srd(p, 8, 0, 2048 * 1024)
    p(f"""s_and_b32 s53, s2, 7
    s_lshl_b32 s53, s53, 5
    s_lshr_b32 s60, s2, 3
    s_add_u32 s53, s53, s60
    s_lshl_b32 s61, s53, 3
    s_lshl_b32 s62, s{S_WAVE}, 1
    s_add_u32 s61, s61, s62
    s_lshl_b32 s62, s61, 10
    v_lshlrev_b32 v{vL16}, 4, v{lane}
    buffer_load_dwordx4 {vr(XA,4)}, v{vL16}, s[8:11], s62 offen
    buffer_load_dwordx4 {vr(XB,4)}, v{vL16}, s[8:11], s62 offen offset:1024
    s_and_b32 s59, s2, 7
    s_lshl_b32 s59, s59, 5
    s_lshr_b32 s60, s2, 3
    s_add_u32 s59, s59, s60
    s_lshr_b32 s57, s{S_WAVE}, 1
    s_and_b32 s58, s{S_WAVE}, 1
    s_lshl_b32 s63, s59, 1
    s_add_u32 s63, s63, s57
    s_lshl_b32 s60, s63, 8
    s_lshl_b32 s62, s58, 7
    s_add_u32 s62, s62, s60
    v_lshl_add_u32 v{t0}, v{lane}, 1, s62
    v_xor_b32 v{t2}, 128, v{t0}
    s_lshl_b32 s60, s63, 1
    v_mov_b32 v{t1}, s60""")
    vm.issue('x'); vm.issue('x')
    if cfg.touch1:
        DUM1 = DUMH + 8
        srd(p, 12, 10, 512 * 3584)
        p(f"""s_mul_i32 s54, s2, 7168
        s_lshl_b32 s55, s{S_WAVE}, 11
        s_add_u32 s54, s54, s55
        buffer_load_dwordx4 {vr(DUM1,4)}, v{vL16}, s[12:15], s54 offen
        buffer_load_dwordx4 {vr(DUM1+4,4)}, v{vL16}, s[12:15], s54 offen offset:1024""")
        vm.issue('touch'); vm.issue('touch')
    vPa = a(3)
    p(f"v_mov_b32 v{vPa}, v{t0}\n v_mov_b32 v{vPa+1}, v{t1}\n v_mov_b32 v{vPa+2}, v{t2}")
    def par_loads():
        for k in range(6):
            p(f"global_load_ushort v{PR+k}, v{vPa}, {sr(PTR(1+k),2)}"); vm.issue('par')
        for k in range(4):
            p(f"global_load_ushort v{PQ+k}, v{vPa+2}, {sr(PTR(3+k),2)}"); vm.issue('par')
        p(f"global_load_ushort v{vLd}, v{vPa+1}, {sr(PTR(7),2)}"); vm.issue('par')
        p(f"global_load_ushort v{vDk}, v{vPa+1}, {sr(PTR(8),2)}"); vm.issue('par')
    if not cfg.parlate: par_loads()
    def touch2():
        if True:
            DUM = DUMH
            srd(p, 12, 12, 1792 * 1024)
            p(f"""s_mul_i32 s60, s2, 7168
            s_lshl_b32 s62, s{S_WAVE}, 11
            s_add_u32 s60, s60, s62
            buffer_load_dwordx4 {vr(DUM,4)}, v{vL16}, s[12:15], s60 offen
            buffer_load_dwordx4 {vr(DUM+4,4)}, v{vL16}, s[12:15], s60 offen offset:1024""")
            vm.issue('touch'); vm.issue('touch')
    if cfg.touch == 1 and not cfg.parlate: touch2()
    GA = a(15); aT = a(4); vEw = a(); vEr = a(2); vXw = a(); vXe = a(); vSo = a(); vLr = a(); vLw = a(); ZR = a(4, 2)
    p(f"""v_and_b32 v{vi}, 15, v{lane}
    v_lshrrev_b32 v{vg}, 4, v{lane}
    v_lshlrev_b32 v{vKW}, 4, v0
    s_lshl_b32 s60, s{S_WAVE}, 11
    s_add_u32 s60, s60, {LNB}
    v_lshl_add_u32 v{vLw}, v{lane}, 5, s60
    v_lshlrev_b32 v{vLr}, 2, v0
    v_add_u32 v{vLr}, {LNB}, v{vLr}
    s_mov_b32 s70, 0xffff0000
    s_mov_b32 s71, 0xffff0000""")
    def late_consts():
        p(f"v_lshlrev_b32 v{t3}, 3, v0")
        for e in range(0, 16, 2):
            hs = [h for h in range(2) if e + h < 15]
            for h in hs:
                p(f"v_add_u32 v{GA+e+h}, {7 - (e + h)}, v{t3}")
                p(f"v_max_i32 v{t0+h}, 128, v{GA+e+h}")
                p(f"v_cvt_f32_i32 v{t0+h}, v{t0+h}")
            p(f"""v_cvt_pk_bf16_f32 v{t0}, v{t0}, v{t1}
            v_lshrrev_b32 v{t1}, 16, v{t0}
            v_and_b32 v{t0}, 0xffff, v{t0}""")
            for h in hs:
                p(f"v_subrev_u32 v{t0+h}, 0x4280, v{t0+h}")
                p(f"v_min_i32 v{GA+e+h}, v{t0+h}, v{GA+e+h}")
                p(f"v_lshlrev_b32 v{GA+e+h}, 1, v{GA+e+h}")
        p(f"""s_lshl_b32 s60, s58, 4
        v_add_u32 v{t3}, s60, v{vi}
        s_mul_i32 s60, s57, {TCH}
        v_lshlrev_b32 v{t0}, 4, v{t3}
        v_lshl_add_u32 v{aT}, v{vg}, 3, v{t0}
        v_lshlrev_b32 v{t0}, 3, v{t3}
        v_add_u32 v{t0}, 512, v{t0}
        v_cmp_eq_u32 vcc, 2, v{vg}
        v_cndmask_b32 v{aT}, v{aT}, v{t0}, vcc
        v_lshlrev_b32 v{t0}, 2, v{t3}
        v_add_u32 v{t0}, 768, v{t0}
        v_cmp_eq_u32 vcc, 3, v{vg}
        v_cndmask_b32 v{aT}, v{aT}, v{t0}, vcc
        v_add_u32 v{aT}, s60, v{aT}
        v_mov_b32 v{t1}, 128
        v_cndmask_b32 v{t1}, 4, v{t1}, vcc
        v_add_u32 v{aT+1}, v{aT}, v{t1}
        v_lshlrev_b32 v{t0}, 1, v{t3}
        v_add_u32 v{t0}, 1024, v{t0}
        v_mov_b32 v{t1}, {2*648 - 192}
        v_cmp_eq_u32 vcc, 0, v{vg}
        v_cndmask_b32 v{aT+3}, v{t1}, v{t0}, vcc
        v_mov_b32 v{t1}, {2*648}
        v_cndmask_b32 v{aT+2}, v{t1}, v{t0}, vcc
        v_lshl_add_u32 v{t0}, v{t3}, 2, v{vg}
        v_mov_b32 v{t1}, 1280
        v_cmp_eq_u32 vcc, 1, v{t0}
        v_cndmask_b32 v{aT+2}, v{aT+2}, v{t1}, vcc
        v_add_u32 v{aT+2}, s60, v{aT+2}
        v_add_u32 v{aT+3}, s60, v{aT+3}
        s_mul_i32 s60, s57, {ECH}
        s_lshl_b32 s62, s58, 8
        s_add_u32 s62, s62, s60
        v_lshl_add_u32 v{vEw}, v{lane}, 2, s62
        v_mul_u32_u24 v{t0}, {ERS}, v{vi}
        v_lshl_add_u32 v{t0}, v{vg}, 4, v{t0}
        v_add_u32 v{vEr+1}, s60, v{t0}
        s_mul_i32 s62, s58, {16*ERS}
        v_add_u32 v{vEr}, s62, v{vEr+1}
        v_add_u32 v{vKW+1}, {KCH}, v{vKW}
        v_lshrrev_b32 v{vXo}, 1, v{lane}
        v_lshlrev_b32 v{vXw}, 4, v{vXo}
        v_lshlrev_b32 v{vXo}, 13, v{vXo}
        v_and_b32 v{t0}, 1, v{lane}
        v_lshl_add_u32 v{vXo}, v{t0}, 4, v{vXo}
        v_mul_u32_u24 v{t1}, {XCH}, v{t0}
        s_lshl_b32 s60, s{S_WAVE}, 10
        v_add3_u32 v{vXw}, v{vXw}, v{t1}, s60
        s_lshl_b32 s74, s{S_WAVE}, 19
        s_lshl_b32 s60, s59, 5
        s_add_u32 s74, s74, s60
        s_add_u32 s74, s74, {G.XNT}
        s_lshr_b32 s55, s59, 5
        s_and_b32 s55, s55, 3
        s_lshl_b32 s55, s55, 14
        s_add_u32 s55, s55, {G.XFLAG}
        v_lshlrev_b32 v{vLr}, 6, v0
        s_lshl_b32 s62, s58, 8
        v_and_b32 v{vA}, 7, v{vi}
        v_mul_u32_u24 v{vA}, {KCS}, v{vA}
        v_lshrrev_b32 v{t0}, 3, v{vi}
        v_sub_u32 v{t0}, v{t0}, v{vg}
        v_add_u32 v{t0}, 3, v{t0}
        v_lshl_add_u32 v{vA}, v{t0}, 4, v{vA}
        s_mul_i32 s75, s57, {KCH}
        s_add_u32 s75, s75, s62
        v_add_u32 v{vA}, s75, v{vA}
        v_lshlrev_b32 v{vB}, 5, v{vi}
        v_lshl_add_u32 v{vXe}, v{vg}, 3, v{vB}
        v_lshl_add_u32 v{vB}, v{vg}, 4, v{vB}
        s_mul_i32 s75, s57, {XCH}
        s_lshl_b32 s60, s58, 11
        s_add_u32 s60, s60, s75
        v_add_u32 v{vXe}, s60, v{vXe}
        s_sub_u32 s75, s75, s62
        s_add_u32 s75, s75, {XBL + 480 - 192}
        v_add_u32 v{vB}, s75, v{vB}
        v_lshlrev_b32 v{vSo}, 5, v{vi}
        v_lshrrev_b32 v{t0}, 1, v{vg}
        v_lshl_add_u32 v{vSo}, v{t0}, 4, v{vSo}
        v_and_b32 v{t0}, 1, v{vg}
        v_lshl_add_u32 v{vSo}, v{t0}, 9, v{vSo}
        s_lshl_b32 s56, s63, 12
        s_lshl_b32 s60, s58, 11
        s_add_u32 s56, s56, s60
        s_add_u32 s56, s56, {G.ST}""")
        p(f"""v_mov_b32 v{ZR}, 0
        v_mov_b32 v{ZR+1}, 0
        v_mov_b32 v{ZR+2}, 0
        v_mov_b32 v{ZR+3}, 0
        s_mul_i32 s75, s57, {XCH}
        v_lshl_add_u32 v{t0}, v{lane}, 3, s75
        ds_write_b64 v{t0}, {vr(ZR,2)} offset:{XBL}
        s_mul_i32 s75, s57, {TCH}
        v_mov_b32 v{t0}, s75
        ds_write_b128 v{t0}, {vr(ZR,4)} offset:{TT-16}""")
        lg.issue('z'); lg.issue('z')
    P = a(16, 2); D = a(16, 2); A1 = a(2, 2); A2 = a(2, 2); B1 = a(2, 2); B2 = a(2, 2); Z2 = a(); vC0 = a(); vM = a(); vR = a(); vSD = a()
    F = a(8, 2); Gr = a(16, 2)
    if cfg.bprio: p(f"s_setprio {cfg.bprio}")
    vm.wait('x')
    if cfg.parlate:
        par_loads()
        if cfg.touch == 1: touch2()
    stamp(p, 1)
    for q in range(4):
        p(f"""v_lshlrev_b32 v{P+4*q}, 16, v{XA+q}
        v_lshlrev_b32 v{P+4*q+1}, 16, v{XB+q}
        v_and_b32 v{P+4*q+2}, 0xffff0000, v{XA+q}
        v_and_b32 v{P+4*q+3}, 0xffff0000, v{XB+q}""")
        if q == 0: p(f"v_readfirstlane_b32 s64, v{P}\n v_readfirstlane_b32 s65, v{P+1}")
    G.make_tags(p, vgen)
    for c in range(16): p(f"v_subrev_f32 v{D+c}, s{64 + (c & 1)}, v{P+c}")
    for h in range(2):
        p(f"""v_add_f32 v{A1+h}, v{D+h}, v{D+2+h}
        v_add_f32 v{B1+h}, v{D+4+h}, v{D+6+h}
        v_mul_f32 v{A2+h}, v{D+h}, v{D+h}
        v_mul_f32 v{B2+h}, v{D+2+h}, v{D+2+h}""")
    for c in range(2, 8):
        for h in range(2):
            if c >= 4: p(f"v_add_f32 v{(A1 if c % 2 == 0 else B1)+h}, v{(A1 if c % 2 == 0 else B1)+h}, v{D+2*c+h}")
            p(f"v_fmac_f32 v{(A2 if c % 2 == 0 else B2)+h}, v{D+2*c+h}, v{D+2*c+h}")
    for h in range(2):
        p(f"v_add_f32 v{A1+h}, v{A1+h}, v{B1+h}\n v_add_f32 v{A2+h}, v{A2+h}, v{B2+h}")
    p(f"""v_mov_b32 v{vC0}, s64
    s_mov_b64 exec, s[70:71]
    v_mov_b32 v{vC0}, s65
    s_mov_b64 exec, -1""")
    G.reduce4(p, A1, A2, Z2)
    def sd_of(vvar_bf, vsd):
        p(f"""v_add_f32 v{t0}, {f32(1e-5)}, v{vvar_bf}
        v_cvt_pk_bf16_f32 v{t0}, v{t0}, v{t0}
        v_lshlrev_b32 v{t0}, 16, v{t0}
        v_sqrt_f32 v{t0}, v{t0}
        v_cvt_pk_bf16_f32 v{t0}, v{t0}, v{t0}
        v_lshlrev_b32 v{vsd}, 16, v{t0}""")
    p(f"""v_mul_f32 v{A1}, {f32(1/512)}, v{A1}
    v_mul_f32 v{Z2}, {f32(1/512)}, v{Z2}
    v_fma_f32 v{Z2}, -v{A1}, v{A1}, v{Z2}
    v_max_f32 v{Z2}, 0, v{Z2}
    v_add_f32 v{A1}, v{vC0}, v{A1}
    v_cvt_pk_bf16_f32 v{t1}, v{A1}, v{Z2}
    v_lshlrev_b32 v{vM}, 16, v{t1}
    v_and_b32 v{t1}, 0xffff0000, v{t1}""")
    sd_of(t1, vSD)
    p(f"""v_rcp_f32 v{vR}, v{vSD}
    v_sub_f32 v{t2}, v{A1}, v{vM}
    v_mul_f32 v{t3}, v{vM}, -v{vR}
    v_readlane_b32 s68, v{vR}, 0
    v_readlane_b32 s69, v{vR}, 16
    v_readlane_b32 s66, v{t3}, 0
    v_readlane_b32 s67, v{t3}, 16
    v_mul_f32 v{t2}, v{t2}, v{vR}
    v_mul_f32 v{Z2}, v{Z2}, v{vR}
    v_mul_f32 v{Z2}, v{Z2}, v{vR}
    v_mov_b32 v{B1}, s66
    v_mov_b32 v{B1+1}, s67""")
    for c in range(16): p(f"v_fma_f32 v{D+c}, v{P+c}, s{68 + (c & 1)}, v{B1 + (c & 1)}")
    for c in range(8): p(f"v_cvt_pk_f16_f32 v{F+c}, v{D+2*c}, v{D+2*c+1}")
    p(f"""ds_write_b128 v{vLw}, {vr(F,4)}
    ds_write_b128 v{vLw}, {vr(F+4,4)} offset:16
    v_cvt_pk_bf16_f32 v{t1}, v{t2}, v{Z2}
    v_lshlrev_b32 v{B2}, 16, v{t1}
    v_and_b32 v{t1}, 0xffff0000, v{t1}""")
    sd_of(t1, B2 + 1)
    p(f"""v_fma_f32 v{t0}, -v{B2}, v{vSD}, -v{vM}
    v_mul_f32 v{t1}, v{vSD}, v{B2+1}
    v_cvt_pk_bf16_f32 v{Gr}, v{t0}, v{t0}
    v_cvt_pk_bf16_f32 v{t2}, v{t1}, v{t1}
    v_and_b32 v{t3}, 0xffff0000, v{Gr}
    v_sub_f32 v{t0}, v{t0}, v{t3}
    v_and_b32 v{t3}, 0xffff0000, v{t2}
    v_sub_f32 v{t2}, v{t1}, v{t3}
    v_cvt_pk_bf16_f32 v{Gr+1}, v{t0}, v{t1}
    v_cvt_pk_bf16_f32 v{Gr+2}, v{t2}, 0
    v_mov_b32 v{Gr+3}, s{S_TAGA}
    v_lshlrev_b32 v{t0}, 4, v{vg}
    s_lshl_b32 s60, s61, 4
    s_add_u32 s60, s60, {G.AB}
    s_mov_b64 exec, 0x10001
    buffer_store_dwordx4 {vr(Gr,4)}, v{t0}, s[4:7], s60 offen sc1
    s_mov_b64 exec, -1
    s_waitcnt lgkmcnt(0)
    s_barrier""")
    vm.issue('st'); lg.done = len(lg.ops)
    if cfg.bcut == 1:
        p("s_endpgm"); return V.hi_used
    G2 = P
    for i in range(2):
        p(f"ds_read2st64_b32 {vr(G2+4*i,2)}, v{vLr} offset0:{i*4} offset1:{i*4 + 8}")
        p(f"ds_read2st64_b32 {vr(G2+4*i+2,2)}, v{vLr} offset0:{i*4 + 16} offset1:{i*4 + 24}")
    p(f"""s_lshl_b32 s60, s53, 13
    s_add_u32 s60, s60, {G.XNT}
    s_add_u32 s62, s60, 4096""")
    for i in range(2):
        p(f"s_waitcnt lgkmcnt({2-2*i})")
        p(f"buffer_store_dwordx4 {vr(G2+4*i,4)}, v{vKW}, s[4:7], s{60+2*i} offen sc1"); vm.issue('st')
    stamp(p, 2)
    for r, n in ((D, 16), (A1, 2), (A2, 2), (B1, 2), (B2, 2), (Z2, 1), (vC0, 1), (vM, 1), (vR, 1), (vSD, 1), (F, 8), (Gr, 16), (XA, 4), (XB, 4)): V.free(r, n)
    if cfg.bcut == 2:
        p("s_endpgm"); return V.hi_used
    vm.wait('par')
    if cfg.touch == 2: touch2()
    if cfg.bprio: p('s_setprio 0')
    warm = deque()
    if cfg.warm:
        DUM = DUMH
        srd(p, 12, 12, 1792 * 1024)
        p(f"""s_lshr_b32 s54, s2, 3
        s_lshl_b32 s54, s54, 2
        s_add_u32 s54, s54, s{S_WAVE}
        s_mul_i32 s54, s54, {14*1024}""")
        for i in range(14):
            def f(i=i):
                if i and i % 4 == 0: p("s_add_u32 s54, s54, 4096")
                p(f"buffer_load_dwordx4 {vr(DUM+4*(i&3),4)}, v{vL16}, s[12:15], s54 offen offset:{(i%4)*1024}"); vm.issue('warm')
            warm.append(f)
    if cfg.bcut == 3:
        p("s_endpgm"); return V.hi_used
    vdt = a(); a2 = a(); b2 = a(); C = a(2)
    p(f"""v_lshlrev_b32 v{vdt}, 16, v{vLd}
    v_mul_f32 v{vdt}, {f32(LOG2E)}, v{vdt}
    v_exp_f32 v{vdt}, v{vdt}
    v_lshlrev_b32 v{vDk}, 16, v{vDk}""")
    for k in range(6): p(f"v_lshlrev_b32 v{PR+k}, 16, v{PR+k}")
    for k in range(4): p(f"v_lshlrev_b32 v{PQ+k}, 16, v{PQ+k}")
    p(f"""v_cvt_pk_bf16_f32 v{vdt}, v{vdt}, v{vdt}
    v_lshlrev_b32 v{vdt}, 16, v{vdt}
    v_mul_f32 v{C}, v{PR+4}, v{PR+2}
    v_mul_f32 v{C+1}, v{PR+4}, v{PR+3}
    v_mul_f32 v{t0}, v{PQ+2}, v{PQ}
    v_mul_f32 v{t1}, v{PQ+2}, v{PQ+1}
    v_fma_f32 v{C}, -v{PR+5}, v{PR+3}, v{C}
    v_fma_f32 v{C+1}, v{PR+5}, v{PR+2}, v{C+1}
    v_fma_f32 v{t0}, -v{PQ+3}, v{PQ+1}, v{t0}
    v_fma_f32 v{t1}, v{PQ+3}, v{PQ}, v{t1}
    v_mul_f32 v{a2}, v{vdt}, v{PR}
    v_mul_f32 v{b2}, v{vdt}, v{PR+1}
    v_max_f32 v{t0}, |v{t0}|, |v{t1}|
    v_max3_f32 v{t0}, |v{C}|, |v{C+1}|, v{t0}
    v_mul_f32 v{a2}, {f32(LOG2E)}, v{a2}
    v_mul_f32 v{b2}, {f32(1/(2*math.pi))}, v{b2}
    v_max_f32_dpp v{t0}, v{t0}, v{t0} quad_perm:[1,0,3,2] row_mask:0xf bank_mask:0xf""")
    AN = {1: a(2), 8: a(2), 64: a(2), 256: a(2)}
    red = deque([f"v_max_f32_dpp v{t0}, v{t0}, v{t0} quad_perm:[2,3,0,1] row_mask:0xf bank_mask:0xf",
           f"v_max_f32_dpp v{t0}, v{t0}, v{t0} row_half_mirror row_mask:0xf bank_mask:0xf",
           f"v_max_f32_dpp v{t0}, v{t0}, v{t0} row_mirror row_mask:0xf bank_mask:0xf",
           f"v_max_f32_dpp v{t0}, v{t0}, v{t0} row_bcast:15 row_mask:0xa bank_mask:0xf",
           f"v_max_f32_dpp v{t0}, v{t0}, v{t0} row_bcast:31 row_mask:0xc bank_mask:0xf",
           f"v_frexp_exp_i32_f32 v{t0}, v{t0}",
           f"v_readlane_b32 s72, v{t0}, 63\n s_sub_u32 s73, 0, s72"])
    W_ = a(8)
    ks = [8, 64, 1, 256]
    for j, tt in enumerate(ks):
        p(f"v_mul_f32 v{W_+2*j}, {f32(float(tt))}, v{a2}\n v_mul_f32 v{W_+2*j+1}, {f32(float(tt))}, v{b2}"); p(red.popleft())
    for j, tt in enumerate(ks): p(f"v_fract_f32 v{W_+2*j+1}, v{W_+2*j+1}")
    p(red.popleft())
    for j, tt in enumerate(ks):
        p(f"v_exp_f32 v{W_+2*j}, v{W_+2*j}\n v_cos_f32 v{AN[tt]}, v{W_+2*j+1}\n v_sin_f32 v{AN[tt]+1}, v{W_+2*j+1}")
        if red: p(red.popleft())
    for j, tt in enumerate(ks):
        p(f"v_mul_f32 v{AN[tt]}, v{AN[tt]}, v{W_+2*j}\n v_mul_f32 v{AN[tt]+1}, v{AN[tt]+1}, v{W_+2*j}")
    assert not red
    p(f"""v_ldexp_f32 v{C}, v{C}, s73
    v_ldexp_f32 v{C+1}, v{C+1}, s73
    v_ldexp_f32 v{vdt}, v{vdt}, s72
""")
    V.free(W_, 8); V.free(PR, 6); V.free(PQ, 4)
    def xflag():
        vm.wait('st')
        p(f"""v_mov_b32 v{t2}, s{S_TAGA}
        v_mov_b32 v{t3}, s{S_TAGB}
        s_lshl_b32 s60, s{S_WAVE}, 8
        s_add_u32 s60, s60, s53
        s_lshl_b32 s60, s60, 6
        s_add_u32 s60, s60, {G.XFLAG}
        v_mov_b32 v{t1}, 0
        s_mov_b64 exec, 1
        buffer_store_dwordx2 {vr(t2,2)}, v{t1}, s[4:7], s60 offen sc1
        s_mov_b64 exec, -1""")
    NCV = 52 if cfg.defer else 4
    CV = a(NCV); cvi = [0]; later = []
    def emit_slot(row, r, conj):
        c = CV + (cvi[0] % NCV); cvi[0] += 1
        p(f"v_cvt_pk_f16_f32 v{c}, v{r}, {'-' if conj else ''}v{r+1}")
        w_ = f"ds_write_b32 v{vEw}, v{c} offset:{EI + row*ERS}"
        if cfg.defer: later.append(w_)
        else: p(w_)
        if cfg.warm == 1 and warm and cvi[0] % 3 == 0: warm.popleft()()
    def cmul_group(items):
        for d, x, y in items: p(f"v_mul_f32 v{d}, v{x}, v{y}\n v_mul_f32 v{d+1}, v{x}, v{y+1}")
        for d, x, y in items: p(f"v_fma_f32 v{d}, -v{x+1}, v{y+1}, v{d}\n v_fma_f32 v{d+1}, v{x+1}, v{y}, v{d+1}")
    Pw = {1: AN[8]}; Qw = {1: AN[64]}
    for i in range(2, 8): Pw[i] = a(2)
    for i in (2, 3): Qw[i] = a(2)
    Gv = {0: C}
    for j in range(1, 8): Gv[j] = a(2)
    Hv = [a(2), a(2)]; Iv = [a(2), a(2)]; TP = [a(2) for _ in range(4)]
    LROW = lambda idx: 32 + idx
    E1, E256 = AN[1], AN[256]
    emit_slot(1, Pw[1], False); emit_slot(8, Qw[1], False); emit_slot(LROW(0), C, True)
    cmul_group([(Pw[2], Pw[1], Pw[1]), (Qw[2], Qw[1], Qw[1]), (Gv[1], C, E1), (Hv[0], C, E256)])
    emit_slot(2, Pw[2], False); emit_slot(16, Qw[2], False); emit_slot(LROW(1), Gv[1], True); emit_slot(LROW(8), Hv[0], True)
    cmul_group([(Pw[3], Pw[2], Pw[1]), (Pw[4], Pw[2], Pw[2]), (Qw[3], Qw[2], Qw[1]), (Gv[2], Gv[1], E1), (Hv[1], Hv[0], E256)])
    emit_slot(3, Pw[3], False); emit_slot(4, Pw[4], False); emit_slot(24, Qw[3], False); emit_slot(LROW(2), Gv[2], True); emit_slot(LROW(12), Hv[1], True)
    cmul_group([(Pw[5], Pw[4], Pw[1]), (Pw[6], Pw[4], Pw[2]), (Pw[7], Pw[4], Pw[3]), (Gv[3], Gv[2], E1), (Hv[0], Hv[1], E256)])
    emit_slot(5, Pw[5], False); emit_slot(6, Pw[6], False); emit_slot(7, Pw[7], False); emit_slot(LROW(3), Gv[3], True); emit_slot(LROW(14), Hv[0], True)
    xflag()
    prods = deque([(i1, i0) for i1 in (1, 2, 3) for i0 in range(1, 8)])
    hcur = 0; hrows = deque([16, 17, 18, 19, 20]); gnext = 4; icur = None; irows = deque([10, 13, 15]); extra = deque([(2, 9), (6, 11)])
    while prods or hrows or gnext < 8 or irows or extra:
        items = []; outs = []; tp = 0
        if gnext < 8:
            items.append((Gv[gnext], Gv[gnext - 1], E1)); outs.append((LROW(gnext), Gv[gnext], True)); gnext += 1
        if hrows:
            items.append((Hv[1 - hcur], Hv[hcur], E256)); outs.append((LROW(hrows.popleft()), Hv[1 - hcur], True)); hcur = 1 - hcur
        if irows and gnext > 5:
            src = Gv[4] if icur is None else Iv[icur]; ni = 0 if icur is None else 1 - icur
            items.append((Iv[ni], src, E256)); outs.append((LROW(irows.popleft()), Iv[ni], True)); icur = ni
        if extra and gnext > extra[0][0] + 1:
            j, row = extra.popleft(); items.append((TP[tp], Gv[j], E256)); outs.append((LROW(row), TP[tp], True)); tp += 1
        while prods and tp < 4 and len(items) < 5:
            i1, i0 = prods.popleft(); items.append((TP[tp], Pw[i0], Qw[i1])); outs.append((8 * i1 + i0, TP[tp], False)); tp += 1
        cmul_group(items)
        for o in outs: emit_slot(*o)
    while cfg.warm == 1 and warm: warm.popleft()()
    for d in list(Pw.values()) + list(Qw.values()) + list(Gv.values()) + Hv + Iv + TP + [E1, E256]: V.free(d, 2)
    if cfg.bcut == 4:
        p("s_endpgm"); return V.hi_used
    late_consts()
    for _ in range(cfg.bdelay): p("s_sleep 16")
    p(f"v_mov_b32 v{t0}, 0x3c00\n ds_write_b32 v{vEw}, v{t0} offset:{EI}")
    for wi, w_ in enumerate(later):
        p(w_)
        if cfg.warm == 3 and warm and wi % 3 == 0: warm.popleft()()
    V.free(CV, NCV); V.free(a2); V.free(b2); V.free(P, 16)
    if cfg.bcut == 5:
        p("s_endpgm"); return V.hi_used
    XG = a(8, 4); XFL = a(2, 2)
    p(f"buffer_load_dwordx2 {vr(XFL,2)}, v{vLr}, s[4:7], s55 offen sc1")
    def xcheck():
        p(f"""s_mov_b32 s62, 0
L_b_poll:
        s_waitcnt vmcnt(0)
        v_xor_b32 v{t0}, s{S_TAGA}, v{XFL}
        v_xor_b32 v{t1}, s{S_TAGB}, v{XFL+1}
        v_or_b32 v{t0}, v{t0}, v{t1}
        v_cmp_ne_u32 vcc, 0, v{t0}
        s_add_u32 s62, s62, 1
        s_cmp_eq_u64 vcc, 0
        s_cbranch_scc1 L_b_got
        s_cmp_ge_u32 s62, {G.SPIN_MAX}
        s_cbranch_scc1 L_b_got
        s_sleep 1
        buffer_load_dwordx2 {vr(XFL,2)}, v{vLr}, s[4:7], s55 offen sc1
        s_branch L_b_poll
L_b_got:
        s_add_u32 s60, s74, {1 << 18}
        buffer_load_dwordx4 {vr(XG,4)}, v{vXo}, s[4:7], s74 offen sc1
        buffer_load_dwordx4 {vr(XG+4,4)}, v{vXo}, s[4:7], s60 offen sc1""")
    p("s_waitcnt lgkmcnt(0)\n s_barrier"); lg.done = len(lg.ops)
    stamp(p, 3)
    ACC = a(8, 4); FR = a(96, 4)
    for ks_ in range(8):
        p(f"ds_read_b128 {vr(FR+12*ks_,4)}, v{vEr} offset:{EI + ks_*64}")
        p(f"ds_read_b128 {vr(FR+12*ks_+4,4)}, v{vEr+1} offset:{EI + 32*ERS + ks_*64}")
        p(f"ds_read_b128 {vr(FR+12*ks_+8,4)}, v{vEr+1} offset:{EI + 48*ERS + ks_*64}")
        for _ in range(3): lg.issue(('e', ks_))
        if ks_ >= 3:
            k2 = ks_ - 3
            lg.wait(('e', k2))
            for tl in range(2):
                c = vr(ACC + 4 * tl, 4) if k2 else '0'
                p(f"v_mfma_f32_16x16x32_f16 {vr(ACC+4*tl,4)}, {vr(FR+12*k2+4+4*tl,4)}, {vr(FR+12*k2,4)}, {c}")
    for k2 in range(5, 8):
        lg.wait(('e', k2))
        for tl in range(2):
            p(f"v_mfma_f32_16x16x32_f16 {vr(ACC+4*tl,4)}, {vr(FR+12*k2+4+4*tl,4)}, {vr(FR+12*k2,4)}, {vr(ACC+4*tl,4)}")
    p(f"""v_cvt_pk_f16_f32 v{FR}, v{ACC}, v{ACC+1}
    v_cvt_pk_f16_f32 v{FR+1}, v{ACC+2}, v{ACC+3}
    v_cvt_pk_f16_f32 v{FR+2}, v{ACC+4}, v{ACC+5}
    v_cvt_pk_f16_f32 v{FR+3}, v{ACC+6}, v{ACC+7}
    ds_write_b32 v{aT}, v{FR} offset:{TT}
    ds_write_b32 v{aT+1}, v{FR+1} offset:{TT}
    ds_write_b16 v{aT+2}, v{FR+2} offset:{TT}
    s_mov_b64 exec, 0xffff
    ds_write_b16_d16_hi v{aT+3}, v{FR+2} offset:{TT+64}
    ds_write_b16 v{aT+3}, v{FR+3} offset:{TT+128}
    ds_write_b16_d16_hi v{aT+3}, v{FR+3} offset:{TT+192}
    s_mov_b64 exec, -1
    s_waitcnt lgkmcnt(0)
    s_barrier""")
    lg.done = len(lg.ops)
    V.free(ACC, 8); V.free(FR, 96); V.free(aT, 4)
    xcheck()
    WS_ = [[a(8, 2), a(9, 2), a(8, 2), a(9, 2)] for _ in range(2)]; EL = [a(15), a(15)]
    for ch in range(2):
        for e in range(15):
            p(f"ds_read_u16 v{EL[ch] + e}, v{GA+e} offset:{TT + ch*TCH}"); lg.issue(('el', ch))
    p(f"""v_mul_u32_u24 v{t0}, {KCS}, v{vi}
    ds_write_b128 v{t0}, {vr(ZR,4)} offset:{KC}""")
    lg.issue('z2')
    for ch in range(2):
        el = EL[ch]; W0, W1, S0, S1 = WS_[ch]
        lg.wait(('el', ch))
        def wr(s_):
            if s_ & 1: o = (7 - s_) // 2; e_, o_ = W0, W1
            else: o = (6 - s_) // 2; e_, o_ = S0, S1
            src = e_ + o if o % 2 == 0 else o_ + 1 + o
            p(f"ds_write_b128 v{vKW+ch}, {vr(src,4)} offset:{KC + s_*KCS + 16}"); lg.issue('kw')
            if cfg.warm == 2 and warm: warm.popleft()()
        for q in range(6): p(f"v_lshl_or_b32 v{W0+q}, v{el+2*q+1}, 16, v{el+2*q}")
        wr(7); wr(3)
        for q in range(6): p(f"v_lshl_or_b32 v{S0+q}, v{el+2*q+2}, 16, v{el+2*q+1}")
        wr(6); wr(2)
        for q in range(1, 7): p(f"v_lshl_or_b32 v{W1+1+q}, v{el+2*q+1}, 16, v{el+2*q}")
        wr(5); wr(1)
        for q in range(1, 7): p(f"v_lshl_or_b32 v{S1+1+q}, v{el+2*q+2}, 16, v{el+2*q+1}")
        wr(4); wr(0)
    for ch in range(2):
        for r, n in zip(WS_[ch], (8, 9, 8, 9)): V.free(r, n)
        V.free(EL[ch], 15)
    V.free(GA, 15)
    stamp(p, 4)
    if cfg.bcut == 6:
        p("s_endpgm"); return V.hi_used
    p("s_waitcnt vmcnt(0)")
    for i in range(2): p(f"ds_write_b128 v{vXw}, {vr(XG+4*i,4)} offset:{XBL + 512 + i*512}")
    V.free(XG, 8)
    p("s_waitcnt lgkmcnt(0)\n s_barrier"); lg.done = len(lg.ops)
    stamp(p, 5)
    if cfg.dumpK:
        Dm = a(4, 4)
        for ch in range(2):
            p(f"""ds_read_b128 {vr(Dm,4)}, v{vKW+ch} offset:{KC + 7*KCS + 16}
            s_lshl_b32 s60, s59, 13
            s_add_u32 s60, s60, {G.DBG + ch*4096}
            s_waitcnt lgkmcnt(0)
            buffer_store_dwordx4 {vr(Dm,4)}, v{vKW}, s[4:7], s60 offen
            s_waitcnt vmcnt(0)""")
        p(f"""s_lshl_b32 s60, s63, 2
        s_add_u32 s60, s60, {G.DBG + 0x400000}
        v_mov_b32 v{Dm+1}, 0
        buffer_store_dword v{vdt}, v{Dm+1}, s[4:7], s60 offen
        s_waitcnt vmcnt(0)""")
        V.free(Dm, 4)
    CA = a(32, 4); FA = [a(32, 4), a(32, 4)]; FB = [a(32, 4), a(32, 4)]; XN = a(8, 2)
    def rds(rr):
        out = []
        for k in range(8):
            def fa(k=k): p(f"ds_read_b128 {vr(FA[rr&1]+4*k,4)}, v{vA} offset:{KC + rr*64 + k*512}"); lg.issue(('f', rr, k))
            def fb(k=k): p(f"ds_read_b128 {vr(FB[rr&1]+4*k,4)}, v{vB} offset:{192 - rr*64 + k*512}"); lg.issue(('f', rr, k))
            out += [fa, fb]
        return out
    pairs = sorted([(aa, bb) for aa in range(8) for bb in range(8 - aa)], key=lambda t: (max(t), t[0] + t[1]))
    q_ = deque(rds(0))
    for _ in range(8): q_.popleft()()
    seen = set()
    for rr in range(4):
        if rr < 3: nxt = deque(rds(rr + 1))
        else:
            nxt = deque()
            for k in range(4):
                def fx(k=k): p(f"ds_read_b64 {vr(XN+2*k,2)}, v{vXe} offset:{XBL + 512 + k*512}"); lg.issue('xn')
                nxt.append(fx)
        for n_, (aa, bb) in enumerate(pairs):
            m_ = max(aa, bb)
            while lg.ops.count(('f', rr, m_)) < 2: q_.popleft()()
            lg.wait(('f', rr, m_))
            J = aa + bb
            c = vr(CA + 4 * J, 4) if J in seen else '0'
            seen.add(J)
            p(f"v_mfma_f32_16x16x32_f16 {vr(CA+4*J,4)}, {vr(FA[rr&1]+4*aa,4)}, {vr(FB[rr&1]+4*bb,4)}, {c}")
            if cfg.warm == 4 and warm and n_ % 3 == 0: warm.popleft()()
            if q_: q_.popleft()()
            elif nxt and n_ % 2 == 1 and n_ >= 4: nxt.popleft()()
        q_ = nxt
    while q_: q_.popleft()()
    stamp(p, 6)
    p(f"""s_lshl_b32 s60, s{S_WAVE}, 12
    v_add_u32 v{t1}, s60, v{vL16}
    s_xor_b32 s60, s60, 4096
    v_add_u32 v{t2}, s60, v{vL16}
    s_cmp_eq_u32 s58, 0
    s_barrier
    s_cbranch_scc1 L_b_e0""")
    for k in range(4): p(f"ds_write_b128 v{t1}, {vr(CA+4*k,4)} offset:{KC+k*1024}")
    for k in range(16): p(f"v_mov_b32 v{CA+k}, v{CA+16+k}")
    p("s_branch L_b_e1\nL_b_e0:")
    for k in range(4): p(f"ds_write_b128 v{t1}, {vr(CA+16+4*k,4)} offset:{KC+k*1024}")
    p("L_b_e1:\n s_waitcnt lgkmcnt(4)")
    for k in range(4):
        for r in range(4):
            p(f"v_fma_mix_f32 v{FB[1]+4*k+r}, v{XN+2*k+(r>>1)}, v{vDk}, 0 op_sel:[{r&1},0,0] op_sel_hi:[1,0,0]")
    O = FA[0]; GG = FB[0]
    p("s_waitcnt lgkmcnt(0)\n s_barrier")
    for k in range(4): p(f"ds_read_b128 {vr(O+4*k,4)}, v{t2} offset:{KC+k*1024}")
    for k in range(4):
        p(f"s_waitcnt lgkmcnt({3-k})")
        for r in range(4): p(f"v_add_f32 v{CA+4*k+r}, v{CA+4*k+r}, v{O+4*k+r}")
        for r in range(4): p(f"v_fma_f32 v{CA+4*k+r}, v{CA+4*k+r}, v{vdt}, v{FB[1]+4*k+r}")
        for h in range(2): p(f"v_cvt_pk_bf16_f32 v{GG+2*k+h}, v{CA+4*k+2*h}, v{CA+4*k+2*h+1}")
        if k & 1:
            g_ = GG + 2 * (k - 1)
            p(f"v_permlane16_swap_b32 v{g_}, v{g_+2}\n v_permlane16_swap_b32 v{g_+1}, v{g_+3}")
            p(f"buffer_store_dwordx4 {vr(g_,4)}, v{vSo}, s[4:7], s56 offen offset:{(k>>1)*1024} sc1")
    p(f"""v_mov_b32 v{t2}, s{S_TAGA}
    v_mov_b32 v{t3}, s{S_TAGB}
    s_lshl_b32 s60, s63, 1
    s_add_u32 s60, s60, s58
    s_lshl_b32 s60, s60, 6
    s_add_u32 s60, s60, {G.SFLAG}
    v_mov_b32 v{t1}, 0
    s_waitcnt vmcnt(0)
    s_mov_b64 exec, 1
    buffer_store_dwordx2 {vr(t2,2)}, v{t1}, s[4:7], s60 offen sc1
    s_mov_b64 exec, -1""")
    stamp(p, 7)
    p(f"""s_or_b32 s60, s2, s{S_WAVE}
    s_cmp_lg_u32 s60, 0
    s_cbranch_scc1 L_b_done""")
    if cfg.only != 'B':
        FL = FA[1]
        p(f"""v_lshlrev_b32 v{t3}, 8, v{lane}
        s_mov_b32 s62, 0
L_b_gpoll:""")
        for i in range(4):
            p(f"s_mov_b32 s60, {G.HFLAG + i*16384}\n buffer_load_dwordx2 {vr(FL+2*i,2)}, v{t3}, s[4:7], s60 offen sc1")
        p(f"s_waitcnt vmcnt(0)\n v_mov_b32 v{t0}, 0")
        for i in range(4):
            p(f"""v_xor_b32 v{t1}, s{S_TAGA}, v{FL+2*i}
            v_xor_b32 v{t2}, s{S_TAGB}, v{FL+2*i+1}
            v_or3_b32 v{t0}, v{t0}, v{t1}, v{t2}""")
        p(f"""v_cmp_ne_u32 vcc, 0, v{t0}
        s_add_u32 s62, s62, 1
        s_cmp_eq_u64 vcc, 0
        s_cbranch_scc1 L_b_gok
        s_cmp_ge_u32 s62, {G.SPIN_MAX}
        s_cbranch_scc1 L_b_gok
        s_sleep 8
        s_branch L_b_gpoll
L_b_gok:""")
    p(f"""v_mov_b32 v{t0}, s{S_TAGA}
    v_mov_b32 v{t1}, 0
    s_mov_b64 exec, 1
    buffer_store_dword v{t0}, v{t1}, s[4:7], 0 offen offset:{G.GEN}
    s_mov_b64 exec, -1
L_b_done:""")
    G.stamps_out(p, 8, CA)
    p("s_endpgm")
    return V.hi_used
```

```python
import sys, math, struct
from asmlib import *

NAME = "recurrent_scan__ssm_conv_s4__mixer_channel_mlp__prompt"
GEN = 0; HFLAG = 0x1000; HFLAG1 = 0x10000; AB = 0x30000; CF = 0x40000; WFLAG = 0x50000; XFLAG = 0x60000; SFLAG = 0x70000; W2P = 0x1200000; XNT = 0x100000; ST = 0x300000; HB = 0x500000
DBG = 0x2000000; TSB = 0x3000000
LDS_BYTES = 81920
SPIN_MAX = 200000

def f32(x): return '0x%08x' % struct.unpack('<I', struct.pack('<f', x))[0]
LOG2E = 1.4426950408889634

class Cfg:
    ts = False
    dumpK = False
    only = None
    prio2 = -1; dA = 0; dB = 0; dI = 0; swap = 0; scr = 0; bdelay = 0; tlb = 0; parlate = 1; wd = 1; mvg = 0; nm2 = 4; km2 = 4; nh1 = 4; g1lo = 10; emv = 0; gdm = 8; nosc = 0; nomf = 0; now2 = 0; noh = 0; rot2 = 1; nh0 = 4; fine2 = 0; touch1 = 0; touch = 2; w2late = 0; bcut = 0; bprio = 0; cpf = 1; wpi = 38; wpc = 44; defer = 1; warm = 0; nopk = 1; nxp = 3; prio = 2; fl0 = 52; p0i = 80; p0c = 50; kfl1 = -1; ks = 22; fine = 0; gstart = 36; glo = 12; kpoll = 9; exact = 0; rot = 7; nkr = 12; nodma = 0; nobounce = 0; nogelu = 0; nobar = 0; cyc = 0; dbgts = 0; ni = 0
cfg = Cfg()

S_WAVE = 3
S_WS = 4
PTR = lambda i: 16 + 2 * i
S_TAGA, S_TAGB = 50, 51

def srd(p, s, ptr_idx, nbytes):
    p(f"""s_mov_b32 s{s}, s{PTR(ptr_idx)}
    s_mov_b32 s{s+1}, s{PTR(ptr_idx)+1}
    s_mov_b32 s{s+2}, {nbytes}
    s_mov_b32 s{s+3}, 0x20000""")

ts_count = [0]
def stamp(p, k):
    if cfg.ts: p(f"{'s_memtime' if cfg.cyc else 's_memrealtime'} s[{80+2*k}:{81+2*k}]")
def stamps_out(p, n, vt):
    if not cfg.ts: return
    if cfg.dbgts:
        lab = 'L_dbg%d' % len(p.ins)
        p(f"""s_waitcnt lgkmcnt(0)
        s_and_b32 s76, s2, 255
        s_cmp_lg_u32 s76, {cfg.dbgts - 1}
        s_cbranch_scc1 {lab}
        s_mov_b32 s76, s46
        s_mov_b32 s77, s47
        s_mov_b32 s78, 256
        s_mov_b32 s79, 0x20000
        s_lshr_b32 s75, s2, 8
        s_lshl_b32 s75, s75, 5
        v_mov_b32 v{vt+4}, 0
        v_cmp_eq_u32 vcc, 0, v0
        s_and_saveexec_b64 s[72:73], vcc""")
        for k in range(0, 8, 4):
            for j in range(4): p(f"v_mov_b32 v{vt+j}, s{80+2*(k+j)}")
            p(f"buffer_store_dwordx4 {vr(vt,4)}, v{vt+4}, s[76:79], s75 offen offset:{k*4}\n s_nop 2")
        p(f"s_mov_b64 exec, s[72:73]\n{lab}:")
        return
    p(f"""s_waitcnt lgkmcnt(0)
    v_cmp_eq_u32 vcc, 0, v0
    s_and_saveexec_b64 s[76:77], vcc
    s_lshl_b32 s78, s2, 4
    v_mov_b32 v{vt+4}, s78""")
    for k in range(n - 1):
        p(f"""v_mov_b32 v{vt}, s{80+2*k}
        v_mov_b32 v{vt+1}, s{81+2*k}
        v_mov_b32 v{vt+2}, s{82+2*k}
        v_mov_b32 v{vt+3}, s{83+2*k}
        s_mov_b32 s78, {TSB + k*0x10000}
        buffer_store_dwordx4 {vr(vt,4)}, v{vt+4}, s[4:7], s78 offen
        s_nop 2""")
    p("s_mov_b64 exec, s[76:77]")

def make_tags(p, vgen):
    p(f"""v_readfirstlane_b32 s{S_TAGA}, v{vgen}
    s_mul_i32 s{S_TAGA}, s{S_TAGA}, 0x9E3779B1
    s_add_u32 s{S_TAGA}, s{S_TAGA}, 0x7F4A7C15
    s_xor_b32 s{S_TAGB}, s{S_TAGA}, 0x5bd1e995""")

def reduce4(p, A1, A2, Z2):
    p(f"""v_permlane16_swap_b32 v{A1}, v{A1+1}
    v_permlane16_swap_b32 v{A2}, v{A2+1}
    v_add_f32 v{A1}, v{A1}, v{A1+1}
    v_add_f32 v{A2}, v{A2}, v{A2+1}
    v_permlane32_swap_b32 v{A1}, v{A2}
    v_add_f32 v{A1}, v{A1}, v{A2}
    v_add_f32_dpp v{A1}, v{A1}, v{A1} quad_perm:[1,0,3,2] row_mask:0xf bank_mask:0xf
    v_add_f32_dpp v{A1}, v{A1}, v{A1} quad_perm:[2,3,0,1] row_mask:0xf bank_mask:0xf
    v_add_f32_dpp v{A1}, v{A1}, v{A1} row_half_mirror row_mask:0xf bank_mask:0xf
    v_add_f32_dpp v{A1}, v{A1}, v{A1} row_mirror row_mask:0xf bank_mask:0xf
    v_mov_b32 v{Z2}, v{A1}
    v_permlane32_swap_b32 v{A1}, v{Z2}""")

XBL = 0; XCH = 4608
TT = 9216 + 16; TCH = 1344
KC = 12288; KCS = 4160; KCH = 8 * KCS
LNB = KC
PT = KC + 8192
PX = KC + 16384

def role_B(p, vgen):
    V = Regs('v', 4, 256)
    lane = 1
    a = V.alloc
    vL16 = a(); XA = a(4, 2); XB = a(4, 2); PR = a(6); vLd = a(); vDk = a(); t0 = a(); t1 = a(); t2 = a(); t3 = a()
    srd(p, 8, 0, 2048 * 1024)
    p(f"""s_lshl_b32 s61, s2, 3
    s_lshl_b32 s62, s{S_WAVE}, 1
    s_add_u32 s61, s61, s62
    s_lshl_b32 s62, s61, 10
    v_lshlrev_b32 v{vL16}, 4, v{lane}
    buffer_load_dwordx4 {vr(XA,4)}, v{vL16}, s[8:11], s62 offen
    buffer_load_dwordx4 {vr(XB,4)}, v{vL16}, s[8:11], s62 offen offset:1024
    s_lshr_b32 s63, s{S_WAVE}, 1
    s_lshl_b32 s60, s2, 1
    s_add_u32 s63, s63, s60
    s_lshl_b32 s60, s63, 8
    v_lshl_add_u32 v{t0}, v{lane}, 2, s60
    s_lshl_b32 s60, s63, 1
    v_mov_b32 v{t1}, s60""")
    for k in range(6):
        p(f"global_load_dword v{PR+k}, v{t0}, {sr(PTR(1+k),2)}")
    p(f"global_load_ushort v{vLd}, v{t1}, {sr(PTR(7),2)}")
    p(f"global_load_ushort v{vDk}, v{t1}, {sr(PTR(8),2)}")
    vi = a(); vg = a(); tB = a(2, 2); tA = a(6, 2)
    p(f"""v_and_b32 v{vi}, 15, v{lane}
    v_lshrrev_b32 v{vg}, 4, v{lane}
    v_lshlrev_b32 v{t0}, 4, v{vi}
    v_cvt_f32_u32 v{tB}, v{t0}
    v_cvt_f32_u32 v{tA}, v{vi}
    v_lshlrev_b32 v{t0}, 1, v{vi}
    v_add_u32 v{t0}, 256, v{t0}
    v_bfe_u32 v{t1}, v{vi}, 2, 1
    v_lshlrev_b32 v{t1}, 8, v{t1}
    v_and_b32 v{t2}, 3, v{vi}
    v_lshl_add_u32 v{t1}, v{t2}, 2, v{t1}
    v_add_u32 v{t1}, 512, v{t1}
    v_cmp_gt_u32 vcc, 8, v{vi}
    v_cndmask_b32 v{t0}, v{t1}, v{t0}, vcc
    v_cvt_f32_u32 v{tA+2}, v{t0}
    v_lshrrev_b32 v{t0}, 1, v{vi}
    v_lshlrev_b32 v{t0}, 8, v{t0}
    v_and_b32 v{t1}, 1, v{vi}
    v_lshl_add_u32 v{t0}, v{t1}, 3, v{t0}
    v_add_u32 v{t0}, 1024, v{t0}
    v_min_u32 v{t0}, 2048, v{t0}
    v_cvt_f32_u32 v{tA+4}, v{t0}""")
    GA = a(16)
    p(f"v_lshlrev_b32 v{t3}, 3, v0")
    for e in range(0, 16, 2):
        for h in range(2):
            d = 7 - (e + h)
            p(f"v_add_u32 v{GA+e+h}, {d}, v{t3}")
            p(f"v_max_i32 v{t0+h}, 128, v{GA+e+h}")
            p(f"v_cvt_f32_i32 v{t0+h}, v{t0+h}")
        p(f"""v_cvt_pk_bf16_f32 v{t0}, v{t0}, v{t1}
        v_lshrrev_b32 v{t1}, 16, v{t0}
        v_and_b32 v{t0}, 0xffff, v{t0}""")
        for h in range(2):
            p(f"v_subrev_u32 v{t0+h}, 0x4280, v{t0+h}")
            p(f"v_min_i32 v{GA+e+h}, v{t0+h}, v{GA+e+h}")
            p(f"v_lshlrev_b32 v{GA+e+h}, 1, v{GA+e+h}")
            p(f"v_add_u32 v{GA+e+h}, {TT}, v{GA+e+h}")
    P = a(16, 2); D = a(16, 2); A1 = a(2, 2); A2 = a(2, 2); B1 = a(2, 2); B2 = a(2, 2); Z2 = a(); vC0 = a(); vM = a(); vR = a()
    p("s_waitcnt vmcnt(8)")
    stamp(p, 1)
    for q in range(4):
        p(f"""v_lshlrev_b32 v{P+4*q}, 16, v{XA+q}
        v_lshlrev_b32 v{P+4*q+1}, 16, v{XB+q}
        v_and_b32 v{P+4*q+2}, 0xffff0000, v{XA+q}
        v_and_b32 v{P+4*q+3}, 0xffff0000, v{XB+q}""")
    p(f"""v_readfirstlane_b32 s64, v{P}
    v_readfirstlane_b32 s65, v{P+1}
    s_mov_b32 s70, 0xffff0000
    s_mov_b32 s71, 0xffff0000""")
    make_tags(p, vgen)
    for c in range(8):
        p(f"v_pk_add_f32 {vr(D+2*c,2)}, {vr(P+2*c,2)}, s[64:65] neg_lo:[0,1] neg_hi:[0,1]")
    def sums(X):
        p(f"""v_pk_add_f32 {vr(A1,2)}, {vr(X,2)}, {vr(X+2,2)}
        v_pk_add_f32 {vr(B1,2)}, {vr(X+4,2)}, {vr(X+6,2)}
        v_pk_mul_f32 {vr(A2,2)}, {vr(X,2)}, {vr(X,2)}
        v_pk_mul_f32 {vr(B2,2)}, {vr(X+2,2)}, {vr(X+2,2)}""")
        for c in range(4, 8):
            acc = A1 if c % 2 == 0 else B1
            p(f"v_pk_add_f32 {vr(acc,2)}, {vr(acc,2)}, {vr(X+2*c,2)}")
        for c in range(2, 8):
            acc = A2 if c % 2 == 0 else B2
            p(f"v_pk_fma_f32 {vr(acc,2)}, {vr(X+2*c,2)}, {vr(X+2*c,2)}, {vr(acc,2)}")
        p(f"""v_pk_add_f32 {vr(A1,2)}, {vr(A1,2)}, {vr(B1,2)}
        v_pk_add_f32 {vr(A2,2)}, {vr(A2,2)}, {vr(B2,2)}""")
    sums(D)
    p(f"""v_mov_b32 v{vC0}, s64
    s_mov_b64 exec, s[70:71]
    v_mov_b32 v{vC0}, s65
    s_mov_b64 exec, -1""")
    reduce4(p, A1, A2, Z2)
    def stats(mean_add, vm, vsd_r, vsd):
        p(f"""v_mul_f32 v{A1}, {f32(1/512)}, v{A1}
        v_mul_f32 v{Z2}, {f32(1/512)}, v{Z2}
        v_fma_f32 v{Z2}, -v{A1}, v{A1}, v{Z2}
        v_max_f32 v{Z2}, 0, v{Z2}""")
        if mean_add is not None: p(f"v_add_f32 v{A1}, v{mean_add}, v{A1}")
        p(f"""v_cvt_pk_bf16_f32 v{t0}, v{A1}, v{Z2}
        v_lshlrev_b32 v{vm}, 16, v{t0}
        v_and_b32 v{t0}, 0xffff0000, v{t0}
        v_add_f32 v{t0}, {f32(1e-5)}, v{t0}
        v_cvt_pk_bf16_f32 v{t0}, v{t0}, v{t0}
        v_lshlrev_b32 v{t0}, 16, v{t0}
        v_sqrt_f32 v{t0}, v{t0}
        v_cvt_pk_bf16_f32 v{t0}, v{t0}, v{t0}
        v_lshlrev_b32 v{vsd}, 16, v{t0}""")
        if vsd_r is not None: p(f"v_rcp_f32 v{vsd_r}, v{vsd}")
    vSD = a()
    stats(vC0, vM, vR, vSD)
    p(f"""v_readlane_b32 s66, v{vM}, 0
    v_readlane_b32 s67, v{vM}, 16
    v_readlane_b32 s68, v{vR}, 0
    v_readlane_b32 s69, v{vR}, 16""")
    F = a(8, 2); K_ = a(8)
    for c in range(8): p(f"v_pk_add_f32 {vr(D+2*c,2)}, {vr(P+2*c,2)}, s[66:67] neg_lo:[0,1] neg_hi:[0,1]")
    for c in range(8): p(f"v_cvt_pk_bf16_f32 v{K_+c}, v{D+2*c}, v{D+2*c+1}")
    for c in range(8):
        p(f"v_lshlrev_b32 v{D+2*c}, 16, v{K_+c}\n v_and_b32 v{D+2*c+1}, 0xffff0000, v{K_+c}")
    for c in range(8): p(f"v_pk_mul_f32 {vr(D+2*c,2)}, {vr(D+2*c,2)}, s[68:69]")
    for c in range(8): p(f"v_cvt_pk_bf16_f32 v{K_+c}, v{D+2*c}, v{D+2*c+1}")
    for c in range(8):
        p(f"v_lshlrev_b32 v{D+2*c}, 16, v{K_+c}\n v_and_b32 v{D+2*c+1}, 0xffff0000, v{K_+c}")
    for c in range(8): p(f"v_cvt_pkrtz_f16_f32 v{F+c}, v{D+2*c}, v{D+2*c+1}")
    p(f"""s_lshl_b32 s60, s{S_WAVE}, 11
    v_lshl_add_u32 v{t1}, v{lane}, 5, s60
    ds_write_b128 v{t1}, {vr(F,4)} offset:{LNB}
    ds_write_b128 v{t1}, {vr(F+4,4)} offset:{LNB+16}""")
    sums(D)
    reduce4(p, A1, A2, Z2)
    G = a(16, 2)
    vM2 = a(); vR2 = a()
    stats(None, vM2, None, vR2)
    p(f"""v_fma_f32 v{t0}, -v{vM2}, v{vSD}, -v{vM}
    v_mul_f32 v{t1}, v{vSD}, v{vR2}
    v_cvt_pk_bf16_f32 v{G}, v{t0}, v{t0}
    v_cvt_pk_bf16_f32 v{t2}, v{t1}, v{t1}
    v_and_b32 v{t3}, 0xffff0000, v{G}
    v_sub_f32 v{t0}, v{t0}, v{t3}
    v_and_b32 v{t3}, 0xffff0000, v{t2}
    v_sub_f32 v{t2}, v{t1}, v{t3}
    v_cvt_pk_bf16_f32 v{G+1}, v{t0}, v{t1}
    v_cvt_pk_bf16_f32 v{G+2}, v{t2}, 0
    v_mov_b32 v{G+3}, s{S_TAGA}
    v_lshlrev_b32 v{t0}, 4, v{vg}
    s_lshl_b32 s60, s61, 4
    s_add_u32 s60, s60, {AB}
    s_mov_b64 exec, 0x10001
    buffer_store_dwordx4 {vr(G,4)}, v{t0}, s[4:7], s60 offen sc1
    s_mov_b64 exec, -1
    s_waitcnt lgkmcnt(0)
    s_barrier""")
    p(f"""v_lshrrev_b32 v{t0}, 1, v0
    v_lshlrev_b32 v{t0}, 2, v{t0}
    v_and_b32 v{t1}, 1, v0
    v_lshl_add_u32 v{t0}, v{t1}, 12, v{t0}""")
    for i in range(4):
        p(f"ds_read2st64_b32 {vr(G+4*i,2)}, v{t0} offset0:{(LNB + i*512)//256} offset1:{(LNB + i*512)//256 + 8}")
        p(f"v_mov_b32 v{G+4*i+2}, s{S_TAGA}\n v_mov_b32 v{G+4*i+3}, s{S_TAGB}")
    p(f"""v_lshlrev_b32 v{t0}, 4, v0
    s_lshl_b32 s60, s2, 14
    s_add_u32 s60, s60, {XNT}""")
    for i in range(4):
        p(f"s_waitcnt lgkmcnt({3-i})")
        p(f"buffer_store_dwordx4 {vr(G+4*i,4)}, v{t0}, s[4:7], s60 offen sc1")
        if i < 3: p("s_add_u32 s60, s60, 4096")
    stamp(p, 2)
    for r, n in ((P, 16), (D, 16), (A1, 2), (A2, 2), (B1, 2), (B2, 2), (Z2, 1), (vC0, 1), (vM, 1), (vR, 1), (F, 8), (K_, 8), (vM2, 1), (vR2, 1), (XA, 4), (XB, 4)): V.free(r, n)
    p("s_waitcnt vmcnt(5)")
    if cfg.warm:
        DUM = a(4, 4)
        srd(p, 12, 12, 1792 * 1024)
        p(f"""s_lshr_b32 s60, s2, 3
        s_lshl_b32 s60, s60, 2
        s_add_u32 s60, s60, s{S_WAVE}
        s_mul_i32 s60, s60, {14*1024}""")
        for i in range(14):
            if i and i % 4 == 0: p("s_add_u32 s60, s60, 4096")
            p(f"buffer_load_dwordx4 {vr(DUM,4)}, v{vL16}, s[12:15], s60 offen offset:{(i%4)*1024}")
    U = a(12, 2); E = a(8, 2); vdt = a()
    p(f"""v_lshlrev_b32 v{vdt}, 16, v{vLd}
    v_mul_f32 v{vdt}, {f32(LOG2E)}, v{vdt}
    v_exp_f32 v{vdt}, v{vdt}
    v_lshlrev_b32 v{vDk}, 16, v{vDk}
    v_cvt_pk_bf16_f32 v{vdt}, v{vdt}, v{vdt}
    v_lshlrev_b32 v{vdt}, 16, v{vdt}""")
    for k in range(6):
        p(f"v_lshlrev_b32 v{U+2*k}, 16, v{PR+k}\n v_and_b32 v{U+2*k+1}, 0xffff0000, v{PR+k}")
    for k in range(4):
        for h in range(2): p(f"v_mul_f32 v{U+2*k+h}, v{vdt}, v{U+2*k+h}")
    for h in range(2):
        p(f"""v_mul_f32 v{E+4*h}, {f32(LOG2E)}, v{U+h}
        v_mul_f32 v{E+4*h+1}, {f32(1/(2*math.pi))}, v{U+2+h}
        v_mul_f32 v{E+4*h+2}, v{U+8+h}, v{U+4+h}
        v_fma_f32 v{E+4*h+2}, -v{U+10+h}, v{U+6+h}, v{E+4*h+2}
        v_mul_f32 v{E+4*h+3}, v{U+8+h}, v{U+6+h}
        v_fma_f32 v{E+4*h+3}, v{U+10+h}, v{U+4+h}, v{E+4*h+3}""")
    p(f"""v_max_f32 v{t0}, |v{E+2}|, |v{E+3}|
    v_max3_f32 v{t0}, |v{E+6}|, |v{E+7}|, v{t0}
    v_max_f32_dpp v{t0}, v{t0}, v{t0} quad_perm:[1,0,3,2] row_mask:0xf bank_mask:0xf
    v_max_f32_dpp v{t0}, v{t0}, v{t0} quad_perm:[2,3,0,1] row_mask:0xf bank_mask:0xf
    v_max_f32_dpp v{t0}, v{t0}, v{t0} row_half_mirror row_mask:0xf bank_mask:0xf
    v_max_f32_dpp v{t0}, v{t0}, v{t0} row_mirror row_mask:0xf bank_mask:0xf
    v_max_f32_dpp v{t0}, v{t0}, v{t0} row_bcast:15 row_mask:0xa bank_mask:0xf
    v_max_f32_dpp v{t0}, v{t0}, v{t0} row_bcast:31 row_mask:0xc bank_mask:0xf
    v_frexp_exp_i32_f32 v{t0}, v{t0}
    v_readlane_b32 s72, v{t0}, 63
    s_sub_u32 s73, 0, s72
    s_and_b32 s60, s{S_WAVE}, 1
    s_cmp_eq_u32 s60, 1
    s_cselect_b64 vcc, -1, 0""")
    for k in range(4): p(f"v_cndmask_b32 v{E+k}, v{E+k}, v{E+4+k}, vcc")
    p(f"""v_ldexp_f32 v{E+2}, v{E+2}, s73
    v_ldexp_f32 v{E+3}, v{E+3}, s73
    s_lshl_b32 s60, s{S_WAVE}, 10
    v_add_u32 v{t1}, s60, v{vL16}
    ds_write_b128 v{t1}, {vr(E,4)} offset:{PT}
    v_lshl_add_u32 v{t1}, v{vg}, 6, s60
    s_waitcnt lgkmcnt(0)""")
    V.free(U, 12); V.free(E, 8); V.free(PR, 6)
    ACC = a(12, 4); Q = a(32, 4); FR = a(32, 4)
    W_ = a(24, 2)
    def rdq(kap):
        for q in range(4): p(f"ds_read_b128 {vr(Q + (kap&1)*16 + 4*q, 4)}, v{t1} offset:{PT + kap*256 + q*16}")
    rdq(0)
    for kap in range(4):
        if kap < 3: rdq(kap + 1); p("s_waitcnt lgkmcnt(4)")
        else: p("s_waitcnt lgkmcnt(0)")
        fr = FR + (kap & 1) * 16
        for q in range(4):
            pq = Q + (kap & 1) * 16 + 4 * q
            ts_ = [tA, tA + 2, tA + 4, tB]
            for k in range(4):
                w = W_ + 6 * k
                p(f"v_pk_mul_f32 {vr(w,2)}, {vr(pq,2)}, {vr(ts_[k],2)} op_sel_hi:[1,0]")
            for k in range(4): p(f"v_fract_f32 v{W_+6*k+1}, v{W_+6*k+1}")
            for k in range(4):
                w = W_ + 6 * k
                p(f"v_exp_f32 v{w}, v{w}\n v_cos_f32 v{w+2}, v{w+1}\n v_sin_f32 v{w+3}, v{w+1}")
            for k in range(4):
                w = W_ + 6 * k
                p(f"v_pk_mul_f32 {vr(w+2,2)}, {vr(w+2,2)}, {vr(w,2)} op_sel_hi:[1,0]")
            for k in range(3):
                w = W_ + 6 * k
                p(f"v_cvt_pk_f16_f32 v{fr+4*k+q}, v{w+2}, v{w+3}")
            w = W_ + 18
            p(f"""v_mul_f32 v{w+4}, v{pq+2}, v{w+2}
            v_mul_f32 v{w+5}, v{pq+2}, v{w+3}
            v_fma_f32 v{w+4}, -v{pq+3}, v{w+3}, v{w+4}
            v_fma_f32 v{w+5}, v{pq+3}, v{w+2}, v{w+5}
            v_cvt_pk_f16_f32 v{fr+12+q}, v{w+4}, -v{w+5}""")
        for k in range(3):
            c = vr(ACC + 4 * k, 4) if kap else '0'
            p(f"v_mfma_f32_16x16x32_f16 {vr(ACC+4*k,4)}, {vr(fr+4*k,4)}, {vr(fr+12,4)}, {c}")
    V.free(Q, 32); V.free(FR, 32); V.free(W_, 24)
    stamp(p, 3)
    XG = a(16, 4); vXo = a()
    p(f"""v_lshrrev_b32 v{vXo}, 2, v{lane}
    v_lshlrev_b32 v{vXo}, 14, v{vXo}
    v_and_b32 v{t0}, 3, v{lane}
    v_lshl_add_u32 v{vXo}, v{t0}, 4, v{vXo}
    s_lshl_b32 s74, s{S_WAVE}, 20
    s_lshl_b32 s60, s2, 6
    s_add_u32 s74, s74, s60
    s_add_u32 s74, s74, {XNT}""")
    def gather():
        for i in range(4):
            p(f"s_add_u32 s60, s74, {i << 18}")
            p(f"buffer_load_dwordx4 {vr(XG+4*i,4)}, v{vXo}, s[4:7], s60 offen sc1")
    gather()
    p(f"""s_lshr_b32 s60, s{S_WAVE}, 1
    s_mul_i32 s75, s60, 3072
    v_add_u32 v{t1}, s75, v{vL16}
    s_and_b32 s62, s{S_WAVE}, 1
    s_cmp_eq_u32 s62, 0
    s_cbranch_scc1 L_b_even1""")
    for k in range(3): p(f"ds_write_b128 v{t1}, {vr(ACC+4*k,4)} offset:{PX + k*1024}")
    ZR = a(4, 2)
    p(f"""v_mov_b32 v{ZR}, 0
    v_mov_b32 v{ZR+1}, 0
    s_mul_i32 s75, s60, {XCH}
    v_lshl_add_u32 v{t0}, v{lane}, 3, s75
    ds_write_b64 v{t0}, {vr(ZR,2)} offset:{XBL}
    s_mul_i32 s75, s60, {TCH}
    v_and_b32 v{t0}, 3, v{lane}
    v_lshl_add_u32 v{t0}, v{t0}, 2, s75
    ds_write_b32 v{t0}, v{ZR} offset:{TT-16}
    s_waitcnt lgkmcnt(0)
L_b_even1:
    s_barrier
    s_cbranch_scc0 L_b_odd2""")
    O = a(12, 4)
    for k in range(3): p(f"ds_read_b128 {vr(O+4*k,4)}, v{t1} offset:{PX + k*1024}")
    a0 = a(); a1 = a(); a2 = a()
    p(f"""s_mul_i32 s75, s60, {TCH}
    v_lshlrev_b32 v{a0}, 5, v{vi}
    v_lshl_add_u32 v{a0}, v{vg}, 3, v{a0}
    v_add_u32 v{a0}, s75, v{a0}
    v_lshlrev_b32 v{a1}, 4, v{vi}
    v_lshl_add_u32 v{a1}, v{vg}, 3, v{a1}
    v_add_u32 v{a1}, 512, v{a1}
    v_lshlrev_b32 v{t0}, 3, v{vi}
    v_lshl_add_u32 v{t0}, v{vg}, 7, v{t0}
    v_add_u32 v{t0}, {768-256}, v{t0}
    v_cmp_gt_u32 vcc, 2, v{vg}
    v_cndmask_b32 v{a1}, v{t0}, v{a1}, vcc
    v_add_u32 v{a1}, s75, v{a1}
    v_lshlrev_b32 v{a2}, 2, v{vi}
    v_lshl_add_u32 v{a2}, v{vg}, 7, v{a2}
    v_add_u32 v{a2}, s75, v{a2}
    s_waitcnt lgkmcnt(0)""")
    for k in range(12): p(f"v_add_f32 v{ACC+k}, v{ACC+k}, v{O+k}")
    for k in range(6): p(f"v_cvt_pk_f16_f32 v{O+k}, v{ACC+2*k}, v{ACC+2*k+1}")
    p(f"""ds_write_b64 v{a0}, {vr(O,2)} offset:{TT}
    ds_write_b64 v{a1}, {vr(O+2,2)} offset:{TT}
    s_mov_b32 s76, -1
    s_mov_b32 s77, 1
    s_mov_b64 exec, s[76:77]
    ds_write_b32 v{a2}, v{O+4} offset:{TT+1024}
    s_mov_b32 s77, 0
    s_mov_b64 exec, s[76:77]
    ds_write_b32 v{a2}, v{O+5} offset:{TT+1024+64}
    s_mov_b64 exec, -1
    s_waitcnt lgkmcnt(0)
L_b_odd2:
    s_barrier""")
    for r in (a0, a1, a2): V.free(r)
    V.free(O, 12); V.free(ACC, 12)
    vKW = a(2)
    p(f"v_lshlrev_b32 v{vKW}, 4, v0\n v_add_u32 v{vKW+1}, {KCH}, v{vKW}")
    W0 = a(8, 2); W1 = a(9, 2); S0 = a(8, 2); S1 = a(9, 2); EL = [a(15), a(15)]
    for ch in range(2):
        for e in range(15):
            p(f"ds_read_u16 v{EL[ch] + e}, v{GA+e} offset:{ch*TCH}")
    for ch in range(2):
        el = EL[ch]
        p(f"s_waitcnt lgkmcnt({15 if ch == 0 else 8})")
        for q in range(7):
            p(f"v_lshl_or_b32 v{W0+q}, v{el+2*q+1}, 16, v{el+2*q}")
            p(f"v_lshl_or_b32 v{S0+q}, v{el+2*q+2}, 16, v{el+2*q+1}")
        for q in range(1, 7):
            p(f"v_lshl_or_b32 v{W1+1+q}, v{el+2*q+1}, 16, v{el+2*q}")
            p(f"v_lshl_or_b32 v{S1+1+q}, v{el+2*q+2}, 16, v{el+2*q+1}")
        for s_ in range(8):
            if s_ & 1: o = (7 - s_) // 2; e_, o_ = W0, W1
            else: o = (6 - s_) // 2; e_, o_ = S0, S1
            src = e_ + o if o % 2 == 0 else o_ + 1 + o
            p(f"ds_write_b128 v{vKW+ch}, {vr(src,4)} offset:{KC + s_*KCS + 16}")
    p(f"""v_mov_b32 v{ZR}, 0
    v_mov_b32 v{ZR+1}, 0
    v_mov_b32 v{ZR+2}, 0
    v_mov_b32 v{ZR+3}, 0
    v_mul_u32_u24 v{t0}, {KCS}, v{vi}
    ds_write_b128 v{t0}, {vr(ZR,4)} offset:{KC}""")
    for r, n in ((W0, 8), (W1, 9), (S0, 8), (S1, 9), (GA, 16), (EL[0], 15), (EL[1], 15)): V.free(r, n)
    stamp(p, 4)
    p(f"""s_mov_b32 s62, 0
L_b_poll:
    s_waitcnt vmcnt(0)
    v_xor_b32 v{t0}, s{S_TAGA}, v{XG+2}
    v_xor_b32 v{t1}, s{S_TAGB}, v{XG+3}
    v_or_b32 v{t0}, v{t0}, v{t1}""")
    for i in range(1, 4):
        p(f"""v_xor_b32 v{t1}, s{S_TAGA}, v{XG+4*i+2}
        v_xor_b32 v{t2}, s{S_TAGB}, v{XG+4*i+3}
        v_or3_b32 v{t0}, v{t0}, v{t1}, v{t2}""")
    p(f"""v_cmp_ne_u32 vcc, 0, v{t0}
    s_add_u32 s62, s62, 1
    s_cmp_eq_u64 vcc, 0
    s_cbranch_scc1 L_b_got
    s_cmp_ge_u32 s62, {SPIN_MAX}
    s_cbranch_scc1 L_b_got
    s_sleep 1""")
    gather()
    p("s_branch L_b_poll\nL_b_got:")
    p(f"""v_lshrrev_b32 v{t0}, 2, v{lane}
    v_lshlrev_b32 v{t0}, 4, v{t0}
    v_and_b32 v{t1}, 1, v{lane}
    v_lshl_add_u32 v{t0}, v{t1}, 3, v{t0}
    v_bfe_u32 v{t1}, v{lane}, 1, 1
    v_mul_u32_u24 v{t1}, {XCH}, v{t1}
    s_lshl_b32 s60, s{S_WAVE}, 10
    v_add3_u32 v{t0}, v{t0}, v{t1}, s60""")
    for i in range(4): p(f"ds_write_b64 v{t0}, {vr(XG+4*i,2)} offset:{XBL + 512 + i*256}")
    V.free(XG, 16)
    vA = a(); vB = a()
    p(f"""s_lshr_b32 s60, s{S_WAVE}, 1
    s_and_b32 s62, s{S_WAVE}, 1
    s_lshl_b32 s62, s62, 8
    v_and_b32 v{vA}, 7, v{vi}
    v_mul_u32_u24 v{vA}, {KCS}, v{vA}
    v_lshrrev_b32 v{t0}, 3, v{vi}
    v_sub_u32 v{t0}, v{t0}, v{vg}
    v_add_u32 v{t0}, 3, v{t0}
    v_lshl_add_u32 v{vA}, v{t0}, 4, v{vA}
    s_mul_i32 s75, s60, {KCH}
    s_add_u32 s75, s75, s62
    v_add_u32 v{vA}, s75, v{vA}
    v_lshlrev_b32 v{vB}, 5, v{vi}
    v_lshl_add_u32 v{vB}, v{vg}, 4, v{vB}
    s_mul_i32 s75, s60, {XCH}
    s_sub_u32 s75, s75, s62
    s_add_u32 s75, s75, {XBL + 480 - 192}
    v_add_u32 v{vB}, s75, v{vB}
    s_waitcnt lgkmcnt(0)
    s_barrier""")
    stamp(p, 5)
    if cfg.dumpK:
        Dm = a(4, 4)
        for ch in range(2):
            p(f"""ds_read_b128 {vr(Dm,4)}, v{vKW+ch} offset:{KC + 7*KCS + 16}
            s_lshl_b32 s60, s2, 13
            s_add_u32 s60, s60, {DBG + ch*4096}
            s_waitcnt lgkmcnt(0)
            buffer_store_dwordx4 {vr(Dm,4)}, v{vKW}, s[4:7], s60 offen
            s_waitcnt vmcnt(0)""")
        p(f"""v_mov_b32 v{Dm}, s72
        s_lshl_b32 s60, s63, 2
        s_add_u32 s60, s60, {DBG + 0x400000}
        v_mov_b32 v{Dm+1}, 0
        buffer_store_dword v{Dm}, v{Dm+1}, s[4:7], s60 offen
        s_waitcnt vmcnt(0)""")
        V.free(Dm, 4)
    CA = a(32, 4); FA = [a(32, 4), a(32, 4)]; FB = [a(32, 4), a(32, 4)]
    def rd_res(rr):
        bsel = rr & 1
        for k in range(8):
            p(f"ds_read_b128 {vr(FA[bsel]+4*k,4)}, v{vA} offset:{KC + rr*64 + k*512}")
            p(f"ds_read_b128 {vr(FB[bsel]+4*k,4)}, v{vB} offset:{192 - rr*64 + k*512}")
    rd_res(0)
    for rr in range(4):
        bsel = rr & 1
        pairs = sorted([(aa, bb) for aa in range(8) for bb in range(8 - aa)], key=lambda t: (max(t), t[0] + t[1]))
        nxt = []
        if rr < 3:
            nb = (rr + 1) & 1
            for k in range(8):
                nxt.append(f"ds_read_b128 {vr(FA[nb]+4*k,4)}, v{vA} offset:{KC + (rr+1)*64 + k*512}")
                nxt.append(f"ds_read_b128 {vr(FB[nb]+4*k,4)}, v{vB} offset:{192 - (rr+1)*64 + k*512}")
        have = -1; issued = 0
        for n_, (aa, bb) in enumerate(pairs):
            m_ = max(aa, bb)
            if m_ > have:
                outstanding = 16 - 2 * (m_ + 1) + issued
                p(f"s_waitcnt lgkmcnt({min(outstanding, 15)})")
                have = m_
            J = aa + bb
            first = (rr == 0 and (aa, bb) == min((t for t in pairs if t[0] + t[1] == J), key=lambda t: pairs.index(t)))
            c = '0' if first else vr(CA + 4 * J, 4)
            p(f"v_mfma_f32_16x16x32_f16 {vr(CA+4*J,4)}, {vr(FA[bsel]+4*aa,4)}, {vr(FB[bsel]+4*bb,4)}, {c}")
            if have == 7 or True:
                if have == 7 and nxt:
                    for x in nxt: p(x)
                    nxt = []; issued = 16
    stamp(p, 6)
    for r in FA + FB: V.free(r, 32)
    p(f"""s_barrier
    s_lshl_b32 s60, s{S_WAVE}, 12
    v_add_u32 v{t1}, s60, v{vL16}
    s_xor_b32 s60, s60, 4096
    v_add_u32 v{t2}, s60, v{vL16}
    s_and_b32 s62, s{S_WAVE}, 1
    s_cmp_eq_u32 s62, 0
    s_cbranch_scc1 L_b_e0""")
    for k in range(4): p(f"ds_write_b128 v{t1}, {vr(CA+4*k,4)} offset:{KC+k*1024}")
    for k in range(16): p(f"v_mov_b32 v{CA+k}, v{CA+16+k}")
    p("s_branch L_b_e1\nL_b_e0:")
    for k in range(4): p(f"ds_write_b128 v{t1}, {vr(CA+16+4*k,4)} offset:{KC+k*1024}")
    p("L_b_e1:")
    XN = a(8, 2); O = CA + 16
    p(f"""s_lshr_b32 s60, s{S_WAVE}, 1
    s_mul_i32 s75, s60, {XCH}
    s_lshl_b32 s62, s62, 11
    s_add_u32 s75, s75, s62
    v_lshlrev_b32 v{t0}, 5, v{vi}
    v_lshl_add_u32 v{t0}, v{vg}, 3, v{t0}
    v_add_u32 v{t0}, s75, v{t0}""")
    for k in range(4): p(f"ds_read_b64 {vr(XN+2*k,2)}, v{t0} offset:{XBL + 512 + k*512}")
    p("s_waitcnt lgkmcnt(0)\n s_barrier")
    for k in range(4): p(f"ds_read_b128 {vr(O+4*k,4)}, v{t2} offset:{KC+k*1024}")
    p(f"""v_lshlrev_b32 v{t3}, 6, v{vi}
    v_lshl_add_u32 v{t3}, v{vg}, 4, v{t3}
    s_lshl_b32 s60, s63, 13
    s_lshl_b32 s62, s62, 1
    s_add_u32 s60, s60, s62
    s_add_u32 s60, s60, {ST}""")
    Y = a(4, 2); Xf = a(4, 2); GG = [a(4, 2), a(4, 2)]
    for k in range(4):
        g_ = GG[k & 1]
        p(f"s_waitcnt lgkmcnt({3-k})")
        for r in range(4):
            p(f"v_add_f32 v{Y+r}, v{CA+4*k+r}, v{O+4*k+r}")
            p(f"v_ldexp_f32 v{Y+r}, v{Y+r}, s72")
        for h in range(2):
            p(f"""v_cvt_f32_f16 v{Xf+2*h}, v{XN+2*k+h}
            v_cvt_f32_f16_sdwa v{Xf+2*h+1}, v{XN+2*k+h} dst_sel:DWORD dst_unused:UNUSED_PAD src0_sel:WORD_1""")
        for r in range(4): p(f"v_mul_f32 v{Xf+r}, v{Xf+r}, v{vDk}")
        for h in range(2):
            p(f"""v_cvt_pk_bf16_f32 v{t0}, v{Y+2*h}, v{Y+2*h+1}
            v_cvt_pk_bf16_f32 v{t1}, v{Xf+2*h}, v{Xf+2*h+1}
            v_lshlrev_b32 v{Y+2*h}, 16, v{t0}
            v_and_b32 v{Y+2*h+1}, 0xffff0000, v{t0}
            v_lshlrev_b32 v{Xf+2*h}, 16, v{t1}
            v_and_b32 v{Xf+2*h+1}, 0xffff0000, v{t1}
            v_pk_add_f32 {vr(Y+2*h,2)}, {vr(Y+2*h,2)}, {vr(Xf+2*h,2)}
            v_cvt_pk_bf16_f32 v{g_+h}, v{Y+2*h}, v{Y+2*h+1}""")
        if k < 2: p(f"v_mov_b32 v{g_+2}, s{S_TAGA}\n v_mov_b32 v{g_+3}, s{S_TAGB}")
        p(f"buffer_store_dwordx4 {vr(g_,4)}, v{t3}, s[4:7], s60 offen offset:{k*1024} sc1")
    stamp(p, 7)
    p(f"""s_or_b32 s60, s2, s{S_WAVE}
    s_cmp_lg_u32 s60, 0
    s_cbranch_scc1 L_b_done""")
    if cfg.only != 'B':
        FL = a(8, 2)
        p(f"""v_lshlrev_b32 v{t3}, 8, v{lane}
        s_mov_b32 s62, 0
L_b_gpoll:""")
        for i in range(4):
            p(f"s_mov_b32 s60, {HFLAG + i*16384}\n buffer_load_dwordx2 {vr(FL+2*i,2)}, v{t3}, s[4:7], s60 offen sc1")
        p(f"s_waitcnt vmcnt(0)\n v_mov_b32 v{t0}, 0")
        for i in range(4):
            p(f"""v_xor_b32 v{t1}, s{S_TAGA}, v{FL+2*i}
            v_xor_b32 v{t2}, s{S_TAGB}, v{FL+2*i+1}
            v_or3_b32 v{t0}, v{t0}, v{t1}, v{t2}""")
        p(f"""v_cmp_ne_u32 vcc, 0, v{t0}
        s_add_u32 s62, s62, 1
        s_cmp_eq_u64 vcc, 0
        s_cbranch_scc1 L_b_gok
        s_cmp_ge_u32 s62, {SPIN_MAX}
        s_cbranch_scc1 L_b_gok
        s_sleep 4
        s_branch L_b_gpoll
L_b_gok:""")
    p(f"""v_mov_b32 v{t0}, s{S_TAGA}
    v_mov_b32 v{t1}, 0
    s_mov_b64 exec, 1
    buffer_store_dword v{t0}, v{t1}, s[4:7], 0 offen offset:{GEN}
    s_mov_b64 exec, -1
L_b_done:""")
    stamps_out(p, 8, CA)
    p("s_endpgm")
    return V.hi_used

def build():
    p = Prog(); p.nopk = bool(cfg.nopk)
    name = NAME + "_kernel"
    p(f""".globl {name}
.p2align 8
.type {name},@function
{name}:
    s_cmp_ge_u32 s2, 512
    s_cbranch_scc1 L_exit
    s_load_dwordx16 s[16:31], s[0:1], 0
    s_load_dwordx16 s[32:47], s[0:1], 64
    s_load_dwordx2 s[48:49], s[0:1], 128""")
    if cfg.cpf:
        p(f"""s_getpc_b64 s[52:53]
        s_lshr_b32 s54, s2, 3
        s_and_b32 s54, s54, 15
        s_lshl_b32 s54, s54, 12
        v_lshl_add_u32 v4, v0, 4, s54
        v_min_u32 v4, CODE_END_OFF, v4
        global_load_dwordx4 v[252:255], v4, s[52:53]""")
    if cfg.swap: p("s_xor_b32 s2, s2, 256")
    if cfg.scr:
        p("""s_and_b32 s90, s2, 7
        s_lshr_b32 s91, s2, 3
        s_and_b32 s91, s91, 7
        s_andn2_b32 s2, s2, 63
        s_lshl_b32 s90, s90, 3
        s_or_b32 s2, s2, s90
        s_or_b32 s2, s2, s91""")
    stamp(p, 0)
    p(f"""v_lshrrev_b32 v1, 6, v0
    v_readfirstlane_b32 s{S_WAVE}, v1
    v_and_b32 v1, 63, v0
    v_mov_b32 v3, 0
    s_waitcnt lgkmcnt(0)
    s_mov_b32 s4, s48
    s_mov_b32 s5, s49
    s_mov_b32 s6, 0x10000000
    s_mov_b32 s7, 0x20000
    buffer_load_dword v2, v3, s[4:7], 0 offen offset:{GEN} sc1
""")
    if cfg.tlb:
        p(f"""v_and_b32 v4, 15, v1
        v_lshlrev_b32 v4, {cfg.tlb}, v4
        v_min_u32 v4, 0xc00000, v4
        buffer_load_dword v248, v4, s[4:7], 0 offen offset:256
        global_load_dword v249, v3, {sr(PTR(14),2)}
        global_load_dword v250, v3, {sr(PTR(12),2)}
        global_load_dword v251, v3, {sr(PTR(13),2)}""")
    p(f"""s_cmp_ge_u32 s2, 256
    s_cbranch_scc1 L_role_A""")
    if cfg.only == 'A':
        p("s_endpgm"); hb = 0
    else:
        import roleB
        hb = roleB.role_B(p, 2, sys.modules[__name__])
    p("L_role_A:")
    ha = 0
    if cfg.only != 'B':
        import roleA
        ha = roleA.role_A(p, 2, sys.modules[__name__])
    p("L_exit:\n s_endpgm")
    n = p.fix_hazards()
    print("vgprs B %d A %d, nops inserted %d, instrs %d" % (hb, ha, n, len(p.ins)), file=sys.stderr)
    import subprocess, re as _re
    body = p.text()
    if cfg.cpf:
        tmp = '.amdgcn_target "amdgcn-amd-amdhsa--gfx950"\n.text\n' + body.replace('CODE_END_OFF', '0x12345')
        open('_sz.s', 'w').write(tmp)
        subprocess.run(['clang', '-x', 'assembler', '-target', 'amdgcn-amd-amdhsa', '-mcpu=gfx950', '-c', '_sz.s', '-o', '_sz.o'], check=True)
        o = subprocess.run(['llvm-objdump', '-h', '_sz.o'], capture_output=True, text=True).stdout
        sz = int(_re.search(r'\.text\s+([0-9a-f]+)', o).group(1), 16)
        print("code bytes", sz, file=sys.stderr)
        body = body.replace('CODE_END_OFF', str((sz - 64) & ~15))
    hdr = open('cdna_kernels/' + NAME + '.s.ref').read().split('; Override launch')[0]
    hdr += f"; @launch kernel={name} grid=(512,1,1) block=(256,1,1) lds={LDS_BYTES}\n"
    hdr += '.amdgcn_target "amdgcn-amd-amdhsa--gfx950"\n.text\n'
    return hdr + body + '.section .rodata,"a"\n.p2align 6\n' + kernel_desc(name, 256)

if __name__ == '__main__':
    import __main__
    out = sys.argv[1]
    for o in sys.argv[2:]:
        if o == 'ts': cfg.ts = True
        elif o == 'dumpK': cfg.dumpK = True
        elif o.startswith('only='): cfg.only = o[5:]
        elif o.startswith('spin='): SPIN_MAX = int(o[5:])
        elif '=' in o: setattr(cfg, o.split('=')[0], int(o.split('=')[1]))
    open(out, 'w').write(build())
```

```python
from asmlib import *
import math, sys
from collections import deque

class Cnt:
    def __init__(self, p, name, cap):
        self.p = p; self.name = name; self.cap = cap; self.ops = []; self.done = 0
    def issue(self, tag): self.ops.append(tag)
    def wait(self, tag):
        idx = max((i for i, t in enumerate(self.ops) if t == tag), default=-1)
        assert idx >= 0, ('wait for never-issued', tag)
        if idx < self.done: return
        n = min(len(self.ops) - 1 - idx, self.cap)
        self.p(f"s_waitcnt {self.name}({n})")
        self.done = len(self.ops) - n
    def wait_all(self):
        self.p(f"s_waitcnt {self.name}(0)"); self.done = len(self.ops)

def role_A(p, vgen, G):
    S_WAVE, S_TAGA, S_TAGB = G.S_WAVE, G.S_TAGA, G.S_TAGB
    f32 = G.f32; cfg = G.cfg; stamp = G.stamp; srd = G.srd; PTR = G.PTR
    REGS = 20480; NU = 10
    NXP = cfg.nxp
    V = Regs('v', 4, 256); a = V.alloc
    lane = 1
    vm = Cnt(p, 'vmcnt', 63); lg = Cnt(p, 'lgkmcnt', 15)
    vm.issue('cpf'); vm.issue('gen')
    if cfg.tlb:
        for _ in range(4): vm.issue('tlb')
    t0 = a(); t1 = a(); t2 = a(); t3 = a()
    S2 = a(12, 4)
    CFR = S2; vA = S2 + 8
    TG = S2 + 2; FL = S2 + 4; vB2o = S2 + 6; vOo = S2 + 8; vSo = S2 + 9; vSw = S2 + 10; vSr = S2 + 11; vH = [S2, S2 + 1]
    vW2o = a(2); vHo = a(); vABo = a()
    X = a(128, 4)
    vXr = a(4, 2); vXo = a(4); vWo = a(2); AB_ = a(4, 4)
    vT = vXr; vFo = vXr + 2
    ACC = a(64, 4); FR = a(24, 4)
    if cfg.prio: p(f"s_setprio {cfg.prio}")
    p(f"""s_sub_u32 s60, s2, 256
    s_and_b32 s61, s60, 7
    s_lshr_b32 s62, s60, 3""")
    srd(p, 8, 0, 2048 * 1024)
    srd(p, 12, 10, 512 * 3584)
    p(f"""s_mul_i32 s71, s{S_WAVE}, {REGS}
    v_lshrrev_b32 v{t0}, 3, v{lane}
    v_and_b32 v{t1}, 7, v{lane}
    v_mul_u32_u24 v{vWo}, 3584, v{t0}
    v_bfe_u32 v{t2}, v{lane}, 4, 1
    v_lshlrev_b32 v{t2}, 2, v{t2}
    v_xor_b32 v{t2}, v{t1}, v{t2}
    v_lshl_add_u32 v{vWo}, v{t2}, 4, v{vWo}
    v_add_u32 v{vWo+1}, {8*3584 - 1024}, v{vWo}
    s_cmp_ge_u32 s62, 28
    s_cbranch_scc1 L_a_nog1""")
    for _ in range(cfg.dA): p("s_sleep 32")
    p(f"""s_mul_i32 s63, s62, 37
    s_lshr_b32 s63, s63, 8
    s_mul_i32 s64, s63, 7
    s_sub_u32 s64, s62, s64
    s_lshr_b32 s65, s61, 1
    s_lshl_b32 s65, s65, 2
    s_add_u32 s63, s63, s65
    s_and_b32 s65, s61, 1
    s_mul_i32 s65, s65, 7
    s_add_u32 s64, s64, s65
    v_lshrrev_b32 v{t2}, 4, v{lane}
    v_xor_b32 v{t2}, v{t1}, v{t2}
    v_lshlrev_b32 v{t2}, 4, v{t2}
    v_lshl_add_u32 v{vXo}, v{t0}, 10, v{t2}
    v_xor_b32 v{vXo+1}, 64, v{vXo}
    v_add_u32 v{vXo+1}, {7168}, v{vXo+1}
    v_add_u32 v{vXo+2}, {2*7168}, v{vXo}
    v_add_u32 v{vXo+3}, {2*7168}, v{vXo+1}
    s_lshl_b32 s68, s63, 17
    s_lshl_b32 s65, s{S_WAVE}, 15
    s_add_u32 s68, s68, s65
    s_add_u32 s69, s62, s61
    s_and_b32 s69, s69, {cfg.rot}
    s_lshl_b32 s65, s69, 7
    s_add_u32 s77, s68, s65
    s_mul_i32 s70, s{S_WAVE}, {16*3584}
    s_lshl_b32 s65, s64, 8
    s_add_u32 s70, s70, s65""")
    def xr(kc, sg): return X + (kc * 4 + sg) * 4
    SK = 18
    hi = deque(); lo = deque()
    def pump(n, nlo=0):
        k = 0
        while k < n and hi: hi.popleft()(); k += 1
        while nlo > 0 and lo: lo.popleft()(); nlo -= 1
    def drain_q():
        while hi: hi.popleft()()
        while lo: lo.popleft()()
    unit_of = {}
    free_units = deque(range(2 * NXP, NU))
    pend = deque([('w1', t) for t in range(16)] + [('w2', k) for k in range(cfg.nkr, cfg.nkr + 10)])
    def g2_phys(k): return 2 * k if k < 14 else 2 * (k - 14) + 1
    sk_done = set(); wseq = [0]; hseq = [0]
    def dma_item(item, u, cnt):
        kind, t = item
        unit_of[item] = u
        kc = t & 7
        def f():
            p(f"s_add_u32 m0, s71, {u*2048}")
            if kind == 'w1':
                if kc not in sk_done:
                    sk_done.add(kc)
                    p(f"""s_xor_b32 s65, s69, {kc}
                    s_mul_i32 s65, s65, {64*3584}
                    s_add_u32 s{SK+kc}, s65, s70""")
                else:
                    p(f"s_add_u32 s{SK+kc}, s{SK+kc}, 128")
                p(f"buffer_load_dwordx4 v{vWo}, s[12:15], s{SK+kc} offen lds")
            else:
                p(f"""s_add_u32 s35, s73, {64*g2_phys(t)*1024}
                buffer_load_dwordx4 v{vW2o}, s[52:55], s35 offen lds""")
            cnt.issue(item)
        def g():
            if kind == 'w1': p(f"buffer_load_dwordx4 v{vWo+1}, s[12:15], s{SK+kc} offen offset:1024 lds")
            else: p(f"buffer_load_dwordx4 v{vW2o+1}, s[52:55], s35 offen offset:1024 lds")
            cnt.issue(item)
        return [f, g]
    def refill(q, cnt):
        while free_units and pend:
            for f in dma_item(pend.popleft(), free_units.popleft(), cnt): q.append(f)
    def dma_x(t):
        out = []
        for i in range(4):
            def f(i=i):
                if i == 0:
                    p(f"s_add_u32 m0, s71, {(t % NXP)*4096}")
                    p(f"s_xor_b32 s35, s77, {t*128}")
                p(f"buffer_load_dwordx4 v{vXo+i}, s[8:11], s35 offen offset:{i*1024} lds")
                vm.issue(('x', t))
            out.append(f)
        return out
    for t in range(NXP):
        for f in dma_x(t): f()
        for f in dma_item(pend.popleft(), free_units.popleft(), vm): f()
    refill(hi, vm)
    for _ in range(cfg.ni): hi.popleft()()
    def g2_setup():
        srd(p, 52, 12, 1792 * 1024)
        srd(p, 56, 14, 2048 * 1024)
        p(f"""s_lshl_b32 s78, s61, 2
        s_lshr_b32 s65, s62, 3
        s_add_u32 s78, s78, s65
        s_and_b32 s79, s62, 7
        s_lshr_b32 s66, s{S_WAVE}, 1
        s_and_b32 s67, s{S_WAVE}, 1
        v_lshrrev_b32 v{t0}, 3, v{lane}
        v_lshlrev_b32 v{vW2o}, 10, v{t0}
        v_and_b32 v{t0}, 7, v{lane}
        v_bfe_u32 v{t1}, v{lane}, 4, 1
        v_lshlrev_b32 v{t1}, 1, v{t1}
        v_xor_b32 v{t0}, v{t0}, v{t1}
        v_lshl_add_u32 v{vW2o}, v{t0}, 4, v{vW2o}
        v_add_u32 v{vW2o+1}, 7168, v{vW2o}
        s_lshl_b32 s73, s{S_WAVE}, 14
        s_lshl_b32 s65, s79, 7
        s_add_u32 s73, s73, s65
        v_lshlrev_b32 v{vHo}, 4, v{lane}""")
    def va_setup(dst):
        p(f"""v_lshrrev_b32 v{t0}, 5, v{lane}
        v_lshlrev_b32 v{t0}, 10, v{t0}
        v_bfe_u32 v{t1}, v{lane}, 2, 2
        v_lshl_add_u32 v{t0}, v{t1}, 7, v{t0}
        v_bfe_u32 v{t1}, v{lane}, 4, 1
        v_lshl_add_u32 v{t0}, v{t1}, 5, v{t0}
        v_and_b32 v{t1}, 3, v{lane}
        v_lshl_add_u32 v{t0}, v{t1}, 3, v{t0}
        v_bfe_u32 v{t1}, v{lane}, 3, 1
        v_lshl_add_u32 v{dst}, v{t1}, 6, v{t0}""")
    g2_setup()
    va_setup(vA)
    p(f"""v_xor_b32 v{vA+1}, 64, v{vA}
    v_add_u32 v{vA+2}, {REGS}, v{vA}
    v_add_u32 v{vA+3}, {REGS}, v{vA+1}
    v_and_b32 v{t0}, 31, v{lane}
    v_lshlrev_b32 v{vABo}, 4, v{t0}
    v_bfe_u32 v{t1}, v{lane}, 1, 3
    v_lshrrev_b32 v{t2}, 5, v{lane}
    v_xor_b32 v{t1}, v{t1}, v{t2}
    v_lshlrev_b32 v{t1}, 4, v{t1}
    v_lshl_add_u32 v{t1}, v{t0}, 7, v{t1}
    v_add_u32 v{vXr}, s71, v{t1}
    v_xor_b32 v{vXr+1}, 32, v{vXr}
    v_xor_b32 v{vXr+2}, 64, v{vXr}
    v_xor_b32 v{vXr+3}, 96, v{vXr}
    s_lshr_b32 s72, s68, 6
    s_add_u32 s72, s72, {G.AB}
    s_lshl_b32 s76, s64, 12
    s_add_u32 s76, s76, {G.CF}""")
    def acc(phi, mu): return ACC + (phi * 2 + mu) * 16
    PF = 2
    def rd_frag(n, mus=(0, 1)):
        t, sg = n >> 2, n & 3
        b = FR + (n % 3) * 8
        u = unit_of[('w1', t)]
        for mu in mus:
            for rho in range(2):
                p(f"ds_read_b64_tr_b16 {vr(b + mu*4 + rho*2, 2)}, v{vA + (sg&1)*2 + mu} offset:{(sg>>1)*2*REGS + u*2048 + rho*512}")
                lg.issue(('fr', n))
    def x_drain(t):
        out = []
        for h in range(2):
            def r(h=h):
                if h == 0:
                    assert vm.ops.count(('x', t)) == 4
                    vm.wait(('x', t))
                for sg in range(2 * h, 2 * h + 2):
                    p(f"ds_read_b128 {vr(xr(t,sg),4)}, v{vXr+sg} offset:{(t % NXP)*4096}")
                    lg.issue(('xr', t) if h else ('xr0', t))
            out.append(r)
        return out
    def x_next(t):
        def w():
            lg.wait(('xr', t))
            if t + NXP < 8:
                for f in dma_x(t + NXP): hi.append(f)
            else:
                free_units.append((t % NXP) * 2); free_units.append((t % NXP) * 2 + 1)
                refill(hi, vm)
        return w
    C1 = -2 * 0.7978845608028654 * G.LOG2E; C2 = C1 * 0.044715
    K1 = vXo; K2 = vXo + 1; IA = vXo + 2
    def ld_cf(phi, withab):
        if withab: p(f"buffer_load_dwordx4 {vr(AB_,4)}, v{vABo}, s[4:7], s72 offen sc1")
        for mu in range(2):
            p(f"buffer_load_dwordx4 {vr(CFR+4*mu,4)}, v{vHo}, s[4:7], s76 offen offset:{phi*2048 + mu*1024} sc1")
    def corr(phi):
        p(f"s_mov_b32 s69, 0\nL_a_cfpoll{phi}:")
        vm.wait(('cf', phi))
        p(f"""v_xor_b32 v{t0}, s{S_TAGA}, v{CFR+3}
        v_xor_b32 v{t1}, s{S_TAGA}, v{CFR+7}""")
        if phi == 0: p(f"v_xor_b32 v{t2}, s{S_TAGA}, v{AB_+3}\n v_or3_b32 v{t0}, v{t0}, v{t1}, v{t2}")
        else: p(f"v_or_b32 v{t0}, v{t0}, v{t1}")
        p(f"""v_cmp_ne_u32 vcc, 0, v{t0}
        s_add_u32 s69, s69, 1
        s_cmp_eq_u64 vcc, 0
        s_cbranch_scc1 L_a_cfok{phi}
        s_cmp_ge_u32 s69, {G.SPIN_MAX}
        s_cbranch_scc1 L_a_cfok{phi}
        s_sleep 1""")
        ld_cf(phi, phi == 0)
        p(f"""s_waitcnt vmcnt(0)
        s_branch L_a_cfpoll{phi}
L_a_cfok{phi}:
        v_mov_b32 v{CFR+3}, 0
        v_mov_b32 v{CFR+7}, 0""")
        if phi == 0:
            p(f"""v_and_b32 v{IA}, 0xffff0000, v{AB_+1}
            v_lshlrev_b32 v{t0}, 16, v{AB_+2}
            v_add_f32 v{IA}, v{IA}, v{t0}
            v_rcp_f32 v{t0}, v{IA}
            v_mov_b32 v{AB_+3}, 0
            v_mul_f32 v{K1}, {f32(C1)}, v{t0}
            v_mul_f32 v{t1}, v{t0}, v{t0}
            v_mul_f32 v{t1}, v{t1}, v{t0}
            v_mul_f32 v{K2}, {f32(C2)}, v{t1}
            s_lshl_b32 s72, s63, 2
            s_add_u32 s72, s72, s{S_WAVE}
            s_mul_i32 s72, s72, {112*1024}
            s_lshl_b32 s65, s64, 13
            s_add_u32 s72, s72, s65
            s_add_u32 s72, s72, {G.HB}""")
        else:
            p("s_add_u32 s72, s72, 4096")
        for mu in range(2):
            p(f"v_mfma_f32_32x32x16_bf16 {vr(acc(phi,mu),16)}, {vr(CFR+4*mu,4)}, {vr(AB_,4)}, {vr(acc(phi,mu),16)}")
    GT = X
    def gelu_ops(phi):
        ops = []
        quarters = [(mu, q) for mu in range(2) for q in range(4)]
        for k, (mu, q) in enumerate(quarters):
            tm = GT + (k & 1) * 4; ac = acc(phi, mu) + 4 * q; ho = GT + 8 + ((k >> 1) & 1) * 4
            L = []
            for j in range(4): L.append(f"v_mul_f32 v{tm+j}, v{ac+j}, v{ac+j}")
            for j in range(4): L.append(f"v_fma_f32 v{tm+j}, v{tm+j}, v{K2}, v{K1}")
            for j in range(4): L.append(f"v_mul_f32 v{tm+j}, v{tm+j}, v{ac+j}")
            for j in range(4): L.append(f"v_exp_f32 v{tm+j}, v{tm+j}")
            for j in range(4): L.append(f"v_fma_f32 v{tm+j}, v{tm+j}, v{IA}, v{IA}")
            for j in range(4): L.append(f"v_rcp_f32 v{tm+j}, v{tm+j}")
            for j in range(4): L.append(f"v_mul_f32 v{tm+j}, v{tm+j}, v{ac+j}")
            for j in range(2): L.append(f"v_cvt_pk_bf16_f32 v{ho + (q&1)*2 + j}, v{tm+2*j}, v{tm+2*j+1}")
            for l in L: ops.append(lambda l=l: p(l))
            if q & 1:
                def st(mu=mu, q=q, ho=ho):
                    p(f"buffer_store_dwordx4 {vr(ho,4)}, v{vHo}, s[4:7], s72 offen offset:{mu*2048 + (q>>1)*1024} sc1")
                    vm.issue(('hst', phi))
                ops.append(st)
        return ops
    def flag(phi, cnt, tg):
        p(f"""v_mov_b32 v{tg}, s{S_TAGA}
        v_mov_b32 v{tg+1}, s{S_TAGB}
        s_lshl_b32 s65, s60, 2
        s_add_u32 s65, s65, s{S_WAVE}
        s_lshl_b32 s65, s65, 6
        s_add_u32 s65, s65, {G.HFLAG + phi*G.HFLAG1}
        v_mov_b32 v{t0}, 0
        s_mov_b64 exec, 1
        buffer_store_dwordx2 {vr(tg,2)}, v{t0}, s[4:7], s65 offen sc1
        s_mov_b64 exec, -1""")
        cnt.issue(('flag', phi))
    def lines(txt): return [(lambda l=l: p(l)) for l in txt.strip().split('\n')]
    vt_txt = f"""v_lshrrev_b32 v{t2}, 5, v{lane}
        v_lshlrev_b32 v{t2}, 9, v{t2}
        v_bfe_u32 v{t3}, v{lane}, 2, 2
        v_lshl_add_u32 v{t2}, v{t3}, 7, v{t2}
        v_and_b32 v{t3}, 1, v{lane}
        v_lshl_add_u32 v{t2}, v{t3}, 6, v{t2}
        v_bfe_u32 v{t3}, v{lane}, 4, 1
        v_lshl_add_u32 v{t2}, v{t3}, 4, v{t2}
        v_bfe_u32 v{t3}, v{lane}, 1, 1
        v_lshl_add_u32 v{t2}, v{t3}, 3, v{t2}
        v_bfe_u32 v{t3}, v{lane}, 3, 1
        v_xor_b32 v{t3}, s67, v{t3}
        v_lshl_add_u32 v{t2}, v{t3}, 5, v{t2}
        v_add_u32 v{vT}, s71, v{t2}
        v_xor_b32 v{vT+1}, 32, v{vT}
        v_min_u32 v{t3}, 27, v{lane}
        v_lshrrev_b32 v{t2}, 1, v{t3}
        v_mul_u32_u24 v{vFo}, 37, v{t2}
        v_lshrrev_b32 v{vFo}, 8, v{vFo}
        v_mul_u32_u24 v{vFo+1}, 7, v{vFo}
        v_sub_u32 v{t2}, v{t2}, v{vFo+1}
        s_lshr_b32 s28, s78, 1
        s_and_b32 s29, s28, 3
        s_mul_i32 s29, s29, 7
        v_add_u32 v{t2}, s29, v{t2}
        s_lshr_b32 s28, s28, 2
        s_lshl_b32 s28, s28, 1
        v_add_u32 v{vFo}, s28, v{vFo}
        v_lshl_add_u32 v{t2}, v{t2}, 3, v{vFo}
        s_and_b32 s28, s78, 1
        s_lshl_b32 s28, s28, 1
        v_and_b32 v{t3}, 1, v{t3}
        v_add_u32 v{t3}, s28, v{t3}
        v_lshl_add_u32 v{t2}, v{t2}, 2, v{t3}
        v_lshlrev_b32 v{vFo}, 6, v{t2}
        s_mul_i32 s30, s78, {2*112*1024}
        s_lshl_b32 s28, s{S_WAVE}, 10
        s_add_u32 s30, s30, s28
        s_add_u32 s30, s30, {G.HB}
        s_mul_i32 s31, s66, {112*1024}
        s_sub_u32 s32, {112*1024}, s31"""
    NK_R = cfg.nkr
    BLK = lambda i: X + 8 * i
    wblk = {k: BLK(2 + k) for k in range(NK_R)}
    def rd_w2(k, dst, lgc, mds=(0, 1)):
        u = unit_of[('w2', k)]
        for md in mds:
            for rho in range(2):
                p(f"ds_read_b64_tr_b16 {vr(dst + md*4 + rho*2, 2)}, v{vT+md} offset:{u*2048 + rho*1024}")
                lgc.issue(('w2r', k))
    isL = lambda k: NK_R <= k < NK_R + 10
    def ld_raw(k, cnt):
        def f():
            p(f"""s_add_u32 s37, s73, {64*g2_phys(k)*1024}
            buffer_load_dwordx4 {vr(wblk[k],4)}, v{vW2o}, s[52:55], s37 offen""")
            cnt.issue(('w2', k))
        def g():
            p(f"buffer_load_dwordx4 {vr(wblk[k]+4,4)}, v{vW2o+1}, s[52:55], s37 offen offset:1024")
            cnt.issue(('w2', k))
        return [f, g]
    SCR = []
    def bounce_w(k):
        u = SCR[k & 1]; unit_of[('w2', k)] = u
        for i in range(2):
            p(f"ds_write_b128 v{vBw}, {vr(wblk[k]+4*i,4)} offset:{u*2048 + i*1024}"); lg.issue(('w2w', k))
    def mv(k):
        def f():
            while vm.ops.count(('w2', k)) < 2: hi.popleft()()
            vm.wait(('w2', k)); rd_w2(k, wblk[k], lg)
        def g():
            lg.wait(('w2r', k)); free_units.append(unit_of[('w2', k)]); refill(hi, vm)
        return f, g
    FB_ = {0: (G.HFLAG, vFo), 1: (G.HFLAG + G.HFLAG1, vFo), 2: (G.SFLAG, vFo + 1)}
    def poll_issue(phi, cnt):
        p(f"s_mov_b32 s65, {FB_[phi][0]}\n buffer_load_dwordx2 {vr(FL,2)}, v{FB_[phi][1]}, s[4:7], s65 offen sc1")
        cnt.issue(('poll', phi))
    def poll_check(phi, cnt, sfx=''):
        p(f"s_mov_b32 s69, 0\nL_a_hpoll{phi}{sfx}:")
        cnt.wait(('poll', phi))
        p(f"""v_xor_b32 v{t0}, s{S_TAGA}, v{FL}
        v_xor_b32 v{t1}, s{S_TAGB}, v{FL+1}
        v_or_b32 v{t0}, v{t0}, v{t1}
        v_cmp_ne_u32 vcc, 0, v{t0}
        s_add_u32 s69, s69, 1
        s_cmp_eq_u64 vcc, 0
        s_cbranch_scc1 L_a_hok{phi}{sfx}
        s_cmp_ge_u32 s69, {G.SPIN_MAX}
        s_cbranch_scc1 L_a_hok{phi}{sfx}
        s_mov_b32 s65, {FB_[phi][0]}
        s_sleep 1
        buffer_load_dwordx2 {vr(FL,2)}, v{FB_[phi][1]}, s[4:7], s65 offen sc1
        s_waitcnt vmcnt(0)
        s_branch L_a_hpoll{phi}{sfx}
L_a_hok{phi}{sfx}:""")
    hblk = {}; nh = [0]; lim = [14]
    hfree = deque([FR, FR + 8, FR + 16] + [BLK(i) for i in range(2 + NK_R, 16)])
    WF = [hfree.pop() for _ in range(cfg.wd + 1)]
    def ld_h1(k, r, cnt, nt):
        if nt == 0: p(f"s_add_u32 s36, s30, {g2_phys(k)*4096}")
        p(f"buffer_load_dwordx4 {vr(r + nt*4, 4)}, v{vH[nt]}, s[4:7], s36 offen sc1")
        cnt.issue(('h', k))
    def ld_h(k, r, cnt):
        ld_h1(k, r, cnt, 0); ld_h1(k, r, cnt, 1)
    def ld_h_all():
        while hfree and nh[0] < lim[0]:
            k = nh[0]; nh[0] += 1
            r = hfree.popleft(); hblk[k] = r
            hi.append(lambda k=k, r=r: ld_h1(k, r, vm, 0))
            hi.append(lambda k=k, r=r: ld_h1(k, r, vm, 1))
    vBw = S2 + 7
    vh_txt = f"""v_add_u32 v{vBw}, s71, v{vHo}
        v_add_u32 v{vH[0]}, s31, v{vHo}
        v_add_u32 v{vH[1]}, s32, v{vHo}"""
    vm.wait('gen')
    G.make_tags(p, vgen)
    for f in x_drain(0): f()
    stamp(p, 1)
    vm.wait(('w1', 0))
    p("s_barrier")
    for n in range(PF): rd_frag(n)
    x_next(0)()
    flagged = [False]; mvd = [0]; issued_at = {}; delayed = deque()
    for n in range(64):
        t, sg = n >> 2, n & 3
        phi, kc = t >> 3, t & 7
        if sg == 0 and t + 1 < 8:
            for f in x_drain(t + 1): hi.append(f)
        if sg == 2 and t + 1 < 8: hi.append(x_next(t + 1))
        if n == cfg.gstart - 8:
            def l0():
                ld_cf(0, True)
                for _ in range(3): vm.issue(('cf', 0))
            hi.append(l0)
        if n == 29:
            for f in lines(vt_txt): lo.append(f)
        if n == cfg.gstart:
            while lo: lo.popleft()()
            lo.append(lambda: corr(0))
            def l1():
                ld_cf(1, False)
                for _ in range(2): vm.issue(('cf', 1))
            for _ in range(4): lo.append(lambda: None)
            lo.append(l1)
            for f in gelu_ops(0): lo.append(f)
        if phi == 1:
            while mvd[0] < NK_R and 2 + mvd[0] < 2 * kc:
                for f in ld_raw(mvd[0], vm): hi.append(f)
                mvd[0] += 1
        m = n + PF
        if m < 64 and (m & 3) == 0:
            tn = m >> 2
            while vm.ops.count(('w1', tn)) < 2: pump(1)
            vm.wait(('w1', tn))
            p("s_barrier")
            if tn >= 2:
                free_units.append(unit_of[('w1', tn - 2)]); refill(hi, vm)
        if phi == 0 and sg == 0:
            while ('xr', t) not in lg.ops: pump(1)
            lg.wait(('xr', t))
        lg.wait(('fr', n))
        b = FR + (n % 3) * 8
        first = (kc == 0 and sg == 0)
        for mu in range(2):
            cc = '0' if first else vr(acc(phi, mu), 16)
            p(f"v_mfma_f32_32x32x16_bf16 {vr(acc(phi,mu),16)}, {vr(b+mu*4,4)}, {vr(xr(kc, sg),4)}, {cc}")
            if m < 64: rd_frag(m, (mu,))
            if hi: pump(1, max(0, cfg.glo - 2))
            else: pump(0, cfg.glo)
        if n >= cfg.fl0 and not lo and not flagged[0]:
            vm.wait(('hst', 0)); flag(0, vm, GT); flagged[0] = True
        if cfg.fine and sg == 3 and t % 2 == 1 and t < 15: stamp(p, 2 + t // 2)
    while lo: lo.popleft()()
    if cfg.fine:
        stamp(p, 9)
        stamp = lambda p, k: None
    corr(1)
    if not flagged[0]:
        vm.wait(('hst', 0)); flag(0, vm, FR)
    p("s_barrier")
    stamp(p, 2)
    SCR += [unit_of[('w1', 14)], unit_of[('w1', 15)]]
    while mvd[0] < NK_R:
        for f in ld_raw(mvd[0], vm): hi.append(f)
        mvd[0] += 1
    p(vh_txt)
    g1 = gelu_ops(1)
    pc = len(g1) * cfg.p0c // 100
    poll_issue(0, vm)
    for gi, g in enumerate(g1):
        if gi == pc:
            poll_check(0, vm)
            dm = list(hi); hi.clear(); ld_h_all()
            for f in dm: hi.append(f)
        g()
        if hi and gi % cfg.gdm == 0: hi.popleft()()
    while any(vm.ops.count(o) == 1 for o in vm.ops if isinstance(o, tuple) and o[0] in ('w2', 'h')): hi.popleft()()
    for _ in range(2 * cfg.nh0):
        if hi: hi.popleft()()
    if cfg.kfl1 < 0:
        vm.wait(('hst', 1)); flag(1, vm, TG)
        hfree.append(BLK(1))
    hfree.append(BLK(0))
    ld_h_all()
    emitted = set(vm.ops)
    if cfg.fine2:
        stamp(p, 7)
        stamp = lambda p, k: None
    stamp(p, 3)
    p("s_branch L_a_g2")
    p("L_a_nog1:")
    for _ in range(cfg.dI): p("s_sleep 32")
    vm2 = Cnt(p, 'vmcnt', 63); lg2 = Cnt(p, 'lgkmcnt', 15)
    p(f"""s_sub_u32 s63, s62, 28
    s_lshl_b32 s63, s63, 3
    s_add_u32 s63, s63, s61
    s_cmp_ge_u32 s63, 28
    s_cbranch_scc1 L_a_nocf
    s_lshr_b32 s64, s63, 1
    s_and_b32 s66, s63, 1
    s_lshl_b32 s70, s66, 2
    s_add_u32 s70, s70, s{S_WAVE}
    s_mul_i32 s70, s70, {64*3584}
    s_lshl_b32 s65, s64, 8
    s_add_u32 s70, s70, s65""")
    for u in range(8):
        p(f"""s_add_u32 m0, s71, {u*2048}
        s_add_u32 s28, s70, {(u & 3)*16*3584 + (u >> 2)*128}
        buffer_load_dwordx4 v{vWo}, s[12:15], s28 offen lds
        buffer_load_dwordx4 v{vWo+1}, s[12:15], s28 offen offset:1024 lds""")
        vm2.issue(('c', u)); vm2.issue(('c', u))
        if u == 3:
            vb = X + 12
            p(f"""v_lshl_add_u32 v{t0}, v{lane}, 1, s65
            global_load_ushort v{vb}, v{t0}, {sr(PTR(11),2)}
            global_load_ushort v{vb+1}, v{t0}, {sr(PTR(11),2)} offset:128""")
            vm2.issue('b1'); vm2.issue('b1')
    SEL = X; ONE = X + 4; CB = X + 24; vj = X + 14; vq = X + 15; vcw = X + 16; vcr = X + 17; vco = X + 19
    va_setup(vA)
    p(f"""v_add_u32 v{vA}, s71, v{vA}
    v_xor_b32 v{vA+1}, 64, v{vA}
    v_and_b32 v{vj}, 15, v{lane}
    v_lshrrev_b32 v{vq}, 4, v{lane}
    v_xor_b32 v{t0}, v{vq}, v{vj}
    v_and_b32 v{t0}, 1, v{t0}
    v_cmp_eq_u32 vcc, 0, v{t0}
    v_mov_b32 v{t1}, 0x3f803f80
    v_cndmask_b32 v{SEL}, 0, v{t1}, vcc
    v_mov_b32 v{SEL+1}, v{SEL}
    v_mov_b32 v{SEL+2}, v{SEL}
    v_mov_b32 v{SEL+3}, v{SEL}
    v_lshlrev_b32 v{vcw}, 6, v{vj}
    v_lshl_add_u32 v{vcw}, v{vq}, 4, v{vcw}
    v_add_u32 v{vcw}, s71, v{vcw}
    v_lshlrev_b32 v{vcr}, 2, v{lane}
    v_add_u32 v{vcr+1}, {2*REGS}, v{vcr}
    v_and_b32 v{t0}, 31, v{lane}
    v_lshlrev_b32 v{vco}, 4, v{t0}
    v_lshrrev_b32 v{t0}, 5, v{lane}
    v_lshl_add_u32 v{vco}, v{t0}, 10, v{vco}
    s_lshl_b32 s29, s64, 12
    s_lshl_b32 s28, s66, 9
    s_add_u32 s29, s29, s28
    s_add_u32 s29, s29, {G.CF}
    s_mov_b32 s74, 0x00030003
    s_mov_b32 s75, 0x00030003
    s_sub_u32 s28, s66, 1""")
    for ph in range(2):
        for u in range(4 * ph, 4 * ph + 4):
            vm2.wait(('c', u))
            for mu in range(2):
                for rho in range(2):
                    p(f"ds_read_b64_tr_b16 {vr(CB + (u&3)*8 + mu*4 + rho*2, 2)}, v{vA+mu} offset:{u*2048 + rho*512}")
                    lg2.issue(('cr', u))
        for u in range(4 * ph, 4 * ph + 4):
            lg2.wait(('cr', u))
            for mu in range(2):
                cc = '0' if (u & 3) == 0 else vr(ONE + 4 * mu, 4)
                p(f"v_mfma_f32_16x16x32_bf16 {vr(ONE+4*mu,4)}, {vr(CB + (u&3)*8 + mu*4,4)}, {vr(SEL,4)}, {cc}")
        if ph == 0:
            vm2.wait('b1'); G.make_tags(p, vgen)
        off = (8 + ph) * 2048
        p(f"""s_mov_b64 exec, s[74:75]
        ds_write_b128 v{vcw}, {vr(ONE,4)} offset:{off}
        ds_write_b128 v{vcw}, {vr(ONE+4,4)} offset:{off+128}
        s_mov_b64 exec, -1
        v_and_b32 v{vb+ph}, s28, v{vb+ph}
        s_waitcnt lgkmcnt(0)
        s_barrier
        ds_read_b32 v{CB}, v{vcr} offset:{off}
        ds_read_b32 v{CB+1}, v{vcr} offset:{off + REGS}
        ds_read_b32 v{CB+2}, v{vcr+1} offset:{off}
        ds_read_b32 v{CB+3}, v{vcr+1} offset:{off + REGS}
        s_waitcnt lgkmcnt(0)
        v_add_f32 v{CB}, v{CB}, v{CB+1}
        v_add_f32 v{CB+2}, v{CB+2}, v{CB+3}
        v_add_f32 v{CB}, v{CB}, v{CB+2}
        v_cvt_pk_bf16_f32 v{CB+1}, v{CB}, v{CB}
        v_and_b32 v{CB+2}, 0xffff0000, v{CB+1}
        v_sub_f32 v{CB+3}, v{CB}, v{CB+2}
        v_cvt_pk_bf16_f32 v{CB+36}, v{CB}, v{CB+3}
        v_and_b32 v{CB+1}, 0xffff, v{CB+1}
        v_lshl_or_b32 v{CB+37}, v{vb+ph}, 16, v{CB+1}
        v_mov_b32 v{CB+38}, v{vb+ph}
        v_mov_b32 v{CB+39}, s{S_TAGA}
        s_cmp_lg_u32 s{S_WAVE}, {ph}
        s_cbranch_scc1 L_a_nocf2{ph}
        buffer_store_dwordx4 {vr(CB+36,4)}, v{vco}, s[4:7], s29 offen offset:{ph*2048} sc1
L_a_nocf2{ph}:""")
        lg2.done = len(lg2.ops)
        stamp(p, 1 + ph)
    p(f"""s_barrier
L_a_nocf:
    s_waitcnt vmcnt(0)
    s_barrier""")
    G.make_tags(p, vgen)
    g2_setup()
    p(vt_txt); p(vh_txt)
    vm2 = Cnt(p, 'vmcnt', 63); lg2 = Cnt(p, 'lgkmcnt', 15)
    save_units = dict(unit_of)
    flag(0, vm2, TG)
    if cfg.kfl1 < 0: flag(1, vm2, TG)
    for k in range(NK_R):
        if ('w2', k) in emitted:
            for f in ld_raw(k, vm2): f()
    unit_of.update(save_units)
    for (kind, k), u in sorted(save_units.items()):
        if kind == 'w2' and k >= NK_R and ('w2', k) in emitted:
            for f in dma_item(('w2', k), u, vm2): f()
    poll_issue(0, vm2); poll_check(0, vm2, 'i')
    for k in sorted(hblk):
        if ('h', k) in emitted: ld_h(k, hblk[k], vm2)
    vm2.wait_all()
    p("L_a_g2:")
    if cfg.prio2 >= 0: p(f"s_setprio {cfg.prio2}")
    ACC2 = ACC
    for r, n in ((vXo, 4), (vWo, 2), (AB_, 4)): V.free(r, n)
    fin_txt = f"""v_and_b32 v{t2}, 31, v{lane}
    v_lshlrev_b32 v{vOo}, 10, v{t2}
    v_lshrrev_b32 v{t2}, 5, v{lane}
    v_lshl_add_u32 v{vOo}, v{t2}, 6, v{vOo}
    s_lshl_b32 s26, s78, 16
    s_lshl_b32 s28, s66, 15
    s_add_u32 s26, s26, s28
    s_lshl_b32 s29, s79, 7
    s_lshl_b32 s28, s67, 5
    s_add_u32 s29, s29, s28
    s_add_u32 s26, s26, s29
    v_lshl_add_u32 v{vB2o}, v{t2}, 6, s29
    v_lshrrev_b32 v{t2}, 2, v{lane}
    v_lshlrev_b32 v{vSo}, 12, v{t2}
    v_and_b32 v{t2}, 3, v{lane}
    v_lshl_add_u32 v{vSo}, v{t2}, 4, v{vSo}
    s_lshl_b32 s27, s79, 18
    s_lshl_b32 s28, s67, 16
    s_add_u32 s27, s27, s28
    s_lshl_b32 s28, s78, 7
    s_add_u32 s27, s27, s28
    s_lshl_b32 s28, s66, 6
    s_add_u32 s27, s27, s28
    s_add_u32 s27, s27, {G.ST}
    v_add_u32 v{vSw}, s71, v{vHo}
    v_and_b32 v{t2}, 15, v{lane}
    v_bfe_u32 v{t3}, v{lane}, 4, 1
    v_lshl_add_u32 v{t2}, v{t3}, 5, v{t2}
    s_lshl_b32 s28, s79, 6
    s_lshl_b32 s29, s67, 4
    s_add_u32 s28, s28, s29
    v_add_u32 v{t2}, s28, v{t2}
    s_lshr_b32 s28, s78, 4
    s_lshl_b32 s28, s28, 6
    v_lshl_add_u32 v{vFo+1}, v{t2}, 7, s28
    v_lshrrev_b32 v{t2}, 5, v{lane}
    v_lshlrev_b32 v{t2}, 10, v{t2}
    v_bfe_u32 v{t3}, v{lane}, 2, 2
    v_lshl_add_u32 v{t2}, v{t3}, 6, v{t2}
    v_bfe_u32 v{t3}, v{lane}, 4, 1
    v_lshl_add_u32 v{t2}, v{t3}, 5, v{t2}
    v_and_b32 v{t3}, 3, v{lane}
    v_lshl_add_u32 v{t2}, v{t3}, 3, v{t2}
    v_add_u32 v{vSr}, s71, v{t2}"""
    for f in lines(fin_txt): lo.append(f)
    def ld_s(dst):
        for i in range(2):
            p(f"s_add_u32 s65, s27, {i*32*4096}\n buffer_load_dwordx4 {vr(dst+4*i,4)}, v{vSo}, s[4:7], s65 offen sc1")
            vm.issue('s')
    def a2(md, nt): return ACC2 + (nt * 2 + md) * 16
    def unpack_l(dst, src, n):
        out = []
        for q in range(n):
            out.append(f"v_lshlrev_b32 v{dst(2*q)}, 16, v{src+q}"); out.append(f"v_and_b32 v{dst(2*q+1)}, 0xffff0000, v{src+q}")
        return out
    lateR = deque(range(NK_R + 10, 28))
    def wsrc(k): return WF[k % (cfg.wd + 1)]
    XE = B2E = SG = None
    def prep(k):
        out = []
        def w():
            while vm.ops.count(('w2', k)) < 2: hi.popleft()()
            vm.wait(('w2', k))
            if not isL(k):
                bounce_w(k); hfree.append(wblk[k])
        out.append(w)
        out.append(lambda: rd_w2(k, wsrc(k), lg, (1,)))
        out.append(lambda: rd_w2(k, wsrc(k), lg, (0,)))
        return out
    for k in range(cfg.wd):
        for f in prep(k): f()
    for k in range(28):
        if k == cfg.kfl1:
            vm.wait(('hst', 1)); flag(1, vm, TG)
            hfree.append(BLK(1)); ld_h_all()
        if k == cfg.kpoll:
            while hi: hi.popleft()()
            stamp(p, 4)
            poll_issue(1, vm)
        if k == min(cfg.kpoll + 2, 14):
            while hi: hi.popleft()()
            assert not lateR and XE is not None, (lateR, XE)
            poll_check(1, vm); lim[0] = 28; ld_h_all()
            for _ in range(2 * cfg.nh1):
                if hi: hi.popleft()()
            stamp(p, 5)
        if k == 15:
            vm.wait('xe')
            for q in range(8):
                p(f"""v_lshlrev_b32 v{t2}, 16, v{B2E+q}
                v_and_b32 v{t3}, 0xffff0000, v{B2E+q}
                v_add_f32 v{ACC2+2*q}, v{ACC2+2*q}, v{t2}
                v_add_f32 v{ACC2+2*q+1}, v{ACC2+2*q+1}, v{t3}""")
            hfree.append(B2E)
        nx = deque(prep(k + cfg.wd)) if k + cfg.wd < 28 else deque()
        while vm.ops.count(('h', k)) < 2: hi.popleft()()
        vm.wait(('h', k))
        lg.wait(('w2r', k))
        if isL(k):
            free_units.append(unit_of[('w2', k)]); refill(hi, vm)
        for nt in (1, 0):
            for md in (1, 0):
                cc = '0' if k == 0 else vr(a2(md, nt), 16)
                p(f"v_mfma_f32_32x32x16_bf16 {vr(a2(md,nt),16)}, {vr(wsrc(k)+md*4,4)}, {vr(hblk[k] + nt*4, 4)}, {cc}")
                if nx: nx.popleft()()
                if hi: pump(1, 1)
                else: pump(0, 4)
        hfree.append(hblk[k])
        ld_h_all()
        if lim[0] == 14 and nh[0] == 14:
            while lateR and hfree:
                k2 = lateR.popleft(); wblk[k2] = hfree.popleft()
                for f in ld_raw(k2, vm): hi.append(f)
            if not lateR and XE is None and len(hfree) >= 3 and not lo:
                SG = hfree.popleft(); XE = hfree.popleft(); B2E = hfree.popleft()
                for l in f"""buffer_load_dwordx4 {vr(XE,4)}, v{vOo}, s[8:11], s26 offen
                buffer_load_dwordx4 {vr(XE+4,4)}, v{vOo}, s[8:11], s26 offen offset:16
                global_load_dwordx4 {vr(B2E,4)}, v{vB2o}, {sr(PTR(13),2)}
                global_load_dwordx4 {vr(B2E+4,4)}, v{vB2o}, {sr(PTR(13),2)} offset:16""".split('\n'):
                    hi.append(lambda l=l: (p(l), vm.issue('xe')))
        if k == cfg.ks:
            drain_q(); poll_issue(2, vm)
        if k == cfg.ks + 3:
            drain_q()
            vm.wait(('poll', 2))
            p(f"""v_xor_b32 v{t0}, s{S_TAGA}, v{FL}
            v_xor_b32 v{t1}, s{S_TAGB}, v{FL+1}
            v_or_b32 v{t0}, v{t0}, v{t1}
            v_cmp_ne_u32 s[74:75], 0, v{t0}""")
            ld_s(SG)
        if k == 24:
            XF = [hfree.popleft(), hfree.popleft()]
            xf = lambda i: XF[i >> 3] + (i & 7)
            for l in unpack_l(xf, XE, 8): lo.append(lambda l=l: p(l))
    drain_q()
    stamp(p, 6)
    SV = hfree.popleft(); OUT = hfree.popleft()
    TMb = [hfree.popleft(), hfree.popleft()]; tm = lambda i: TMb[i >> 3] + (i & 7)
    SFb = [hfree.popleft(), hfree.popleft()]; sf = lambda i: SFb[i >> 3] + (i & 7)
    OWN = ACC2
    p(f"v_add_u32 v{t1}, s71, v{vHo}")
    for T in (3, 2, 1):
        for q in range(4): p(f"ds_write_b128 v{t1}, {vr(ACC2 + T*16 + 4*q, 4)} offset:{T*4096 + q*1024}")
    vm.wait('s')
    for i in range(2): p(f"ds_write_b128 v{vSw}, {vr(SG+4*i,4)} offset:{i*1024}")
    for q in range(4): p(f"ds_read_b64_tr_b16 {vr(SV+2*q,2)}, v{vSr} offset:{q*256}")
    for k in range(1, 4):
        p(f"""s_xor_b32 s65, s{S_WAVE}, {k}
        s_mul_i32 s65, s65, {REGS}
        v_add_u32 v{t0+k}, s65, v{vHo}""")
    p("s_waitcnt lgkmcnt(0)\n s_barrier")
    for k in range(1, 4):
        for q in range(4): p(f"ds_read_b128 {vr(ACC2 + k*16 + 4*q, 4)}, v{t0+k} offset:{k*4096 + q*1024}")
    for l in unpack_l(sf, SV, 8): p(l)
    for k in range(1, 4):
        p(f"s_waitcnt lgkmcnt({12 - 4*k})")
        for q in range(16): p(f"v_add_f32 v{OWN+q}, v{OWN+q}, v{ACC2+k*16+q}")
    for q in range(16): p(f"v_mul_f32 v{tm(q)}, {f32(-G.LOG2E)}, v{OWN+q}")
    for q in range(16): p(f"v_exp_f32 v{tm(q)}, v{tm(q)}")
    for q in range(16): p(f"v_add_f32 v{tm(q)}, 1.0, v{tm(q)}")
    for q in range(16): p(f"v_rcp_f32 v{tm(q)}, v{tm(q)}")
    for q in range(16): p(f"v_mul_f32 v{tm(q)}, v{OWN+q}, v{tm(q)}")
    p("s_cmp_eq_u64 s[74:75], 0\n s_cbranch_scc1 L_a_sfast")
    vm3 = Cnt(p, 'vmcnt', 63)
    poll_issue(2, vm3); poll_check(2, vm3)
    ld_s(SG)
    p("s_waitcnt vmcnt(0)")
    for i in range(2): p(f"ds_write_b128 v{vSw}, {vr(SG+4*i,4)} offset:{i*1024}")
    for q in range(4): p(f"ds_read_b64_tr_b16 {vr(SV+2*q,2)}, v{vSr} offset:{q*256}")
    p("s_waitcnt lgkmcnt(0)")
    for l in unpack_l(sf, SV, 8): p(l)
    p("L_a_sfast:")
    for h in range(2):
        for q in range(8 * h, 8 * h + 8): p(f"v_fma_f32 v{OWN+q}, v{sf(q)}, v{tm(q)}, v{xf(q)}")
        for q in range(4 * h, 4 * h + 4): p(f"v_cvt_pk_bf16_f32 v{OUT+q}, v{OWN+2*q}, v{OWN+2*q+1}")
        p(f"buffer_store_dwordx4 {vr(OUT+4*h,4)}, v{vOo}, s[56:59], s26 offen offset:{16*h}")
    stamp(p, 7)
    G.stamps_out(p, 10 if cfg.fine else 8, ACC2 + 16)
    p("s_endpgm")
    return V.hi_used
```
